```python
import torch

def _softmax(x, axis=-1):
    return torch.softmax(x, dim=axis)
def _gelu(x):
    return torch.nn.functional.gelu(x, approximate="tanh")
def _silu(x):
    return torch.nn.functional.silu(x)
def _sigmoid(x):
    return torch.sigmoid(x)
def _layernorm(x, axis=-1, eps=1e-5):
    m = x.mean(dim=axis, keepdim=True)
    v = x.var(dim=axis, keepdim=True, unbiased=False)
    return (x - m) / torch.sqrt(v + eps)
def _scatter_add(tgt, idx, src, axis=0):
    return tgt.clone().index_add_(axis, idx, src)
def _segment_sum(src, seg, n):
    out = torch.zeros((n,) + src.shape[1:], dtype=src.dtype)
    return out.index_add_(0, seg, src)
def _pad(x, pw):
    flat = tuple(v for pair in reversed(pw) for v in pair)
    return torch.nn.functional.pad(x, flat)

kernel_name = 'parallel_sum__ssm_conv_s4__moe_arch_mod__prompt'

def setup_inputs():

    _w = (lambda a: (lambda t: t.to(torch.bfloat16) if t.is_floating_point() else t)(torch.as_tensor(a)))
    def _A_setup():
        B, L, D, N = 1, 2048, 512, 128
        A_re = -(lambda _x: torch.exp(torch.as_tensor(_x)))((lambda *s: torch.randn(*s, dtype=torch.bfloat16) * 3.2)(D, N))
        A_im = torch.pi * (lambda *s: torch.randn(*s, dtype=torch.bfloat16) * 0.1)(D, N)
        B_re = (lambda *s: torch.randn(*s, dtype=torch.bfloat16) * 0.4)(D, N)
        B_im = (lambda *s: torch.randn(*s, dtype=torch.bfloat16) * 0.4)(D, N)
        C_re = (lambda *s: torch.randn(*s, dtype=torch.bfloat16) * 0.4)(D, N)
        C_im = (lambda *s: torch.randn(*s, dtype=torch.bfloat16) * 0.4)(D, N)
        log_dt = (lambda *s: torch.randn(*s, dtype=torch.bfloat16) * 0.1)(D) * 0.5 - 4.0
        Dskip = (lambda *s: torch.randn(*s, dtype=torch.bfloat16) * 0.1)(D)
        return {
            "u": _w((lambda *s: torch.randn(*s, dtype=torch.bfloat16) * 0.05)(B, L, D)),
            "A_re": _w(A_re),
            "A_im": _w(A_im),
            "B_re": _w(B_re),
            "B_im": _w(B_im),
            "C_re": _w(C_re),
            "C_im": _w(C_im),
            "log_dt": _w(log_dt),
            "Dskip": _w(Dskip),
        }
    _A_in = _A_setup()

    def _B_setup():
        B, S, D, F, C = 1, 2048, 512, 1792, 1
        return {
            "x": _w((lambda *s: torch.randn(*s, dtype=torch.bfloat16) * 0.05)(B, S, D)),
            "w_r": _w((lambda *s: torch.randn(*s, dtype=torch.bfloat16) * 0.05)(D)),
            "w_gate": _w((lambda *s: torch.randn(*s, dtype=torch.bfloat16) * 0.05)(D, F)),
            "w_up": _w((lambda *s: torch.randn(*s, dtype=torch.bfloat16) * 0.05)(D, F)),
            "w_down": _w((lambda *s: torch.randn(*s, dtype=torch.bfloat16) * 0.05)(F, D)),
        }
    _B_in = _B_setup()

    return {
        "A_u": _A_in["u"],
        "A_A_re": _A_in["A_re"],
        "A_A_im": _A_in["A_im"],
        "A_B_re": _A_in["B_re"],
        "A_B_im": _A_in["B_im"],
        "A_C_re": _A_in["C_re"],
        "A_C_im": _A_in["C_im"],
        "A_log_dt": _A_in["log_dt"],
        "A_Dskip": _A_in["Dskip"],
        "B_x": _B_in["x"],
        "B_w_r": _B_in["w_r"],
        "B_w_gate": _B_in["w_gate"],
        "B_w_up": _B_in["w_up"],
        "B_w_down": _B_in["w_down"],
    }

def reference(A_u, A_A_re, A_A_im, A_B_re, A_B_im, A_C_re, A_C_im, A_log_dt, A_Dskip, B_x, B_w_r, B_w_gate, B_w_up, B_w_down):
    def _A_ref(u, A_re, A_im, B_re, B_im, C_re, C_im, log_dt, Dskip):
        Bsz, L, D = u.shape
        dt = torch.exp(log_dt)[:, None]
        A = A_re + 1j * A_im
        Bc = B_re + 1j * B_im
        Cc = C_re + 1j * C_im
        logdA = dt * A
        dB = dt * Bc
        l = (lambda x, dt: x.to(dt))(torch.arange(L), A_re.dtype)
        P = torch.exp(logdA[:, :, None] * l[None, None, :])
        K = torch.einsum("dn,dnl,dn->dl", Cc, P, dB).real
        L2 = 2 * L
        Kp = _pad(K, ((0, 0), (0, L)))
        up = (lambda x, *d: x.permute(*d))(u, 0, 2, 1)
        up = _pad(up, ((0, 0), (0, 0), (0, L)))
        Kf = (lambda x, axes=(-2,-1): torch.fft.rfft2(x.float(), dim=axes))(Kp[:, None, :], axes=(-2, -1))
        Uf = (lambda x, axes=(-2,-1): torch.fft.rfft2(x.float(), dim=axes))(up[:, :, None, :], axes=(-2, -1))
        Yf = Uf * Kf[None, :, :, :]
        y = (lambda x, s, axes=(-2,-1): torch.fft.irfft2(x, s=s, dim=axes).to(torch.bfloat16))(Yf, (1, L2), axes=(-2, -1))[:, :, 0, :L]
        y = (lambda x, *d: x.permute(*d))(y, 0, 2, 1) + u * Dskip[None, None, :]
        return y

    def _B_ref(x, w_r, w_gate, w_up, w_down):
        B, S, D = x.shape
        C = 1
        r = x @ w_r
        idx = torch.argsort(-r, axis=-1)[:, :C]
        idx_e = (lambda x, n, axis: torch.repeat_interleave(x, n, dim=axis))(idx.reshape(B, C, 1), D, axis=2)
        x_sel = (lambda x, i, axis: torch.take_along_dim(x, i, dim=axis))(x, idx_e, axis=1)
        g = _silu(x_sel @ w_gate)
        u = x_sel @ w_up
        y = (g * u) @ w_down
        r_sel = _sigmoid((lambda x, i, axis: torch.take_along_dim(x, i, dim=axis))(r, idx, axis=1))
        y = y * r_sel.reshape(B, C, 1)
        b_off = (torch.arange(B) * S).reshape(B, 1)
        flat_idx = (idx + b_off).reshape(B * C)
        zero = (x * 0.0).reshape(B * S, D)
        upd = _scatter_add(zero, flat_idx, y.reshape(B * C, D), axis=0)
        return x + upd.reshape(B, S, D)

    x = A_u
    xn = _layernorm(x, axis=-1)
    return x + _A_ref(xn, A_A_re, A_A_im, A_B_re, A_B_im, A_C_re, A_C_im, A_log_dt, A_Dskip) + _B_ref(xn, B_w_r, B_w_gate, B_w_up, B_w_down)
```

```python
import re

TRANS = ('v_exp_f32', 'v_log_f32', 'v_rcp_f32', 'v_rsq_f32', 'v_sqrt_f32', 'v_sin_f32', 'v_cos_f32')

REG_RE = re.compile(r'^(-|abs\()?\|?([vas])(\d+)\|?\)?$')
RNG_RE = re.compile(r'^(-|abs\()?\|?([vas])\[(\d+):(\d+)\]\|?\)?$')


def regs_of(op):
    op = op.strip()
    m = REG_RE.match(op)
    if m:
        return [(m.group(2), int(m.group(3)))]
    m = RNG_RE.match(op)
    if m:
        return [(m.group(2), i) for i in range(int(m.group(3)), int(m.group(4)) + 1)]
    if op == 'vcc':
        return [('s', 106), ('s', 107)]
    if op == 'vcc_lo':
        return [('s', 106)]
    if op == 'vcc_hi':
        return [('s', 107)]
    if op == 'exec':
        return [('s', 126), ('s', 127)]
    if op == 'exec_lo':
        return [('s', 126)]
    if op == 'exec_hi':
        return [('s', 127)]
    if op == 'm0':
        return [('s', 124)]
    return []


def split_ops(s):
    out, depth, cur = [], 0, ''
    for ch in s:
        if ch in '[(':
            depth += 1
        if ch in '])':
            depth -= 1
        if ch == ',' and depth == 0:
            out.append(cur.strip())
            cur = ''
        else:
            cur += ch
    if cur.strip():
        out.append(cur.strip())
    return out


class Ins:
    def __init__(self, text):
        self.text = text
        t = text.split(';')[0].strip()
        self.label = None
        self.mn = None
        self.defs = []
        self.uses = []
        self.kind = None
        self.srcC = []
        self.srcAB = []
        self.stdata = []
        self.lanesel = []
        if not t or t.startswith('.'):
            self.kind = 'dir'
            return
        if t.endswith(':'):
            self.label = t[:-1]
            self.kind = 'label'
            return
        parts = t.split(None, 1)
        mn = parts[0]
        self.mn = mn
        rest = parts[1] if len(parts) > 1 else ''
        ops = split_ops(rest)
        mods = ''
        if ops:
            last = ops[-1].split(None, 1)
            if len(last) > 1 and not last[0].endswith(':'):
                ops[-1] = last[0]
                mods = last[1]
        self.ops = ops
        self.mods = mods
        R = [regs_of(o) for o in ops]
        flat = lambda L: [r for x in L for r in x]
        self.dpp = ('_dpp' in mn) or ('row_' in mods) or ('quad_perm' in mods) or ('wave_' in mods)
        if mn.startswith('v_mfma'):
            self.kind = 'mfma'
            self.defs = R[0]
            self.srcAB = R[1] + R[2]
            self.srcC = R[3]
            self.uses = self.srcAB + self.srcC
            self.passes = 8 if '32x32x16' in mn else 4
            assert '32x32x16' in mn or '16x16x32' in mn
        elif mn.startswith('v_'):
            self.kind = 'valu'
            base = mn.replace('_e32', '').replace('_e64', '').replace('_dpp', '').replace('_sdwa', '')
            self.base = base
            self.trans = base in TRANS
            self.dot = base.startswith('v_dot')
            self.perml = base.startswith('v_permlane')
            if base.startswith('v_cmp'):
                self.defs = R[0]
                self.uses = flat(R[1:])
            elif base in ('v_readlane_b32', 'v_readfirstlane_b32'):
                self.defs = R[0]
                self.uses = flat(R[1:])
                if base == 'v_readlane_b32':
                    self.lanesel = R[2]
            elif base == 'v_writelane_b32':
                self.defs = R[0]
                self.uses = flat(R[1:]) + R[0]
                self.lanesel = R[2]
            elif base in ('v_add_co_u32', 'v_sub_co_u32', 'v_addc_co_u32', 'v_subb_co_u32'):
                self.defs = R[0] + R[1]
                self.uses = flat(R[2:])
            elif self.perml:
                self.defs = R[0] + R[1]
                self.uses = R[0] + R[1]
            else:
                self.defs = R[0]
                self.uses = flat(R[1:])
                if base in ('v_fmac_f32', 'v_dot2c_f32_bf16', 'v_pk_fmac_f16') or self.dpp:
                    self.uses = self.uses + R[0]
                if base == 'v_cndmask_b32' and len(ops) == 3:
                    self.uses += regs_of('vcc')
        elif mn.startswith('ds_'):
            self.kind = 'ds'
            if mn.startswith('ds_read') or '_rtn' in mn or mn.startswith('ds_bpermute') or mn.startswith('ds_swizzle'):
                self.defs = R[0]
                self.uses = flat(R[1:])
            else:
                self.uses = flat(R)
        elif mn.startswith('buffer_') or mn.startswith('global_'):
            self.kind = 'vmem'
            lds = ('lds' in mods.split()) or ('_lds_' in mn)
            self.ldsdma = lds
            if 'load' in mn and not lds:
                self.defs = R[0]
                self.uses = flat(R[1:])
                if 'd16' in mn:
                    self.uses += R[0]
            elif 'store' in mn:
                self.uses = flat(R)
                if 'x4' in mn or 'x3' in mn:
                    self.stdata = R[0] if mn.startswith('buffer_') else R[1]
            else:
                self.uses = flat(R)
            if lds:
                self.uses += regs_of('m0')
        elif mn.startswith('s_'):
            if mn.startswith('s_load') or mn.startswith('s_memrealtime') or mn.startswith('s_memtime'):
                self.kind = 'smem'
                self.defs = R[0]
                self.uses = flat(R[1:])
            elif mn in ('s_nop',):
                self.kind = 'nop'
                self.n = int(ops[0], 0) + 1
            elif mn.startswith('s_cbranch') or mn == 's_branch':
                self.kind = 'branch'
                self.target = ops[0]
            elif mn in ('s_waitcnt', 's_barrier', 's_sleep', 's_setprio', 's_endpgm'):
                self.kind = 'salu'
            elif mn.startswith('s_cmp') or mn.startswith('s_bitcmp'):
                self.kind = 'salu'
                self.uses = flat(R)
            else:
                self.kind = 'salu'
                self.defs = R[0] if R else []
                self.uses = flat(R[1:])
                if 'saveexec' in mn:
                    self.defs = self.defs + regs_of('exec')
        else:
            raise ValueError('unknown instruction: ' + text)

    def states(self):
        if self.kind in ('dir', 'label'):
            return 0
        if self.kind == 'nop':
            return self.n
        return 1


def overlap(a, b):
    return bool(set(a) & set(b))


def vregs(L):
    return [r for r in L if r[0] in 'va']


def sregs(L):
    return [r for r in L if r[0] == 's']


def need(p, c):
    n = 0
    if p.kind == 'valu':
        pv, ps = vregs(p.defs), sregs(p.defs)
        if ps:
            if c.kind == 'valu':
                if overlap(ps, c.lanesel):
                    n = max(n, 4)
                if overlap(ps, sregs(c.uses)):
                    n = max(n, 2)
            if c.kind == 'mfma' and overlap(ps, sregs(c.uses)):
                n = max(n, 2)
            if c.kind == 'vmem' and overlap(ps, sregs(c.uses)):
                n = max(n, 5)
        if pv:
            if c.kind == 'valu':
                if c.dpp and overlap(pv, c.uses):
                    n = max(n, 2)
                if c.perml and overlap(pv, c.uses):
                    n = max(n, 2)
                if c.base in ('v_readlane_b32', 'v_readfirstlane_b32') and overlap(pv, c.uses):
                    n = max(n, 1)
                if p.trans and overlap(pv, c.uses):
                    n = max(n, 1)
                if 'sdwa' in p.mn and 'dst_sel:DWORD' not in p.mods and overlap(pv, c.uses + c.defs):
                    n = max(n, 1)
                if p.dot and overlap(pv, c.uses + c.defs):
                    same = (c.base == p.base)
                    if same and not overlap(pv, [r for o in c.ops[1:3] for r in regs_of(o)]):
                        pass
                    else:
                        n = max(n, 3)
            if c.kind == 'mfma' and overlap(pv, c.uses):
                n = max(n, 3 if p.dot else 2)
            if c.kind in ('vmem', 'ds') and p.dot and overlap(pv, c.uses):
                n = max(n, 3)
            if c.kind in ('vmem', 'ds') and p.trans and overlap(pv, c.uses):
                n = max(n, 1)
    if p.kind == 'vmem' and p.stdata:
        if c.kind in ('valu', 'mfma') and overlap(p.stdata, c.defs):
            n = max(n, 2)
        elif c.kind in ('vmem', 'ds') and overlap(p.stdata, c.defs):
            n = max(n, 1)
    if p.kind == 'salu' and overlap(p.defs, regs_of('m0')):
        if c.kind == 'vmem' and c.ldsdma:
            n = max(n, 1)
    if p.kind == 'mfma':
        D = p.defs
        t = {4: (6, 8, 3), 8: (10, 12, 7)}[p.passes]
        if c.kind == 'mfma':
            if overlap(D, c.srcAB):
                n = max(n, t[1])
            if overlap(D, c.srcC):
                if not (c.srcC == D and c.passes == p.passes):
                    n = max(n, t[0])
            elif overlap(D, c.defs):
                n = max(n, t[0])
        elif c.kind in ('valu', 'vmem', 'ds'):
            if overlap(D, c.uses + c.defs):
                n = max(n, t[1])
            if c.kind == 'valu' and overlap(p.srcC, c.defs):
                n = max(n, t[2])
    return n


WINDOW = 14


def required_pad(prev, c):
    dist = 0
    pad = 0
    for p in reversed(prev):
        if dist >= WINDOW:
            break
        if p.kind in ('dir', 'label'):
            continue
        k = need(p, c)
        if k - dist > pad:
            pad = k - dist
        dist += p.states()
    return pad


class Asm:
    def __init__(self):
        self.lines = []

    def __call__(self, text=''):
        for ln in text.split('\n'):
            ln = ln.strip()
            if ln:
                self.lines.append(ln)

    def label(self, name):
        self.lines.append(name + ':')

    def finalize(self):
        ins = [Ins(l) if not l.startswith(';') else None for l in self.lines]
        out = []
        seq = []
        for l, i in zip(self.lines, ins):
            if i is None:
                out.append(Ins('.cmt'))
                out[-1].text = l
                continue
            if i.kind not in ('dir', 'label'):
                pad = required_pad(seq, i)
                if pad > 0:
                    nop = Ins('s_nop %d' % (pad - 1))
                    out.append(nop)
                    seq.append(nop)
            out.append(i)
            seq.append(i)
            if i.kind == 'branch' and i.mn == 's_branch' or i.mn == 's_endpgm':
                seq = []
            if len(seq) > 64:
                seq = seq[-40:]
        changed = True
        while changed:
            changed = False
            labels = {x.label: k for k, x in enumerate(out) if x.kind == 'label'}
            for k, x in enumerate(out):
                if x.kind != 'branch':
                    continue
                pre = []
                j = k
                while j >= 0 and len(pre) < 30:
                    y = out[j]
                    if j != k and ((y.kind == 'branch' and y.mn == 's_branch') or y.mn == 's_endpgm'):
                        break
                    pre.insert(0, y)
                    j -= 1
                t = labels[x.target]
                seq = list(pre)
                dist = 0
                worst = 0
                j = t
                while j < len(out) and dist < WINDOW:
                    y = out[j]
                    if y.kind not in ('dir', 'label'):
                        d = dist
                        for p in reversed(pre):
                            if p.kind in ('dir', 'label'):
                                continue
                            kk = need(p, y)
                            if kk - d > worst:
                                worst = kk - d
                            d += p.states()
                            if d >= WINDOW:
                                break
                        dist += y.states()
                        if (y.kind == 'branch' and y.mn == 's_branch') or y.mn == 's_endpgm':
                            break
                    j += 1
                if worst > 0:
                    out.insert(k, Ins('s_nop %d' % (worst - 1)))
                    changed = True
                    break
        res = []
        for x in out:
            if x.kind == 'label':
                res.append(x.text)
            else:
                res.append('    ' + x.text)
        return '\n'.join(res) + '\n'
```

```python
import sys, struct, math
from asmlib import Asm

NAME = 'parallel_sum__ssm_conv_s4__moe_arch_mod__prompt_kernel'
DEBUG = '--debug' in sys.argv
OUT = [a for a in sys.argv[1:] if not a.startswith('--')]
OUT = OUT[0] if OUT else 'parallel_sum__ssm_conv_s4__moe_arch_mod__prompt.s'


def opt(name, default):
    for a in sys.argv:
        if a.startswith('--' + name + '='):
            return int(a.split('=')[1], 0)
    return default


def f32(x):
    return '0x%08x' % struct.unpack('<I', struct.pack('<f', x))[0]


WS_STATS = 4096
WS_KEYS = 16384
WS_HOPA = 32768
WS_HOPB = 262144
WS_DBG = 1 << 20
KTS = 528
KT = [0, 64 * KTS]
KCS = 4160
KC = [2 * 64 * KTS, 2 * 64 * KTS + 4 * KCS]
UB = [KC[1] + 4 * KCS, KC[1] + 4 * KCS + 4608]
YB = [UB[1] + 4608, UB[1] + 4608 + 4096]
XC = YB[1] + 4096
MISC = XC + 8192
STG = MISC
STATUS = MISC + 64
IDXW = MISC + 68
T1X = MISC + 72
HS = MISC + 128
LDS_BYTES = MISC + 256
B_U, B_KC, B_X, B_Y, B_IDX, B_T1, B_KT = 0, 4, 8, 12, 20, 21, 22

POLL_MAX = 1 << 16
LOG2E = 1.4426950408889634
LOG2E_HI = struct.unpack('<f', struct.pack('<f', LOG2E))[0]
LOG2E_LO = LOG2E - LOG2E_HI

a = Asm()
uid = [0]


def L(p):
    uid[0] += 1
    return 'L_%s_%d' % (p, uid[0])


def stamp(n):
    if DEBUG:
        a('s_memrealtime s[%d:%d]' % (64 + 2 * n, 65 + 2 * n))


NSTAMP = 12


def finish():
    if DEBUG:
        stamp(NSTAMP - 1)
        a('s_waitcnt lgkmcnt(0)')
        a('s_mov_b64 exec, 1')
        a('s_mul_i32 s7, s2, 10')
        a('s_add_u32 s7, s7, s4')
        a('s_lshl_b32 s7, s7, 6')
        a('s_add_u32 s7, s7, %d' % WS_DBG)
        a('v_mov_b32 v2, s7')
        for n in range(NSTAMP):
            a('v_mov_b32 v3, s%d' % (64 + 2 * n))
            a('global_store_dword v2, v3, s[40:41] offset:%d' % (4 * n))
    a('s_endpgm')


def wait_status(need, vaddr, vtmp, sleep=0):
    l = L('ws')
    a.label(l)
    if sleep:
        a('s_sleep %d' % sleep)
    a('ds_read_b32 %s, %s' % (vtmp, vaddr))
    a('s_sub_u32 s88, s88, 1')
    a('s_cbranch_scc1 L_exit')
    a('s_waitcnt lgkmcnt(0)')
    a('v_readfirstlane_b32 s7, %s' % vtmp)
    a('s_and_b32 s7, s7, %s' % need)
    a('s_cmp_eq_u32 s7, %s' % need)
    a('s_cbranch_scc0 %s' % l)


def set_status(bits, vaddr, vtmp):
    a('s_mov_b64 exec, 1')
    a('v_mov_b32 %s, %s' % (vtmp, bits))
    a('ds_or_b32 %s, %s' % (vaddr, vtmp))
    a('s_mov_b64 exec, -1')


def reduce64(op, regs):
    for step in ('row_shr:1 row_mask:0xf', 'row_shr:2 row_mask:0xf', 'row_shr:4 row_mask:0xf', 'row_shr:8 row_mask:0xf',
                 'row_bcast:15 row_mask:0xa', 'row_bcast:31 row_mask:0xc'):
        for r in regs:
            a('%s_dpp %s, %s, %s %s bank_mask:0xf' % (op, r, r, r, step))


def P(n):
    return 'v[%d:%d]' % (n, n + 1)


def Q(n):
    return 'v[%d:%d]' % (n, n + 3)


def cmul(d, z, w, t):
    a('v_pk_mul_f32 %s, %s, %s op_sel:[0,0] op_sel_hi:[0,1]' % (P(t), P(z), P(w)))
    a('v_pk_fma_f32 %s, %s, %s, %s op_sel:[1,1,0] op_sel_hi:[1,0,1] neg_lo:[1,0,0]' % (P(d), P(z), P(w), P(t)))


def cmul_multi(jobs):
    for d, z, w, t in jobs:
        a('v_pk_mul_f32 %s, %s, %s op_sel:[0,0] op_sel_hi:[0,1]' % (P(t), P(z), P(w)))
    for d, z, w, t in jobs:
        a('v_pk_fma_f32 %s, %s, %s, %s op_sel:[1,1,0] op_sel_hi:[1,0,1] neg_lo:[1,0,0]' % (P(d), P(z), P(w), P(t)))


def cexp_multi(jobs, al, be):
    for d, l, t in jobs:
        a('v_mul_f32 v%d, %s, v%d' % (t, f32(l), al))
        a('v_mul_f32 v%d, %s, v%d' % (t + 1, f32(l), be))
    for d, l, t in jobs:
        a('v_exp_f32 v%d, v%d' % (t, t))
        a('v_fract_f32 v%d, v%d' % (t + 1, t + 1))
    for d, l, t in jobs:
        a('v_cos_f32 v%d, v%d' % (d, t + 1))
        a('v_sin_f32 v%d, v%d' % (d + 1, t + 1))
    for d, l, t in jobs:
        a('v_pk_mul_f32 %s, %s, %s op_sel:[0,0] op_sel_hi:[1,0]' % (P(d), P(d), P(t)))


a.label(NAME)
a('s_cmp_ge_u32 s2, 256')
a('s_cbranch_scc1 L_exit')
a('s_load_dwordx16 s[8:23], s[0:1], 0')
a('s_load_dwordx16 s[24:39], s[0:1], 64')
a('s_load_dwordx2 s[40:41], s[0:1], 128')
stamp(0)
a('v_lshrrev_b32 v2, 6, v0')
a('v_and_b32 v1, 63, v0')
a('s_mov_b32 s88, 0x400000')
a('v_readfirstlane_b32 s4, v2')
a('s_and_b32 s3, s2, 7')
a('s_lshl_b32 s3, s3, 5')
a('s_lshr_b32 s7, s2, 3')
a('s_add_u32 s3, s3, s7')
a('s_cmp_ge_u32 s4, 8')
a('s_cbranch_scc1 L_special')

a('s_lshl_b32 s42, s3, 3')
a('s_add_u32 s42, s42, s4')
a('s_lshl_b32 s7, s42, 10')
a('v_lshlrev_b32 v17, 4, v1')
a('v_add_u32 v18, s7, v17')
a('s_and_b32 s43, s4, 1')
a('s_lshl_b32 s7, s3, 1')
a('s_add_u32 s7, s7, s43')
a('s_lshl_b32 s7, s7, 8')
a('s_bfe_u32 s50, s4, 0x10001')
a('s_lshl_b32 s51, s50, 7')
a('s_add_u32 s7, s7, s51')
a('v_lshl_add_u32 v19, v1, 1, s7')
for r in range(10, 16):
    a('v_mov_b32 v%d, 0' % r)
a('s_lshl_b32 s7, s3, 2')
a('s_waitcnt lgkmcnt(0)')
a('global_load_dwordx4 v[2:5], v18, s[8:9]')
a('global_load_dwordx4 v[6:9], v17, s[28:29]')
a('s_load_dword s6, s[40:41], 0')
a('s_load_dword s48, s[22:23], s7')
a('s_load_dword s49, s[24:25], s7')
a('global_load_short_d16_hi v10, v19, s[10:11]')
a('global_load_short_d16_hi v11, v19, s[12:13]')
a('global_load_short_d16_hi v12, v19, s[14:15]')
a('global_load_short_d16_hi v13, v19, s[16:17]')
a('global_load_short_d16_hi v14, v19, s[18:19]')
a('global_load_short_d16_hi v15, v19, s[20:21]')
a('s_mov_b32 s52, 0xffff0000')
a('v_mov_b32 v160, %d' % STATUS)
a('s_mul_i32 s7, s43, %d' % KT[1])
a('s_lshl_b32 s51, s50, 8')
a('s_add_u32 s7, s7, s51')
a('v_lshl_add_u32 v62, v1, 2, s7')
a('s_waitcnt lgkmcnt(0)')
a('s_mul_i32 s5, s6, 0x9E3779B1')
a('s_add_u32 s5, s5, 0x7F4A7C15')
a('s_lshl_b32 s7, s48, 16')
a('s_and_b32 s51, s48, s52')
a('s_cmp_eq_u32 s43, 0')
a('s_cselect_b32 s7, s7, s51')
a('v_mov_b32 v20, s7')
a('v_mul_f32 v21, %s, v20' % f32(LOG2E_HI))
a('v_mov_b32 v22, %s' % f32(LOG2E_HI))
a('v_fma_f32 v22, v20, v22, -v21')
a('v_fmac_f32 v22, %s, v20' % f32(LOG2E_LO))
a('v_exp_f32 v21, v21')
a('v_mul_f32 v22, %s, v22' % f32(math.log(2.0)))
a('v_fmac_f32 v21, v21, v22')
a('v_cvt_pk_bf16_f32 v21, v21, v21')
a('v_and_b32 v16, s52, v21')
a('s_waitcnt vmcnt(7)')
stamp(1)
for k in range(4):
    a('v_lshlrev_b32 v%d, 16, v%d' % (20 + 2 * k, 2 + k))
    a('v_and_b32 v%d, s52, v%d' % (21 + 2 * k, 2 + k))
a('v_readfirstlane_b32 s44, v20')
for k in range(4):
    a('v_pk_add_f32 %s, %s, s[44:45] op_sel_hi:[1,0] neg_lo:[0,1] neg_hi:[0,1]' % (P(28 + 2 * k), P(20 + 2 * k)))
a('v_pk_add_f32 v[36:37], v[28:29], v[30:31]')
a('v_pk_mul_f32 v[40:41], v[28:29], v[28:29]')
a('v_pk_add_f32 v[38:39], v[32:33], v[34:35]')
a('v_pk_fma_f32 v[40:41], v[30:31], v[30:31], v[40:41]')
a('v_pk_add_f32 v[36:37], v[36:37], v[38:39]')
a('v_pk_fma_f32 v[40:41], v[32:33], v[32:33], v[40:41]')
a('v_add_f32 v36, v36, v37')
a('v_pk_fma_f32 v[40:41], v[34:35], v[34:35], v[40:41]')
a('v_add_f32 v40, v40, v41')
reduce64('v_add_f32', ['v36', 'v40'])
a('v_readlane_b32 s46, v36, 63')
a('v_readlane_b32 s47, v40, 63')
a('v_mov_b32 v37, %s' % f32(1.0 / 512))
a('v_mul_f32 v36, s46, v37')
a('v_mul_f32 v40, s47, v37')
a('v_fma_f32 v40, -v36, v36, v40')
a('v_add_f32 v36, s44, v36')
a('v_max_f32 v40, 0, v40')
a('v_cvt_pk_bf16_f32 v41, v36, v40')
a('v_and_b32 v40, s52, v41')
a('v_lshlrev_b32 v36, 16, v41')
a('v_add_f32 v40, %s, v40' % f32(1e-5))
a('v_cvt_pk_bf16_f32 v40, v40, v40')
a('v_and_b32 v40, s52, v40')
a('v_sqrt_f32 v40, v40')
for k in range(4):
    a('v_pk_add_f32 %s, %s, v[36:37] op_sel_hi:[1,0] neg_lo:[0,1] neg_hi:[0,1]' % (P(28 + 2 * k), P(20 + 2 * k)))
a('v_cvt_pk_bf16_f32 v40, v40, v40')
a('v_and_b32 v40, s52, v40')
a('v_rcp_f32 v38, v40')
a('v_bfi_b32 v42, s52, v40, v41')
for k in range(4):
    a('v_cvt_pk_bf16_f32 v%d, v%d, v%d' % (20 + k, 28 + 2 * k, 29 + 2 * k))
for k in range(4):
    a('v_lshlrev_b32 v%d, 16, v%d' % (28 + 2 * k, 20 + k))
    a('v_and_b32 v%d, s52, v%d' % (29 + 2 * k, 20 + k))
for k in range(4):
    a('v_pk_mul_f32 %s, %s, v[38:39] op_sel_hi:[1,0]' % (P(28 + 2 * k), P(28 + 2 * k)))
for k in range(4):
    a('v_cvt_pk_bf16_f32 v%d, v%d, v%d' % (20 + k, 28 + 2 * k, 29 + 2 * k))
a('s_waitcnt vmcnt(6)')
a('v_mov_b32 v36, 0')
a('v_mov_b32 v37, 0')
a('v_dot2_f32_bf16 v36, v20, v6, v36')
a('v_dot2_f32_bf16 v37, v21, v7, v37')
a('v_dot2_f32_bf16 v36, v22, v8, v36')
a('v_dot2_f32_bf16 v37, v23, v9, v37')
a('v_add_f32 v36, v36, v37')
reduce64('v_add_f32', ['v36'])
a('v_readlane_b32 s46, v36, 63')
a('s_sub_u32 s47, 2047, s42')
a('v_cvt_pk_bf16_f32 v36, s46, s46')
a('v_ashrrev_i32 v37, 31, v36')
a('v_or_b32 v37, 0x80000000, v37')
a('v_xor_b32 v36, v36, v37')
a('v_mov_b32 v37, s47')
a('v_bfi_b32 v43, s52, v36, v37')
a('s_lshl_b32 s7, s4, 2')
a('s_add_u32 s7, s7, %d' % STG)
a('v_mov_b32 v36, s7')
a('s_mov_b64 exec, 1')
a('ds_write2_b32 v36, v42, v43 offset0:0 offset1:8')
a('s_mov_b64 exec, -1')
a('s_waitcnt lgkmcnt(0)')
stamp(2)
a('s_barrier')
a('s_waitcnt vmcnt(0)')
a('v_mul_f32 v10, v16, v10')
a('v_mul_f32 v11, v16, v11')
a('v_mul_f32 v10, %s, v10' % f32(LOG2E))
a('v_mul_f32 v11, %s, v11' % f32(1.0 / (2 * math.pi)))
a('s_cmp_ge_u32 s4, 4')
a('s_cbranch_scc1 L_io')


def kt_write(row, pair, tmp, neg):
    a('v_cvt_pk_bf16_f32 v%d, v%d, %sv%d' % (tmp, pair, '-' if neg else '', pair + 1))
    a('ds_write_b32 v62, v%d offset:%d' % (tmp, row * KTS))


W1, W2, W4, W8, G, C0 = 20, 22, 24, 26, 28, 30
cexp_multi([(W1, 1.0, 40), (G, 256.0, 42), (W8, 8.0, 44)], 10, 11)
a('v_pk_mul_f32 v[12:13], v[12:13], v[16:17] op_sel_hi:[1,0]')
cmul_multi([(C0, 14, 12, 40), (W2, W1, W1, 42)])
E0, O0, H = 32, 34, 36
T = [40, 42, 44, 46, 48]
cmul_multi([(O0, C0, W1, T[0]), (H, C0, G, T[1]), (W4, W2, W2, T[2])])
kt_write(0, C0, 50, True)
kt_write(1, O0, 51, True)
kt_write(13, H, 52, True)
Z1 = 38
Hs = {1: H}
Hn = [54, 56, 58, 60, 52 + 12, 66]
cur_e, cur_o, cur_b = C0, O0, H
step_regs = [(E0, O0, Z1)]
hprev = H
for n in range(5):
    jobs = [(E0, cur_e, W2, T[0]), (Z1, cur_b, W2, T[2]), (Hn[n], hprev, G, T[3])]
    if n < 4:
        jobs.insert(1, (O0, cur_o, W2, T[1]))
    cmul_multi(jobs)
    cur_e, cur_b, hprev = E0, Z1, Hn[n]
    kt_write(2 * n + 2, E0, 50, True)
    if n < 4:
        kt_write(2 * n + 3, O0, 51, True)
    kt_write(14 + n, Z1, 52, True)
    kt_write({0: 21, 1: 26, 2: 11, 3: 19, 4: 24}[n], Hn[n], 53, True)
H2, H3, H4, H5, H6, H7 = Hn
cmul_multi([(H7, H6, G, T[0]), (E0, H2, W4, T[1]), (O0, H3, W4, T[2]), (H2, H2, W8, T[3]), (H3, H3, W8, T[4])])
kt_write(29, H7, 50, True)
kt_write(22, E0, 51, True)
kt_write(27, O0, 52, True)
kt_write(23, H2, 53, True)
kt_write(28, H3, 50, True)
cmul_multi([(H4, H4, W8, T[0]), (H5, H5, W8, T[1]), (H6, H6, W8, T[2]), (H7, H7, W8, T[3])])
kt_write(12, H4, 50, True)
kt_write(20, H5, 51, True)
kt_write(25, H6, 52, True)
kt_write(30, H7, 53, True)
a('s_lshl_b32 s51, %d, s4' % (1 << B_KT))
set_status('s51', 'v160', 'v50')
stamp(3)
tabA0 = [min(r, 12) for r in range(16)]
tabA1 = [0, 0, 1, 2, 2, 2, 3, 4, 4, 4, 5, 6, 7, 7, 7, 7]
tabB = [min(r, 4) for r in range(16)]


def nib64(t):
    v = sum(x << (4 * i) for i, x in enumerate(t))
    return v & 0xffffffff, v >> 32


a('s_cmp_eq_u32 s50, 0')
for (sreg, ta, tb) in ((54, tabA0, tabB), (56, tabA1, tabB)):
    la, ha = nib64(ta)
    lb, hb = nib64(tb)
    a('s_mov_b32 s%d, 0x%x' % (sreg, lb))
    a('s_mov_b32 s%d, 0x%x' % (sreg + 1, hb))
    a('s_cmov_b32 s%d, 0x%x' % (sreg, la))
    a('s_cmov_b32 s%d, 0x%x' % (sreg + 1, ha))
a('s_cselect_b32 s58, 0, 21')
a('s_cselect_b32 s59, 13, 26')
a('v_and_b32 v20, 31, v1')
a('v_and_b32 v21, 4, v20')
a('v_cmp_ne_u32 vcc, 0, v21')
a('v_and_b32 v21, 3, v20')
a('v_lshrrev_b32 v22, 3, v20')
a('v_lshl_add_u32 v21, v22, 2, v21')
a('v_lshlrev_b32 v21, 2, v21')
a('v_mov_b32 v22, s54')
a('v_mov_b32 v23, s55')
a('v_mov_b32 v24, s56')
a('v_mov_b32 v25, s57')
a('v_mov_b32 v26, s58')
a('v_mov_b32 v27, s59')
a('v_cndmask_b32 v22, v22, v24, vcc')
a('v_cndmask_b32 v23, v23, v25, vcc')
a('v_cndmask_b32 v26, v26, v27, vcc')
a('v_lshrrev_b64 v[22:23], v21, v[22:23]')
a('v_and_b32 v22, 15, v22')
a('v_add_u32 v22, v22, v26')
a('s_mul_i32 s7, s43, %d' % KT[1])
a('v_lshrrev_b32 v23, 5, v1')
a('v_lshl_add_u32 v23, v23, 4, s7')
a('s_movk_i32 s51, %d' % KTS)
a('v_mad_u32_u24 v30, v22, s51, v23')
a('v_mad_u32_u24 v31, v20, s51, v23')
a('v_and_b32 v20, 15, v1')
a('v_lshrrev_b32 v21, 4, v1')
a('v_add_u32 v22, 1, v20')
a('v_and_b32 v23, 3, v22')
a('v_lshrrev_b32 v22, 2, v22')
a('s_mul_i32 s7, s43, %d' % (KC[1] - KC[0]))
a('s_add_u32 s7, s7, %d' % KC[0])
a('s_movk_i32 s51, %d' % KCS)
a('v_mov_b32 v35, s7')
a('v_mad_u32_u24 v35, v23, s51, v35')
a('v_lshl_add_u32 v35, v22, 3, v35')
a('v_lshl_add_u32 v35, v21, 4, v35')
a('s_mul_i32 s51, s43, %d' % (UB[1] - UB[0]))
a('s_add_u32 s51, s51, %d' % (UB[0] + 16 * 33 - 1216))
a('v_lshlrev_b32 v22, 1, v20')
a('v_sub_u32 v22, v22, v21')
a('v_lshl_add_u32 v36, v22, 4, s51')
a('s_mul_i32 s51, s43, %d' % (YB[1] - YB[0]))
a('s_add_u32 s51, s51, %d' % YB[0])
a('v_lshl_add_u32 v37, v20, 5, s51')
a('v_lshl_add_u32 v37, v21, 3, v37')
a('s_lshl_b32 s51, s50, 10')
a('s_add_u32 s7, s7, s51')
a('s_add_u32 s7, s7, 32')
a('v_lshl_add_u32 v38, v1, 4, s7')
a('s_lshl_b32 s51, %d, s43' % (0x55 << B_KT))
wait_status('s51', 'v160', 'v20')
stamp(4)
KA = [80, 84, 88, 92]
KB = [96, 100, 104, 108]
for s in range(4):
    a('ds_read_b128 %s, v30 offset:%d' % (Q(KA[s]), 32 * s))
    a('ds_read_b128 %s, v31 offset:%d' % (Q(KB[s]), 32 * KTS + 32 * s))
for s in range(16):
    a('s_waitcnt lgkmcnt(%d)' % min(6, 2 * (15 - s)))
    a('v_mfma_f32_32x32x16_bf16 v[64:79], %s, %s, %s' % (Q(KA[s % 4]), Q(KB[s % 4]), '0' if s == 0 else 'v[64:79]'))
    if s + 4 < 16:
        a('ds_read_b128 %s, v30 offset:%d' % (Q(KA[s % 4]), 32 * (s + 4)))
        a('ds_read_b128 %s, v31 offset:%d' % (Q(KB[s % 4]), 32 * KTS + 32 * (s + 4)))
a('s_mov_b32 s54, 0x80000000')
a('s_mov_b32 s55, 0x80000000')
a('s_mov_b32 s56, 0')
a('s_mov_b32 s57, 0x80000000')
a('s_mov_b32 s58, 0xaaaaaaaa')
a('s_mov_b32 s59, 0xaaaaaaaa')
a('s_cmp_eq_u32 s50, 0')
a('s_cbranch_scc0 L_kwin_b')


def write_window(seq, off):
    for s in range(4):
        base = 80 + 4 * s
        for k in range(4):
            a('v_cvt_pk_bf16_f32 v%d, v%d, v%d' % (base + k, seq[s + 2 * k], seq[s + 2 * k + 1]))
        a('ds_write_b128 v38, %s offset:%d' % (Q(base), off + s * KCS))


def seg3_window(y0, y1, z, off):
    a('v_cndmask_b32 v%d, v%d, v%d, s[58:59]' % (z, y0, y1))
    write_window([y0, y0, y0, y0, z] + [y1] * 6, off)


a('v_cndmask_b32 v73, v73, v72, s[54:55]')
a('v_cndmask_b32 v74, v74, v72, s[56:57]')
write_window(list(range(64, 75)), 0)
seg3_window(75, 76, 77, 4 * 512)
a('v_cvt_pk_bf16_f32 v96, 0, v64')
a('v_cvt_pk_bf16_f32 v97, v65, v66')
a('v_cvt_pk_bf16_f32 v98, v64, v65')
a('v_subrev_u32 v99, 16, v38')
a('s_mov_b64 exec, 1')
a('ds_write_b32 v99, v96 offset:%d' % (1 * KCS + 12))
a('ds_write_b32 v99, v98 offset:%d' % (2 * KCS + 12))
a('ds_write_b64 v99, v[96:97] offset:%d' % (3 * KCS + 8))
a('s_mov_b64 exec, -1')
a('s_branch L_kwin_done')
a.label('L_kwin_b')
write_window([64, 64, 64, 65, 65, 65, 66, 66, 66, 66, 66], 0)
seg3_window(67, 68, 77, 4 * 512)
a.label('L_kwin_done')
a('s_lshl_b32 s51, %d, s4' % (1 << B_KC))
set_status('s51', 'v160', 'v20')
stamp(5)
a('s_mov_b32 s53, s50')
AR = lambda e: 64 + 4 * (e % 16)
FR = lambda e: 48 + 4 * (e % 4)
ACC0, ACC1 = 40, 44


def conv_loads(e, rel):
    a('ds_read_b64 %s, v32 offset:%d' % (P(AR(e)), 64 * rel))
    a('ds_read_b64 %s, v32 offset:%d' % (P(AR(e) + 2), 64 * rel + 8))
    a('ds_read_b128 %s, v33 offset:%d' % (Q(FR(e)), 1216 - 64 * rel))


def conv_step(e, both, first=False):
    conv_loads(e + 3, e + 3)
    a('s_waitcnt lgkmcnt(9)')
    a('v_mfma_f32_16x16x32_bf16 %s, %s, %s, %s' % (Q(ACC1), Q(AR(e)), Q(FR(e)), '0' if first else Q(ACC1)))
    if both:
        a('v_mfma_f32_16x16x32_bf16 %s, %s, %s, %s' % (Q(ACC0), Q(AR(e - 8)), Q(FR(e)), Q(ACC0)))


a.label('L_pair')
a('s_lshl_b32 s51, %d, s43' % (0x5 << B_KC))
a('s_lshl_b32 s7, 2, s53')
a('s_sub_u32 s7, s7, 1')
a('s_or_b32 s51, s51, s7')
a('s_lshl_b32 s60, s53, 10')
a('s_add_u32 s61, s60, 512')
a('v_mov_b32 v32, v35')
a('v_add_u32 v33, s61, v36')
a('v_add_u32 v34, s60, v37')
for k in range(4):
    a('v_mov_b32 v%d, 0' % (ACC0 + k))
a('s_mov_b32 s61, s53')
wait_status('s51', 'v160', 'v20')
if DEBUG:
    l = L('st')
    a('s_cmp_ge_u32 s53, 2')
    a('s_cbranch_scc1 %s' % l)
    stamp(6)
    a.label(l)
for e in range(3):
    conv_loads(e, e)
for e in range(8):
    conv_step(e, False, first=(e == 0))
a.label('L_conv_loop')
for e in range(8, 16):
    conv_step(e, True)
a('s_cmp_eq_u32 s61, 0')
a('s_cbranch_scc1 L_conv_done')
a('s_sub_u32 s61, s61, 1')
a('v_add_u32 v32, 1024, v32')
a('v_subrev_u32 v33, 1024, v33')
for e in range(8):
    conv_step(e, True)
a('s_branch L_conv_loop')
a.label('L_conv_done')
a('v_cvt_pk_bf16_f32 v20, v%d, v%d' % (ACC0, ACC0 + 1))
a('v_cvt_pk_bf16_f32 v21, v%d, v%d' % (ACC0 + 2, ACC0 + 3))
a('v_cvt_pk_bf16_f32 v22, v%d, v%d' % (ACC1, ACC1 + 1))
a('v_cvt_pk_bf16_f32 v23, v%d, v%d' % (ACC1 + 2, ACC1 + 3))
a('ds_write_b64 v34, v[20:21]')
a('ds_write_b64 v34, v[22:23] offset:512')
a('s_lshl_b32 s7, s53, 1')
a('s_add_u32 s7, s7, s43')
a('s_lshl_b32 s51, %d, s7' % (1 << B_Y))
set_status('s51', 'v160', 'v24')
if DEBUG:
    l = L('st')
    a('s_cmp_ge_u32 s53, 2')
    a('s_cbranch_scc1 %s' % l)
    stamp(7)
    a.label(l)
a('s_add_u32 s53, s53, 2')
a('s_cmp_lt_u32 s53, 4')
a('s_cbranch_scc1 L_pair')
finish()

a.label('L_io')
W8 = 20
CH = [22, 24, 26, 28]
T = [40, 42, 44, 46]
cexp_multi([(W8, 8.0, 40), (CH[1], 64.0, 42), (CH[2], 128.0, 44), (CH[3], 192.0, 46)], 10, 11)
a('v_mov_b32 v50, 0x00003f80')
a('ds_write_b32 v62, v50 offset:%d' % (32 * KTS))
kt_write(33, W8, 51, False)
for q in range(1, 4):
    kt_write(32 + 8 * q, CH[q], 51 + q, False)
for n in range(1, 8):
    jobs = []
    if n >= 2:
        jobs.append((CH[0], W8 if n == 2 else CH[0], W8, T[0]))
    for q in range(1, 4):
        jobs.append((CH[q], CH[q], W8, T[q]))
    cmul_multi(jobs)
    for q in range(4):
        if q == 0 and n < 2:
            continue
        kt_write(32 + 8 * q + n, CH[q], 50 + q, False)
a('s_lshl_b32 s51, %d, s4' % (1 << B_KT))
set_status('s51', 'v160', 'v50')
stamp(3)
a('s_sub_u32 s53, s4, 4')
a('s_lshl_b32 s7, s53, 6')
a('v_add_u32 v2, s7, v1')
a('v_mul_u32_u24 v3, 48, v2')
a('v_add_u32 v3, %d, v3' % WS_STATS)
a('s_lshl_b32 s7, s53, 11')
a('s_add_u32 s7, s7, %d' % XC)
a('v_lshl_add_u32 v4, v1, 4, s7')
a('v_lshlrev_b32 v5, 4, v2')
a('v_add_u32 v5, %d, v5' % (UB[0] + 512))
a('s_lshl_b32 s7, s3, 2')
a('v_lshl_add_u32 v6, v2, 13, s7')
a('s_mov_b32 s44, s36')
a('s_mov_b32 s45, s37')
a('s_mov_b32 s46, 0x200000')
a('s_mov_b32 s47, 0x00020000')
a('s_lshl_b32 s54, s49, 16')
a('s_and_b32 s55, s49, s52')
a('s_mov_b32 s56, 0x05040100')
a('s_mov_b32 s57, 0x07060302')
a('s_lshl_b32 s58, %d, s53' % (1 << B_X))


def io_read_x():
    wait_status('s58', 'v160', 'v7')
    a('ds_read_b128 v[32:35], v4')
    a('ds_read_b128 v[36:39], v4 offset:1024')
    a('s_waitcnt lgkmcnt(0)')
    for i in range(8):
        a('v_lshlrev_b32 v%d, 16, v%d' % (40 + 2 * i, 32 + i))
        a('v_and_b32 v%d, s52, v%d' % (41 + 2 * i, 32 + i))


a('s_cmp_ge_u32 s53, 2')
a('s_cbranch_scc1 L_io_poll')
io_read_x()
a.label('L_io_poll')
stamp(4)
a('s_mov_b32 s59, 0')
a.label('L_io_poll_loop')
a('global_load_dwordx4 v[20:23], v3, s[40:41] sc1')
a('global_load_dwordx4 v[24:27], v3, s[40:41] offset:16 sc1')
a('global_load_dwordx4 v[28:31], v3, s[40:41] offset:32 sc1')
a('s_add_u32 s59, s59, 1')
a('s_waitcnt vmcnt(0)')
a('v_cmp_ne_u32 vcc, s5, v23')
a('v_cmp_ne_u32 s[60:61], s5, v27')
a('v_cmp_ne_u32 s[62:63], s5, v31')
a('s_or_b64 vcc, vcc, s[60:61]')
a('s_or_b64 vcc, vcc, s[62:63]')
a('s_and_b64 exec, exec, vcc')
a('s_cbranch_execz L_io_poll_done')
a('s_sleep 2')
a('s_cmp_lt_u32 s59, %d' % POLL_MAX)
a('s_cbranch_scc1 L_io_poll_loop')
a.label('L_io_poll_done')
a('s_mov_b64 exec, -1')
stamp(5)
a('s_cmp_ge_u32 s53, 2')
a('s_cbranch_scc0 L_io_norm')
io_read_x()
a.label('L_io_norm')
MS = [20, 21, 22, 24, 25, 26, 28, 29]
for i in range(8):
    a('v_and_b32 v%d, s52, v%d' % (81 + 2 * i, MS[i]))
    a('v_lshlrev_b32 v%d, 16, v%d' % (80 + 2 * i, MS[i]))
for i in range(8):
    a('v_rcp_f32 v%d, v%d' % (81 + 2 * i, 81 + 2 * i))
    a('v_pk_add_f32 %s, %s, %s op_sel_hi:[1,0] neg_lo:[0,1] neg_hi:[0,1]' % (P(96 + 2 * i), P(40 + 2 * i), P(80 + 2 * i)))
for i in range(8):
    a('v_cvt_pk_bf16_f32 v%d, v%d, v%d' % (56 + i, 96 + 2 * i, 97 + 2 * i))
for i in range(8):
    a('v_lshlrev_b32 v%d, 16, v%d' % (96 + 2 * i, 56 + i))
    a('v_and_b32 v%d, s52, v%d' % (97 + 2 * i, 56 + i))
for i in range(8):
    a('v_pk_mul_f32 %s, %s, %s op_sel:[0,1] op_sel_hi:[1,1]' % (P(96 + 2 * i), P(96 + 2 * i), P(80 + 2 * i)))
for i in range(8):
    a('v_cvt_pk_bf16_f32 v%d, v%d, v%d' % (56 + i, 96 + 2 * i, 97 + 2 * i))
for u in range(4):
    a('v_perm_b32 v%d, v%d, v%d, s56' % (64 + u, 56 + 6 - 2 * u, 56 + 7 - 2 * u))
a('ds_write_b128 v5, v[64:67]')
for u in range(4):
    a('v_perm_b32 v%d, v%d, v%d, s57' % (68 + u, 56 + 6 - 2 * u, 56 + 7 - 2 * u))
a('ds_write_b128 v5, v[68:71] offset:%d' % (UB[1] - UB[0]))
a('s_lshl_b32 s51, %d, s53' % (1 << B_U))
set_status('s51', 'v160', 'v7')
stamp(6)
for i in range(8):
    a('v_lshlrev_b32 v%d, 16, v%d' % (80 + 2 * i, 56 + i))
    a('v_and_b32 v%d, s52, v%d' % (81 + 2 * i, 56 + i))
for i in range(8):
    a('v_pk_mul_f32 %s, %s, s[54:55]' % (P(96 + 2 * i), P(80 + 2 * i)))
for i in range(8):
    a('v_cvt_pk_bf16_f32 v%d, v%d, v%d' % (20 + i, 96 + 2 * i, 97 + 2 * i))
for i in range(8):
    a('v_lshlrev_b32 v%d, 16, v%d' % (96 + 2 * i, 20 + i))
    a('v_and_b32 v%d, s52, v%d' % (97 + 2 * i, 20 + i))
a('s_lshl_b32 s7, s53, 1')
a('s_lshl_b32 s51, %d, s7' % (3 << B_Y))
a('s_or_b32 s51, s51, %d' % (1 << B_IDX))
wait_status('s51', 'v160', 'v7', sleep=1)
stamp(7)
a('ds_read_b32 v7, v160 offset:%d' % (IDXW - STATUS))
a('ds_read_b128 v[64:67], v5 offset:%d' % (YB[0] - UB[0] - 512))
a('ds_read_b128 v[68:71], v5 offset:%d' % (YB[1] - UB[0] - 512))
a('s_movk_i32 s59, 0x1000')
a('s_waitcnt lgkmcnt(2)')
a('v_readfirstlane_b32 s60, v7')
a('s_lshr_b32 s61, s60, 3')
a('s_and_b32 s60, s60, 7')
a('s_lshr_b32 s7, s61, 6')
a('s_lshl_b64 s[62:63], 1, s61')
a('s_cmp_eq_u32 s7, s53')
a('s_cselect_b64 s[62:63], s[62:63], 0')
a('s_waitcnt lgkmcnt(0)')
specials = []
for i in range(8):
    t = 72 + 2 * (i % 2)
    o = 76 + (i % 2)
    o2 = 78 + (i % 2)
    for c in range(2):
        src = 64 + 4 * c + i // 2
        if i % 2 == 0:
            a('v_lshlrev_b32 v%d, 16, v%d' % (t + c, src))
        else:
            a('v_and_b32 v%d, s52, v%d' % (t + c, src))
    a('v_pk_add_f32 %s, %s, %s' % (P(t), P(t), P(96 + 2 * i)))
    a('v_cvt_pk_bf16_f32 v%d, v%d, v%d' % (o, t, t + 1))
    a('v_lshlrev_b32 v%d, 16, v%d' % (t, o))
    a('v_and_b32 v%d, s52, v%d' % (t + 1, o))
    a('v_pk_add_f32 %s, %s, %s' % (P(t), P(t), P(40 + 2 * i)))
    a('v_cvt_pk_bf16_f32 v%d, v%d, v%d' % (o, t, t + 1))
    a('v_lshlrev_b32 v%d, 16, v%d' % (t, o))
    a('v_and_b32 v%d, s52, v%d' % (t + 1, o))
    a('v_pk_add_f32 %s, %s, %s' % (P(t), P(t), P(80 + 2 * i)))
    a('v_cvt_pk_bf16_f32 v%d, v%d, v%d' % (o2, t, t + 1))
    st = 'buffer_store_dword v%d, v6, s[44:47], %s offen offset:%d' % (o2, 's59' if i >= 4 else '0', 1024 * (i % 4))
    a('s_cmp_eq_u32 s60, %d' % i)
    a('s_cbranch_scc1 L_sp_%d' % i)
    a(st)
    a.label('L_spb_%d' % i)
    specials.append((i, o, st))
finish()
for i, o, st in specials:
    a.label('L_sp_%d' % i)
    a('v_mov_b32 v7, %d' % (1 << B_T1))
    a('s_mov_b64 exec, s[62:63]')
    a('ds_write_b32 v160, v%d offset:%d' % (o, T1X - STATUS))
    a('ds_write_b32 v160, v%d offset:%d' % (56 + i, T1X + 4 - STATUS))
    a('ds_or_b32 v160, v7')
    a('s_not_b64 exec, s[62:63]')
    a(st)
    a('s_mov_b64 exec, -1')
    a('s_branch L_spb_%d' % i)

a.label('L_special')
a('s_getpc_b64 s[42:43]')
a.label('L_pc')
a('s_sub_u32 s42, s42, L_pc-%s' % NAME)
a('s_subb_u32 s43, s43, 0')
a('v_subrev_u32 v2, 512, v0')
a('v_lshlrev_b32 v2, 7, v2')
a('v_min_u32 v2, L_end-%s-4, v2' % NAME)
a('global_load_dword v3, v2, s[42:43]')
a('v_mov_b32 v160, %d' % STATUS)
a('s_mov_b32 s52, 0xffff0000')
a('s_waitcnt lgkmcnt(0)')
a('s_load_dword s6, s[40:41], 0')
a('s_cmp_eq_u32 s4, 8')
a('s_cbranch_scc1 L_moe')

a('s_mov_b32 s44, s8')
a('s_mov_b32 s45, s9')
a('s_mov_b32 s46, 0x200000')
a('s_mov_b32 s47, 0x00020000')
a('s_lshr_b32 s7, s2, 3')
a('s_lshl_b32 s7, s7, 16')
a('s_and_b32 s51, s2, 7')
a('s_lshl_b32 s51, s51, 7')
a('s_add_u32 s7, s7, s51')
a('v_lshl_add_u32 v4, v1, 10, s7')
a('buffer_load_dword v5, v4, s[44:47], 0 offen')
for k in range(8, 12):
    a('v_mov_b32 v%d, 0' % k)
a('v_and_b32 v6, 31, v1')
a('v_lshlrev_b32 v6, 4, v6')
a('v_lshrrev_b32 v7, 5, v1')
a('s_movk_i32 s51, %d' % (UB[1] - UB[0]))
a('v_mad_u32_u24 v6, v7, s51, v6')
a('ds_write_b128 v6, v[8:11] offset:%d' % UB[0] if UB[0] < 65536 else '')
if UB[0] >= 65536:
    a('v_add_u32 v6, %d, v6' % UB[0])
    a('ds_write_b128 v6, v[8:11]')
a('v_lshrrev_b32 v6, 1, v1')
a('v_and_b32 v7, 1, v1')
a('s_movk_i32 s51, %d' % KCS)
a('v_mul_u32_u24 v6, s51, v6')
a('v_lshl_add_u32 v6, v7, 4, v6')
a('v_add_u32 v6, %d, v6' % KC[0])
a('v_mov_b32 v7, %d' % STATUS)
a('v_cmp_gt_u32 vcc, 16, v1')
a('v_cndmask_b32 v6, v7, v6, vcc')
a('ds_write_b128 v6, v[8:11]')
a('v_lshrrev_b32 v6, 2, v1')
a('v_and_b32 v7, 3, v1')
a('v_lshl_add_u32 v6, v6, 3, v7')
a('s_lshl_b32 s7, s3, 2')
a('v_lshl_add_u32 v12, v6, 10, s7')
a('s_mul_i32 s7, s3, 48')
a('s_add_u32 s7, s7, %d' % WS_STATS)
a('v_lshl_add_u32 v13, v1, 4, s7')
a('s_lshl_b32 s7, s3, 4')
a('s_add_u32 s7, s7, %d' % WS_KEYS)
a('v_mov_b32 v7, s7')
a('s_mov_b64 s[54:55], 8')
a('s_mov_b64 s[56:57], 4')
a('v_cndmask_b32 v13, v13, v7, s[54:55]')
a('v_mul_u32_u24 v14, 12, v1')
a('v_min_u32 v14, 24, v14')
a('v_add_u32 v14, %d, v14' % STG)
a('v_mov_b32 v15, %d' % STG)
a('s_waitcnt lgkmcnt(0)')
a('s_mul_i32 s5, s6, 0x9E3779B1')
a('s_add_u32 s5, s5, 0x7F4A7C15')
a('v_mov_b32 v19, s5')
stamp(1)
a('s_barrier')
a('ds_read_b128 v[20:23], v15 offset:32')
a('ds_read_b128 v[24:27], v15 offset:48')
a('ds_read2_b32 v[16:17], v14 offset0:0 offset1:1')
a('ds_read_b32 v18, v14 offset:8')
a('s_waitcnt lgkmcnt(2)')
a('v_max3_u32 v20, v20, v21, v22')
a('v_max3_u32 v24, v24, v25, v26')
a('v_max3_u32 v20, v20, v23, v27')
a('v_max_u32 v20, v20, v24')
a('s_waitcnt lgkmcnt(0)')
a('v_cndmask_b32 v18, v18, v20, s[56:57]')
a('v_cndmask_b32 v16, v16, v20, s[54:55]')
a('s_mov_b64 exec, 15')
a('global_store_dwordx4 v13, v[16:19], s[40:41] sc1')
a('s_mov_b64 exec, -1')
stamp(2)


def col_group(q):
    for k in range(8):
        soff = (512 * q + 128 * (k & 3) + 4 * (k >> 2)) * 1024
        a('s_mov_b32 m0, %d' % (XC + 2048 * q + 256 * k))
        a('s_mov_b32 s51, %d' % soff)
        a('buffer_load_dword v12, s[44:47], s51 offen lds')


col_group(0)
for q in range(4):
    if q < 3:
        col_group(q + 1)
    a('s_waitcnt vmcnt(%d)' % (8 if q < 3 else 0))
    set_status('%d' % (1 << (B_X + q)), 'v160', 'v7')
    stamp(3 + q)
finish()

a.label('L_moe')
a('s_lshr_b32 s50, s3, 3')
a('s_and_b32 s51, s3, 7')
a('v_and_b32 v4, 15, v1')
a('v_lshrrev_b32 v5, 4, v1')
a('s_mul_i32 s7, s51, %d' % (64 * 3584))
a('s_lshl_b32 s53, s50, 7')
a('s_add_u32 s7, s7, s53')
a('v_lshl_add_u32 v6, v4, 3, s7')
a('s_movk_i32 s53, %d' % (8 * 3584))
a('v_mad_u32_u24 v6, v5, s53, v6')
a('s_lshl_b32 s7, s50, 16')
a('s_lshl_b32 s53, s51, 7')
a('s_add_u32 s7, s7, s53')
a('v_lshl_add_u32 v7, v4, 3, s7')
a('v_lshl_add_u32 v7, v5, 13, v7')
for base, ptr, size in ((44, 30, 512 * 3584), (56, 32, 512 * 3584), (60, 34, 1792 * 1024)):
    a('s_mov_b32 s%d, s%d' % (base, ptr))
    a('s_mov_b32 s%d, s%d' % (base + 1, ptr + 1))
    a('s_mov_b32 s%d, %d' % (base + 2, size))
    a('s_mov_b32 s%d, 0x00020000' % (base + 3))
a('v_lshlrev_b32 v8, 4, v1')
a('v_add_u32 v8, %d, v8' % WS_KEYS)
a('s_waitcnt lgkmcnt(0)')
a('s_mul_i32 s5, s6, 0x9E3779B1')
a('s_add_u32 s5, s5, 0x7F4A7C15')
stamp(1)
a('s_barrier')
a('s_cmp_ge_u32 s3, 224')
a('s_cbranch_scc1 L_moe_keys')
RB = lambda b, m: 16 + 16 * b + 2 * m
for h in range(2):
    for m in range(8):
        a('s_mov_b32 s53, %d' % ((32 * h + m) * 3584))
        a('buffer_load_dwordx2 %s, v6, s[44:47], s53 offen' % P(RB(h, m)))
        a('buffer_load_dwordx2 %s, v6, s[56:59], s53 offen' % P(RB(2 + h, m)))
for h in range(2):
    for m in range(8):
        if m % 4 == 0:
            a('s_mov_b32 s53, %d' % ((32 * h + m) * 1024))
        a('buffer_load_dwordx2 %s, v7, s[60:63], s53 offen offset:%d' % (P(RB(4 + h, m)), 1024 * (m % 4)))
a('s_mov_b32 s48, 0x05040100')
a('s_mov_b32 s49, 0x07060302')
TB = lambda b: 112 if b == 0 else 16 + 16 * (b - 1)
a('s_waitcnt vmcnt(16)')
stamp(2)


def transpose_block(b):
    for u in range(4):
        for dw in range(2):
            a('v_perm_b32 v%d, v%d, v%d, s48' % (TB(b) + 4 * (2 * dw) + u, RB(b, 2 * u + 1) + dw, RB(b, 2 * u) + dw))
            a('v_perm_b32 v%d, v%d, v%d, s49' % (TB(b) + 4 * (2 * dw + 1) + u, RB(b, 2 * u + 1) + dw, RB(b, 2 * u) + dw))


for b in range(4):
    transpose_block(b)
a('s_waitcnt vmcnt(0)')
for b in range(4, 6):
    transpose_block(b)
a.label('L_moe_keys')
stamp(3)
a('s_mov_b32 s53, 0')
a.label('L_key_loop')
for k in range(4):
    a('global_load_dwordx4 %s, v8, s[40:41] offset:%d sc1' % (Q(128 + 4 * k), 1024 * k))
a('s_add_u32 s53, s53, 1')
a('s_waitcnt vmcnt(0)')
a('v_cmp_ne_u32 vcc, s5, v131')
a('v_cmp_ne_u32 s[42:43], s5, v135')
a('s_or_b64 vcc, vcc, s[42:43]')
a('v_cmp_ne_u32 s[42:43], s5, v139')
a('s_or_b64 vcc, vcc, s[42:43]')
a('v_cmp_ne_u32 s[42:43], s5, v143')
a('s_or_b64 vcc, vcc, s[42:43]')
a('s_and_b64 exec, exec, vcc')
a('s_cbranch_execz L_key_done')
a('s_sleep 2')
a('s_cmp_lt_u32 s53, %d' % POLL_MAX)
a('s_cbranch_scc1 L_key_loop')
a.label('L_key_done')
a('s_mov_b64 exec, -1')
a('v_max3_u32 v128, v128, v132, v136')
a('v_max_u32 v128, v128, v140')
reduce64('v_max_u32', ['v128'])
a('v_readlane_b32 s54, v128, 63')
a('s_and_b32 s55, s54, 0xffff')
a('s_sub_u32 s55, 2047, s55')
a('s_and_b32 s55, s55, 2047')
stamp(4)
a('s_lshl_b32 s7, s55, 10')
a('s_lshl_b32 s53, s51, 7')
a('s_add_u32 s7, s7, s53')
a('v_lshl_add_u32 v9, v5, 4, s7')
a('global_load_dwordx4 v[96:99], v9, s[8:9]')
a('global_load_dwordx4 v[100:103], v9, s[8:9] offset:64')
a('s_lshr_b32 s7, s55, 3')
a('s_mul_i32 s7, s7, 48')
a('s_and_b32 s53, s55, 7')
a('s_mul_i32 s42, s53, 43')
a('s_lshr_b32 s42, s42, 7')
a('s_add_u32 s53, s53, s42')
a('s_lshl_b32 s53, s53, 2')
a('s_add_u32 s7, s7, s53')
a('s_add_u32 s7, s7, %d' % WS_STATS)
a('v_mov_b32 v10, s7')
a('global_load_dword v104, v10, s[40:41] sc1')
a('v_mov_b32 v10, s55')
a('v_mov_b32 v11, %d' % (1 << B_IDX))
a('s_mov_b64 exec, 1')
a('ds_write_b32 v160, v10 offset:%d' % (IDXW - STATUS))
a('ds_or_b32 v160, v11')
a('s_cmp_eq_u32 s2, 0')
a('s_cbranch_scc0 L_no_epoch')
a('s_add_u32 s7, s6, 1')
a('v_mov_b32 v10, 0')
a('v_mov_b32 v11, s7')
a('global_store_dword v10, v11, s[40:41] sc1')
a.label('L_no_epoch')
a('s_mov_b64 exec, -1')
a('s_and_b32 s7, s54, s52')
a('s_not_b32 s42, s7')
a('s_and_b32 s42, s42, s52')
a('s_xor_b32 s43, s7, 0x80000000')
a('s_bitcmp1_b32 s7, 31')
a('s_cselect_b32 s7, s43, s42')
a('v_mov_b32 v12, s7')
a('v_mul_f32 v12, %s, v12' % f32(-LOG2E))
a('v_exp_f32 v12, v12')
a('v_add_f32 v12, 1.0, v12')
a('v_rcp_f32 v12, v12')
a('v_cvt_pk_bf16_f32 v12, v12, v12')
a('v_and_b32 v12, s52, v12')
a('s_mov_b32 s42, 0xaaaaaaaa')
a('s_mov_b32 s43, 0xaaaaaaaa')
a('s_mov_b32 s44, 0xcccccccc')
a('s_mov_b32 s45, 0xcccccccc')
a('s_mov_b32 s46, 0xf0f0f0f0')
a('s_mov_b32 s47, 0xf0f0f0f0')
a('s_mov_b32 s48, 0xff00ff00')
a('s_mov_b32 s49, 0xff00ff00')
a('s_cmp_ge_u32 s3, 224')
a('s_cbranch_scc1 L_moe_idle')
a('s_lshl_b32 s7, s3, 10')
a('s_add_u32 s7, s7, %d' % WS_HOPA)
a('v_lshl_add_u32 v13, v1, 4, s7')
a('s_lshl_b32 s7, s50, 13')
a('s_add_u32 s7, s7, %d' % WS_HOPA)
a('v_lshl_add_u32 v14, v1, 4, s7')
a('v_add_u32 v15, 4096, v14')
a('s_waitcnt vmcnt(0)')
stamp(5)
a('v_and_b32 v3, s52, v104')
a('v_lshlrev_b32 v2, 16, v104')
a('v_rcp_f32 v3, v3')
for k in range(8):
    a('v_lshlrev_b32 v%d, 16, v%d' % (128 + 2 * k, 96 + k))
    a('v_and_b32 v%d, s52, v%d' % (129 + 2 * k, 96 + k))
for k in range(8):
    a('v_pk_add_f32 %s, %s, v[2:3] op_sel_hi:[1,0] neg_lo:[0,1] neg_hi:[0,1]' % (P(128 + 2 * k), P(128 + 2 * k)))
for k in range(8):
    a('v_cvt_pk_bf16_f32 v%d, v%d, v%d' % (96 + k, 128 + 2 * k, 129 + 2 * k))
for k in range(8):
    a('v_lshlrev_b32 v%d, 16, v%d' % (128 + 2 * k, 96 + k))
    a('v_and_b32 v%d, s52, v%d' % (129 + 2 * k, 96 + k))
for k in range(8):
    a('v_pk_mul_f32 %s, %s, v[2:3] op_sel:[0,1] op_sel_hi:[1,1]' % (P(128 + 2 * k), P(128 + 2 * k)))
for k in range(8):
    a('v_cvt_pk_bf16_f32 v%d, v%d, v%d' % (96 + k, 128 + 2 * k, 129 + 2 * k))
for h in range(2):
    for mat in range(2):
        for f in range(4):
            d = 128 + 16 * mat + 4 * f
            a('v_mfma_f32_16x16x32_bf16 %s, %s, %s, %s' % (Q(d), Q(TB(2 * mat + h) + 4 * f), Q(96 + 4 * h), '0' if h == 0 else Q(d)))


def select16(base, dst):
    for r in range(4):
        a('v_cndmask_b32 v%d, v%d, v%d, s[42:43]' % (base + r, base + r, base + 4 + r))
        a('v_cndmask_b32 v%d, v%d, v%d, s[42:43]' % (base + 8 + r, base + 8 + r, base + 12 + r))
    for r in range(4):
        a('v_cndmask_b32 v%d, v%d, v%d, s[44:45]' % (base + r, base + r, base + 8 + r))
    a('v_cndmask_b32 v%d, v%d, v%d, s[46:47]' % (base, base, base + 1))
    a('v_cndmask_b32 v%d, v%d, v%d, s[46:47]' % (base + 2, base + 2, base + 3))
    a('v_cndmask_b32 v%d, v%d, v%d, s[48:49]' % (dst, base, base + 2))


a('v_mov_b32 v110, 0')
a('v_mov_b32 v111, s5')
select16(128, 108)
select16(144, 109)
a('global_store_dwordx4 v13, v[108:111], s[40:41] sc1')
stamp(6)
a('s_sleep %d' % opt('sleepA', 20))
a('s_mov_b32 s53, 0')
a.label('L_hopa_loop')
for k in range(8):
    a('global_load_dwordx4 %s, %s, s[40:41] offset:%d sc1' % (Q(128 + 4 * k), 'v14' if k < 4 else 'v15', 1024 * (k % 4)))
a('s_add_u32 s53, s53, 1')
a('s_waitcnt vmcnt(0)')
a('v_cmp_ne_u32 vcc, s5, v131')
for k in range(1, 8):
    a('v_cmp_ne_u32 s[56:57], s5, v%d' % (131 + 4 * k))
    a('s_or_b64 vcc, vcc, s[56:57]')
a('s_and_b64 exec, exec, vcc')
a('s_cbranch_execz L_hopa_done')
a('s_sleep 2')
a('s_cmp_lt_u32 s53, %d' % POLL_MAX)
a('s_cbranch_scc1 L_hopa_loop')
a.label('L_hopa_done')
a('s_mov_b64 exec, -1')
stamp(7)
for k in range(4):
    a('v_pk_add_f32 %s, %s, %s' % (P(128 + 8 * k), P(128 + 8 * k), P(132 + 8 * k)))
a('v_pk_add_f32 v[128:129], v[128:129], v[136:137]')
a('v_pk_add_f32 v[144:145], v[144:145], v[152:153]')
a('v_pk_add_f32 v[128:129], v[128:129], v[144:145]')
a('v_cvt_pk_bf16_f32 v2, v128, v129')
a('v_lshlrev_b32 v3, 16, v2')
a('v_and_b32 v2, s52, v2')
a('v_mul_f32 v10, %s, v3' % f32(-LOG2E))
a('v_exp_f32 v10, v10')
a('v_add_f32 v10, 1.0, v10')
a('v_rcp_f32 v10, v10')
a('v_mul_f32 v10, v3, v10')
a('v_cvt_pk_bf16_f32 v10, v10, v10')
a('v_and_b32 v10, s52, v10')
a('v_mul_f32 v10, v10, v2')
a('v_cvt_pk_bf16_f32 v10, v10, v10')
a('v_lshlrev_b32 v11, 1, v1')
a('v_add_u32 v11, %d, v11' % HS)
a('ds_write_b16 v11, v10')
a('v_lshlrev_b32 v11, 4, v5')
a('v_add_u32 v11, %d, v11' % HS)
a('ds_read_b128 v[96:99], v11')
a('ds_read_b128 v[100:103], v11 offset:64')
a('s_lshl_b32 s7, s3, 9')
a('s_add_u32 s7, s7, %d' % WS_HOPB)
a('v_lshl_add_u32 v13, v1, 3, s7')
a('s_waitcnt lgkmcnt(0)')
for h in range(2):
    for f in range(4):
        d = 128 + 4 * f
        a('v_mfma_f32_16x16x32_bf16 %s, %s, %s, %s' % (Q(d), Q(TB(4 + h) + 4 * f), Q(96 + 4 * h), '0' if h == 0 else Q(d)))
select16(128, 108)
a('v_mov_b32_dpp v109, v108 quad_perm:[1,1,3,3] row_mask:0xf bank_mask:0xf')
a('s_not_b64 exec, s[42:43]')
a('global_store_dwordx4 v13, v[108:111], s[40:41] sc1')
a('s_mov_b64 exec, -1')
stamp(8)
a('s_sleep %d' % opt('sleepB', 20))
a('s_branch L_moe_final')
a.label('L_moe_idle')
a('s_sleep %d' % opt('sleepI', 70))
a.label('L_moe_final')
a('s_lshr_b32 s7, s3, 5')
a('s_lshl_b32 s7, s7, 9')
a('s_and_b32 s53, s3, 31')
a('s_lshl_b32 s53, s53, 4')
a('s_add_u32 s7, s7, s53')
a('s_add_u32 s7, s7, %d' % WS_HOPB)
a('v_lshl_add_u32 v14, v1, 12, s7')
a('v_mov_b32 v128, 0')
a('v_mov_b32 v129, 0')
a('s_mov_b32 s53, 0')
a('s_mov_b64 exec, 0xfffffff')
a.label('L_hopb_loop')
a('global_load_dwordx4 v[128:131], v14, s[40:41] sc1')
a('s_add_u32 s53, s53, 1')
a('s_waitcnt vmcnt(0)')
a('v_cmp_ne_u32 vcc, s5, v131')
a('s_and_b64 exec, exec, vcc')
a('s_cbranch_execz L_hopb_done')
a('s_sleep 2')
a('s_cmp_lt_u32 s53, %d' % POLL_MAX)
a('s_cbranch_scc1 L_hopb_loop')
a.label('L_hopb_done')
a('s_mov_b64 exec, -1')
stamp(9)
reduce64('v_add_f32', ['v128', 'v129'])
a('v_readlane_b32 s42, v128, 63')
a('v_readlane_b32 s43, v129, 63')
a('v_mov_b32 v3, s43')
a('v_cvt_pk_bf16_f32 v2, s42, v3')
a('v_and_b32 v3, s52, v2')
a('v_lshlrev_b32 v2, 16, v2')
a('v_pk_mul_f32 v[2:3], v[2:3], v[12:13] op_sel_hi:[1,0]')
a('v_cvt_pk_bf16_f32 v2, v2, v3')
a('v_and_b32 v3, s52, v2')
a('v_lshlrev_b32 v2, 16, v2')
a('s_lshl_b32 s42, s55, 10')
a('s_lshl_b32 s43, s3, 2')
a('s_add_u32 s42, s42, s43')
a('v_mov_b32 v9, s42')
wait_status('%d' % (1 << B_T1), 'v160', 'v10')
a('ds_read_b64 v[4:5], v160 offset:%d' % (T1X - STATUS))
a('s_waitcnt lgkmcnt(0)')
a('v_lshlrev_b32 v6, 16, v5')
a('v_and_b32 v7, s52, v5')
a('v_pk_add_f32 v[2:3], v[2:3], v[6:7]')
a('v_cvt_pk_bf16_f32 v2, v2, v3')
a('v_and_b32 v3, s52, v2')
a('v_lshlrev_b32 v2, 16, v2')
a('v_lshlrev_b32 v6, 16, v4')
a('v_and_b32 v7, s52, v4')
a('v_pk_add_f32 v[2:3], v[2:3], v[6:7]')
a('v_cvt_pk_bf16_f32 v2, v2, v3')
a('s_mov_b64 exec, 1')
a('global_store_dword v9, v2, s[36:37]')
a('s_mov_b64 exec, -1')
finish()
a.label('L_exit')
a('s_endpgm')
a.label('L_end')

body = a.finalize()
hdr = open('parallel_sum__ssm_conv_s4__moe_arch_mod__prompt.s.ref').read().split('; Override launch')[0]
src = hdr
src += '; Generated by work/gen.py (hand-written instruction streams, scripted unrolling and wait-state padding).\n'
src += '; @launch grid=(256,1,1) block=(640,1,1) lds=%d\n' % LDS_BYTES
src += '.amdgcn_target "amdgcn-amd-amdhsa--gfx950"\n.text\n.globl %s\n.p2align 8\n.type %s,@function\n' % (NAME, NAME)
src += body
src += '''.section .rodata,"a"
.p2align 6
.amdhsa_kernel %s
  .amdhsa_next_free_vgpr 168
  .amdhsa_next_free_sgpr 96
  .amdhsa_accum_offset 168
  .amdhsa_group_segment_fixed_size 0
  .amdhsa_kernarg_size 136
  .amdhsa_user_sgpr_count 2
  .amdhsa_user_sgpr_kernarg_segment_ptr 1
  .amdhsa_system_sgpr_workgroup_id_x 1
.end_amdhsa_kernel
''' % NAME
open(OUT, 'w').write(src)
print('wrote', OUT, 'lds', LDS_BYTES)
```

```python
import sys, struct, math
from asmlib import Asm

NAME = 'parallel_sum__ssm_conv_s4__moe_arch_mod__prompt_kernel'
DEBUG = '--debug' in sys.argv
SPAN = '--span' in sys.argv
OUT = [a for a in sys.argv[1:] if not a.startswith('--')]
OUT = OUT[0] if OUT else 'parallel_sum__ssm_conv_s4__moe_arch_mod__prompt.s'


def opt(name, default):
    for a in sys.argv:
        if a.startswith('--' + name + '='):
            return int(a.split('=')[1], 0)
    return default


def f32(x):
    return '0x%08x' % struct.unpack('<I', struct.pack('<f', x))[0]


WS_STATS = 4096
WS_KEYS = 16384
WS_HOPA = 32768
WS_HOPB = 262144
WS_DBG = 1 << 20
KTS = 528
KT = [0, 64 * KTS]
KCS = 4160
KC = [2 * 64 * KTS, 2 * 64 * KTS + 4 * KCS]
UB = [KC[1] + 4 * KCS, KC[1] + 4 * KCS + 4608]
YB = [UB[1] + 4608, UB[1] + 4608 + 4096]
XC = YB[1] + 4096
MISC = XC + 8192
STG = MISC
STATUS = MISC + 64
IDXW = MISC + 68
T1X = MISC + 72
HS = MISC + 128
LDS_BYTES = MISC + 256
B_U, B_KC, B_X, B_Y, B_IDX, B_T1, B_KT = 0, 4, 8, 12, 20, 21, 22

POLL_MAX = 1 << 16
LOG2E = 1.4426950408889634
LOG2E_HI = struct.unpack('<f', struct.pack('<f', LOG2E))[0]
LOG2E_LO = LOG2E - LOG2E_HI

a = Asm()
uid = [0]


def L(p):
    uid[0] += 1
    return 'L_%s_%d' % (p, uid[0])


def stamp(n):
    if DEBUG:
        a('s_memrealtime s[%d:%d]' % (64 + 2 * n, 65 + 2 * n))


NSTAMP = 12


def finish():
    if DEBUG:
        stamp(NSTAMP - 1)
        a('s_waitcnt lgkmcnt(0)')
        a('s_mov_b64 exec, 1')
        a('s_mul_i32 s7, s2, 10')
        a('s_add_u32 s7, s7, s4')
        a('s_lshl_b32 s7, s7, 6')
        a('s_add_u32 s7, s7, %d' % WS_DBG)
        a('v_mov_b32 v2, s7')
        for n in range(NSTAMP):
            a('v_mov_b32 v3, s%d' % (64 + 2 * n))
            a('global_store_dword v2, v3, s[40:41] offset:%d' % (4 * n))
    if SPAN:
        a('s_waitcnt vmcnt(0)')
        a('s_memrealtime s[66:67]')
        a('s_waitcnt lgkmcnt(0)')
        a('s_mov_b64 exec, 1')
        a('s_and_b32 s7, s2, 7')
        a('s_lshl_b32 s7, s7, 2')
        a('v_mov_b32 v2, s7')
        a('s_not_b32 s64, s64')
        a('v_mov_b32 v3, s64')
        a('v_mov_b32 v4, s66')
        a('global_atomic_umax v2, v3, s[38:39]')
        a('global_atomic_umax v2, v4, s[38:39] offset:32')
    a('s_endpgm')


def wait_status(need, vaddr, vtmp, sleep=0):
    l = L('ws')
    a.label(l)
    if sleep:
        a('s_sleep %d' % sleep)
    a('ds_read_b32 %s, %s' % (vtmp, vaddr))
    a('s_sub_u32 s88, s88, 1')
    a('s_cbranch_scc1 L_exit')
    a('s_waitcnt lgkmcnt(0)')
    a('v_readfirstlane_b32 s7, %s' % vtmp)
    a('s_and_b32 s7, s7, %s' % need)
    a('s_cmp_eq_u32 s7, %s' % need)
    a('s_cbranch_scc0 %s' % l)


def set_status(bits, vaddr, vtmp):
    a('s_mov_b64 exec, 1')
    a('v_mov_b32 %s, %s' % (vtmp, bits))
    a('ds_or_b32 %s, %s' % (vaddr, vtmp))
    a('s_mov_b64 exec, -1')


def reduce64(op, regs):
    for step in ('row_shr:1 row_mask:0xf', 'row_shr:2 row_mask:0xf', 'row_shr:4 row_mask:0xf', 'row_shr:8 row_mask:0xf',
                 'row_bcast:15 row_mask:0xa', 'row_bcast:31 row_mask:0xc'):
        for r in regs:
            a('%s_dpp %s, %s, %s %s bank_mask:0xf' % (op, r, r, r, step))


def P(n):
    return 'v[%d:%d]' % (n, n + 1)


def Q(n):
    return 'v[%d:%d]' % (n, n + 3)


def cmul(d, z, w, t):
    a('v_pk_mul_f32 %s, %s, %s op_sel:[0,0] op_sel_hi:[0,1]' % (P(t), P(z), P(w)))
    a('v_pk_fma_f32 %s, %s, %s, %s op_sel:[1,1,0] op_sel_hi:[1,0,1] neg_lo:[1,0,0]' % (P(d), P(z), P(w), P(t)))


def cmul_multi(jobs):
    for d, z, w, t in jobs:
        a('v_pk_mul_f32 %s, %s, %s op_sel:[0,0] op_sel_hi:[0,1]' % (P(t), P(z), P(w)))
    for d, z, w, t in jobs:
        a('v_pk_fma_f32 %s, %s, %s, %s op_sel:[1,1,0] op_sel_hi:[1,0,1] neg_lo:[1,0,0]' % (P(d), P(z), P(w), P(t)))


def cexp_multi(jobs, al, be):
    for d, l, t in jobs:
        a('v_mul_f32 v%d, %s, v%d' % (t, f32(l), al))
        a('v_mul_f32 v%d, %s, v%d' % (t + 1, f32(l), be))
    for d, l, t in jobs:
        a('v_exp_f32 v%d, v%d' % (t, t))
        a('v_fract_f32 v%d, v%d' % (t + 1, t + 1))
    for d, l, t in jobs:
        a('v_cos_f32 v%d, v%d' % (d, t + 1))
        a('v_sin_f32 v%d, v%d' % (d + 1, t + 1))
    for d, l, t in jobs:
        a('v_pk_mul_f32 %s, %s, %s op_sel:[0,0] op_sel_hi:[1,0]' % (P(d), P(d), P(t)))


a.label(NAME)
a('s_cmp_ge_u32 s2, 256')
a('s_cbranch_scc1 L_exit')
a('s_load_dwordx16 s[8:23], s[0:1], 0')
a('s_load_dwordx16 s[24:39], s[0:1], 64')
a('s_load_dwordx2 s[40:41], s[0:1], 128')
stamp(0)
if SPAN:
    a('s_memrealtime s[64:65]')
a('v_lshrrev_b32 v2, 6, v0')
a('v_and_b32 v1, 63, v0')
a('s_mov_b32 s88, 0x400000')
a('v_readfirstlane_b32 s4, v2')
a('s_and_b32 s3, s2, 7')
a('s_lshl_b32 s3, s3, 5')
a('s_lshr_b32 s7, s2, 3')
a('s_add_u32 s3, s3, s7')
a('s_cmp_ge_u32 s4, 8')
a('s_cbranch_scc1 L_special')

a('s_lshl_b32 s42, s3, 3')
a('s_add_u32 s42, s42, s4')
a('s_lshl_b32 s7, s42, 10')
a('v_lshlrev_b32 v17, 4, v1')
a('v_add_u32 v18, s7, v17')
a('s_and_b32 s43, s4, 1')
a('s_lshl_b32 s7, s3, 1')
a('s_add_u32 s7, s7, s43')
a('s_lshl_b32 s7, s7, 8')
a('s_bfe_u32 s50, s4, 0x10001')
a('s_lshl_b32 s51, s50, 7')
a('s_add_u32 s7, s7, s51')
a('v_lshl_add_u32 v19, v1, 1, s7')
for r in range(10, 16):
    a('v_mov_b32 v%d, 0' % r)
a('s_lshl_b32 s7, s3, 2')
a('s_waitcnt lgkmcnt(0)')
a('global_load_dwordx4 v[2:5], v18, s[8:9]')
a('global_load_dwordx4 v[6:9], v17, s[28:29]')
a('s_load_dword s6, s[40:41], 0')
a('s_load_dword s48, s[22:23], s7')
a('s_load_dword s49, s[24:25], s7')
a('global_load_short_d16_hi v10, v19, s[10:11]')
a('global_load_short_d16_hi v11, v19, s[12:13]')
a('global_load_short_d16_hi v12, v19, s[14:15]')
a('global_load_short_d16_hi v13, v19, s[16:17]')
a('global_load_short_d16_hi v14, v19, s[18:19]')
a('global_load_short_d16_hi v15, v19, s[20:21]')
a('s_mov_b32 s52, 0xffff0000')
a('v_mov_b32 v160, %d' % STATUS)
a('s_mul_i32 s7, s43, %d' % KT[1])
a('s_lshl_b32 s51, s50, 8')
a('s_add_u32 s7, s7, s51')
a('v_lshl_add_u32 v62, v1, 2, s7')
a('s_waitcnt lgkmcnt(0)')
a('s_mul_i32 s5, s6, 0x9E3779B1')
a('s_add_u32 s5, s5, 0x7F4A7C15')
a('s_lshl_b32 s7, s48, 16')
a('s_and_b32 s51, s48, s52')
a('s_cmp_eq_u32 s43, 0')
a('s_cselect_b32 s7, s7, s51')
a('v_mov_b32 v20, s7')
a('v_mul_f32 v21, %s, v20' % f32(LOG2E_HI))
a('v_mov_b32 v22, %s' % f32(LOG2E_HI))
a('v_fma_f32 v22, v20, v22, -v21')
a('v_fmac_f32 v22, %s, v20' % f32(LOG2E_LO))
a('v_exp_f32 v21, v21')
a('v_mul_f32 v22, %s, v22' % f32(math.log(2.0)))
a('v_fmac_f32 v21, v21, v22')
a('v_cvt_pk_bf16_f32 v21, v21, v21')
a('v_and_b32 v16, s52, v21')
a('s_waitcnt vmcnt(7)')
stamp(1)
for k in range(4):
    a('v_lshlrev_b32 v%d, 16, v%d' % (20 + 2 * k, 2 + k))
    a('v_and_b32 v%d, s52, v%d' % (21 + 2 * k, 2 + k))
a('v_readfirstlane_b32 s44, v20')
for k in range(4):
    a('v_pk_add_f32 %s, %s, s[44:45] op_sel_hi:[1,0] neg_lo:[0,1] neg_hi:[0,1]' % (P(28 + 2 * k), P(20 + 2 * k)))
a('v_pk_add_f32 v[36:37], v[28:29], v[30:31]')
a('v_pk_mul_f32 v[40:41], v[28:29], v[28:29]')
a('v_pk_add_f32 v[38:39], v[32:33], v[34:35]')
a('v_pk_fma_f32 v[40:41], v[30:31], v[30:31], v[40:41]')
a('v_pk_add_f32 v[36:37], v[36:37], v[38:39]')
a('v_pk_fma_f32 v[40:41], v[32:33], v[32:33], v[40:41]')
a('v_add_f32 v36, v36, v37')
a('v_pk_fma_f32 v[40:41], v[34:35], v[34:35], v[40:41]')
a('v_add_f32 v40, v40, v41')
reduce64('v_add_f32', ['v36', 'v40'])
a('v_readlane_b32 s46, v36, 63')
a('v_readlane_b32 s47, v40, 63')
a('v_mov_b32 v37, %s' % f32(1.0 / 512))
a('v_mul_f32 v36, s46, v37')
a('v_mul_f32 v40, s47, v37')
a('v_fma_f32 v40, -v36, v36, v40')
a('v_add_f32 v36, s44, v36')
a('v_max_f32 v40, 0, v40')
a('v_cvt_pk_bf16_f32 v41, v36, v40')
a('v_and_b32 v40, s52, v41')
a('v_lshlrev_b32 v36, 16, v41')
a('v_add_f32 v40, %s, v40' % f32(1e-5))
a('v_cvt_pk_bf16_f32 v40, v40, v40')
a('v_and_b32 v40, s52, v40')
a('v_sqrt_f32 v40, v40')
for k in range(4):
    a('v_pk_add_f32 %s, %s, v[36:37] op_sel_hi:[1,0] neg_lo:[0,1] neg_hi:[0,1]' % (P(28 + 2 * k), P(20 + 2 * k)))
a('v_cvt_pk_bf16_f32 v40, v40, v40')
a('v_and_b32 v40, s52, v40')
a('v_rcp_f32 v38, v40')
a('v_bfi_b32 v42, s52, v40, v41')
for k in range(4):
    a('v_cvt_pk_bf16_f32 v%d, v%d, v%d' % (20 + k, 28 + 2 * k, 29 + 2 * k))
for k in range(4):
    a('v_lshlrev_b32 v%d, 16, v%d' % (28 + 2 * k, 20 + k))
    a('v_and_b32 v%d, s52, v%d' % (29 + 2 * k, 20 + k))
for k in range(4):
    a('v_pk_mul_f32 %s, %s, v[38:39] op_sel_hi:[1,0]' % (P(28 + 2 * k), P(28 + 2 * k)))
for k in range(4):
    a('v_cvt_pk_bf16_f32 v%d, v%d, v%d' % (20 + k, 28 + 2 * k, 29 + 2 * k))
a('s_waitcnt vmcnt(6)')
a('v_mov_b32 v36, 0')
a('v_mov_b32 v37, 0')
a('v_dot2_f32_bf16 v36, v20, v6, v36')
a('v_dot2_f32_bf16 v37, v21, v7, v37')
a('v_dot2_f32_bf16 v36, v22, v8, v36')
a('v_dot2_f32_bf16 v37, v23, v9, v37')
a('v_add_f32 v36, v36, v37')
reduce64('v_add_f32', ['v36'])
a('v_readlane_b32 s46, v36, 63')
a('s_sub_u32 s47, 2047, s42')
a('v_cvt_pk_bf16_f32 v36, s46, s46')
a('v_ashrrev_i32 v37, 31, v36')
a('v_or_b32 v37, 0x80000000, v37')
a('v_xor_b32 v36, v36, v37')
a('v_mov_b32 v37, s47')
a('v_bfi_b32 v43, s52, v36, v37')
a('s_lshl_b32 s7, s4, 2')
a('s_add_u32 s7, s7, %d' % STG)
a('v_mov_b32 v36, s7')
a('s_mov_b64 exec, 1')
a('ds_write2_b32 v36, v42, v43 offset0:0 offset1:8')
a('s_mov_b64 exec, -1')
a('s_waitcnt lgkmcnt(0)')
stamp(2)
a('s_barrier')
a('s_waitcnt vmcnt(0)')
a('v_mul_f32 v10, v16, v10')
a('v_mul_f32 v11, v16, v11')
a('v_mul_f32 v10, %s, v10' % f32(LOG2E))
a('v_mul_f32 v11, %s, v11' % f32(1.0 / (2 * math.pi)))
a('s_cmp_ge_u32 s4, 4')
a('s_cbranch_scc1 L_io')


def kt_write(row, pair, tmp, neg):
    a('v_cvt_pk_bf16_f32 v%d, v%d, %sv%d' % (tmp, pair, '-' if neg else '', pair + 1))
    a('ds_write_b32 v62, v%d offset:%d' % (tmp, row * KTS))


W1, W2, W4, W8, G, C0 = 20, 22, 24, 26, 28, 30
cexp_multi([(W1, 1.0, 40), (G, 256.0, 42), (W8, 8.0, 44)], 10, 11)
a('v_pk_mul_f32 v[12:13], v[12:13], v[16:17] op_sel_hi:[1,0]')
cmul_multi([(C0, 14, 12, 40), (W2, W1, W1, 42)])
E0, O0, H = 32, 34, 36
T = [40, 42, 44, 46, 48]
cmul_multi([(O0, C0, W1, T[0]), (H, C0, G, T[1]), (W4, W2, W2, T[2])])
kt_write(0, C0, 50, True)
kt_write(1, O0, 51, True)
kt_write(13, H, 52, True)
Z1 = 38
Hs = {1: H}
Hn = [54, 56, 58, 60, 52 + 12, 66]
cur_e, cur_o, cur_b = C0, O0, H
step_regs = [(E0, O0, Z1)]
hprev = H
for n in range(5):
    jobs = [(E0, cur_e, W2, T[0]), (Z1, cur_b, W2, T[2]), (Hn[n], hprev, G, T[3])]
    if n < 4:
        jobs.insert(1, (O0, cur_o, W2, T[1]))
    cmul_multi(jobs)
    cur_e, cur_b, hprev = E0, Z1, Hn[n]
    kt_write(2 * n + 2, E0, 50, True)
    if n < 4:
        kt_write(2 * n + 3, O0, 51, True)
    kt_write(14 + n, Z1, 52, True)
    kt_write({0: 21, 1: 26, 2: 11, 3: 19, 4: 24}[n], Hn[n], 53, True)
H2, H3, H4, H5, H6, H7 = Hn
cmul_multi([(H7, H6, G, T[0]), (E0, H2, W4, T[1]), (O0, H3, W4, T[2]), (H2, H2, W8, T[3]), (H3, H3, W8, T[4])])
kt_write(29, H7, 50, True)
kt_write(22, E0, 51, True)
kt_write(27, O0, 52, True)
kt_write(23, H2, 53, True)
kt_write(28, H3, 50, True)
cmul_multi([(H4, H4, W8, T[0]), (H5, H5, W8, T[1]), (H6, H6, W8, T[2]), (H7, H7, W8, T[3])])
kt_write(12, H4, 50, True)
kt_write(20, H5, 51, True)
kt_write(25, H6, 52, True)
kt_write(30, H7, 53, True)
a('s_lshl_b32 s51, %d, s4' % (1 << B_KT))
set_status('s51', 'v160', 'v50')
stamp(3)
tabA0 = [min(r, 12) for r in range(16)]
tabA1 = [0, 0, 1, 2, 2, 2, 3, 4, 4, 4, 5, 6, 7, 7, 7, 7]
tabB = [min(r, 4) for r in range(16)]


def nib64(t):
    v = sum(x << (4 * i) for i, x in enumerate(t))
    return v & 0xffffffff, v >> 32


a('s_cmp_eq_u32 s50, 0')
for (sreg, ta, tb) in ((54, tabA0, tabB), (56, tabA1, tabB)):
    la, ha = nib64(ta)
    lb, hb = nib64(tb)
    a('s_mov_b32 s%d, 0x%x' % (sreg, lb))
    a('s_mov_b32 s%d, 0x%x' % (sreg + 1, hb))
    a('s_cmov_b32 s%d, 0x%x' % (sreg, la))
    a('s_cmov_b32 s%d, 0x%x' % (sreg + 1, ha))
a('s_cselect_b32 s58, 0, 21')
a('s_cselect_b32 s59, 13, 26')
a('v_and_b32 v20, 31, v1')
a('v_and_b32 v21, 4, v20')
a('v_cmp_ne_u32 vcc, 0, v21')
a('v_and_b32 v21, 3, v20')
a('v_lshrrev_b32 v22, 3, v20')
a('v_lshl_add_u32 v21, v22, 2, v21')
a('v_lshlrev_b32 v21, 2, v21')
a('v_mov_b32 v22, s54')
a('v_mov_b32 v23, s55')
a('v_mov_b32 v24, s56')
a('v_mov_b32 v25, s57')
a('v_mov_b32 v26, s58')
a('v_mov_b32 v27, s59')
a('v_cndmask_b32 v22, v22, v24, vcc')
a('v_cndmask_b32 v23, v23, v25, vcc')
a('v_cndmask_b32 v26, v26, v27, vcc')
a('v_lshrrev_b64 v[22:23], v21, v[22:23]')
a('v_and_b32 v22, 15, v22')
a('v_add_u32 v22, v22, v26')
a('s_mul_i32 s7, s43, %d' % KT[1])
a('v_lshrrev_b32 v23, 5, v1')
a('v_lshl_add_u32 v23, v23, 4, s7')
a('s_movk_i32 s51, %d' % KTS)
a('v_mad_u32_u24 v30, v22, s51, v23')
a('v_mad_u32_u24 v31, v20, s51, v23')
a('v_and_b32 v20, 15, v1')
a('v_lshrrev_b32 v21, 4, v1')
a('v_add_u32 v22, 1, v20')
a('v_and_b32 v23, 3, v22')
a('v_lshrrev_b32 v22, 2, v22')
a('s_mul_i32 s7, s43, %d' % (KC[1] - KC[0]))
a('s_add_u32 s7, s7, %d' % KC[0])
a('s_movk_i32 s51, %d' % KCS)
a('v_mov_b32 v35, s7')
a('v_mad_u32_u24 v35, v23, s51, v35')
a('v_lshl_add_u32 v35, v22, 3, v35')
a('v_lshl_add_u32 v35, v21, 4, v35')
a('s_mul_i32 s51, s43, %d' % (UB[1] - UB[0]))
a('s_add_u32 s51, s51, %d' % (UB[0] + 16 * 33 - 1216))
a('v_lshlrev_b32 v22, 1, v20')
a('v_sub_u32 v22, v22, v21')
a('v_lshl_add_u32 v36, v22, 4, s51')
a('s_mul_i32 s51, s43, %d' % (YB[1] - YB[0]))
a('s_add_u32 s51, s51, %d' % YB[0])
a('v_lshl_add_u32 v37, v20, 5, s51')
a('v_lshl_add_u32 v37, v21, 3, v37')
a('s_lshl_b32 s51, s50, 10')
a('s_add_u32 s7, s7, s51')
a('s_add_u32 s7, s7, 32')
a('v_lshl_add_u32 v38, v1, 4, s7')
a('s_lshl_b32 s51, %d, s43' % (0x55 << B_KT))
wait_status('s51', 'v160', 'v20')
stamp(4)
KA = [80, 84, 88, 92]
KB = [96, 100, 104, 108]
for s in range(4):
    a('ds_read_b128 %s, v30 offset:%d' % (Q(KA[s]), 32 * s))
    a('ds_read_b128 %s, v31 offset:%d' % (Q(KB[s]), 32 * KTS + 32 * s))
for s in range(16):
    a('s_waitcnt lgkmcnt(%d)' % min(6, 2 * (15 - s)))
    a('v_mfma_f32_32x32x16_bf16 v[64:79], %s, %s, %s' % (Q(KA[s % 4]), Q(KB[s % 4]), '0' if s == 0 else 'v[64:79]'))
    if s + 4 < 16:
        a('ds_read_b128 %s, v30 offset:%d' % (Q(KA[s % 4]), 32 * (s + 4)))
        a('ds_read_b128 %s, v31 offset:%d' % (Q(KB[s % 4]), 32 * KTS + 32 * (s + 4)))
a('s_mov_b32 s54, 0x80000000')
a('s_mov_b32 s55, 0x80000000')
a('s_mov_b32 s56, 0')
a('s_mov_b32 s57, 0x80000000')
a('s_mov_b32 s58, 0xaaaaaaaa')
a('s_mov_b32 s59, 0xaaaaaaaa')
a('s_cmp_eq_u32 s50, 0')
a('s_cbranch_scc0 L_kwin_b')


def write_window(seq, off):
    for s in range(4):
        base = 80 + 4 * s
        for k in range(4):
            a('v_cvt_pk_bf16_f32 v%d, v%d, v%d' % (base + k, seq[s + 2 * k], seq[s + 2 * k + 1]))
        a('ds_write_b128 v38, %s offset:%d' % (Q(base), off + s * KCS))


def seg3_window(y0, y1, z, off):
    a('v_cndmask_b32 v%d, v%d, v%d, s[58:59]' % (z, y0, y1))
    write_window([y0, y0, y0, y0, z] + [y1] * 6, off)


a('v_cndmask_b32 v73, v73, v72, s[54:55]')
a('v_cndmask_b32 v74, v74, v72, s[56:57]')
write_window(list(range(64, 75)), 0)
seg3_window(75, 76, 77, 4 * 512)
a('v_cvt_pk_bf16_f32 v96, 0, v64')
a('v_cvt_pk_bf16_f32 v97, v65, v66')
a('v_cvt_pk_bf16_f32 v98, v64, v65')
a('v_subrev_u32 v99, 16, v38')
a('s_mov_b64 exec, 1')
a('ds_write_b32 v99, v96 offset:%d' % (1 * KCS + 12))
a('ds_write_b32 v99, v98 offset:%d' % (2 * KCS + 12))
a('ds_write_b64 v99, v[96:97] offset:%d' % (3 * KCS + 8))
a('s_mov_b64 exec, -1')
a('s_branch L_kwin_done')
a.label('L_kwin_b')
write_window([64, 64, 64, 65, 65, 65, 66, 66, 66, 66, 66], 0)
seg3_window(67, 68, 77, 4 * 512)
a.label('L_kwin_done')
a('s_lshl_b32 s51, %d, s4' % (1 << B_KC))
set_status('s51', 'v160', 'v20')
stamp(5)
a('s_mov_b32 s53, s50')
AR = lambda e: 64 + 4 * (e % 16)
FR = lambda e: 48 + 4 * (e % 4)
ACC0, ACC1 = 40, 44


def conv_loads(e, rel):
    a('ds_read_b64 %s, v32 offset:%d' % (P(AR(e)), 64 * rel))
    a('ds_read_b64 %s, v32 offset:%d' % (P(AR(e) + 2), 64 * rel + 8))
    a('ds_read_b128 %s, v33 offset:%d' % (Q(FR(e)), 1216 - 64 * rel))


def conv_step(e, both, first=False):
    conv_loads(e + 3, e + 3)
    a('s_waitcnt lgkmcnt(9)')
    a('v_mfma_f32_16x16x32_bf16 %s, %s, %s, %s' % (Q(ACC1), Q(AR(e)), Q(FR(e)), '0' if first else Q(ACC1)))
    if both:
        a('v_mfma_f32_16x16x32_bf16 %s, %s, %s, %s' % (Q(ACC0), Q(AR(e - 8)), Q(FR(e)), Q(ACC0)))


a.label('L_pair')
a('s_lshl_b32 s51, %d, s43' % (0x5 << B_KC))
a('s_lshl_b32 s7, 2, s53')
a('s_sub_u32 s7, s7, 1')
a('s_or_b32 s51, s51, s7')
a('s_lshl_b32 s60, s53, 10')
a('s_add_u32 s61, s60, 512')
a('v_mov_b32 v32, v35')
a('v_add_u32 v33, s61, v36')
a('v_add_u32 v34, s60, v37')
for k in range(4):
    a('v_mov_b32 v%d, 0' % (ACC0 + k))
a('s_mov_b32 s61, s53')
wait_status('s51', 'v160', 'v20')
if DEBUG:
    l = L('st')
    a('s_cmp_ge_u32 s53, 2')
    a('s_cbranch_scc1 %s' % l)
    stamp(6)
    a.label(l)
for e in range(3):
    conv_loads(e, e)
for e in range(8):
    conv_step(e, False, first=(e == 0))
a.label('L_conv_loop')
for e in range(8, 16):
    conv_step(e, True)
a('s_cmp_eq_u32 s61, 0')
a('s_cbranch_scc1 L_conv_done')
a('s_sub_u32 s61, s61, 1')
a('v_add_u32 v32, 1024, v32')
a('v_subrev_u32 v33, 1024, v33')
for e in range(8):
    conv_step(e, True)
a('s_branch L_conv_loop')
a.label('L_conv_done')
a('v_cvt_pk_bf16_f32 v20, v%d, v%d' % (ACC0, ACC0 + 1))
a('v_cvt_pk_bf16_f32 v21, v%d, v%d' % (ACC0 + 2, ACC0 + 3))
a('v_cvt_pk_bf16_f32 v22, v%d, v%d' % (ACC1, ACC1 + 1))
a('v_cvt_pk_bf16_f32 v23, v%d, v%d' % (ACC1 + 2, ACC1 + 3))
a('ds_write_b64 v34, v[20:21]')
a('ds_write_b64 v34, v[22:23] offset:512')
a('s_lshl_b32 s7, s53, 1')
a('s_add_u32 s7, s7, s43')
a('s_lshl_b32 s51, %d, s7' % (1 << B_Y))
set_status('s51', 'v160', 'v24')
if DEBUG:
    l = L('st')
    a('s_cmp_ge_u32 s53, 2')
    a('s_cbranch_scc1 %s' % l)
    stamp(7)
    a.label(l)
a('s_add_u32 s53, s53, 2')
a('s_cmp_lt_u32 s53, 4')
a('s_cbranch_scc1 L_pair')
finish()

a.label('L_io')
W8 = 20
CH = [22, 24, 26, 28]
T = [40, 42, 44, 46]
cexp_multi([(W8, 8.0, 40), (CH[1], 64.0, 42), (CH[2], 128.0, 44), (CH[3], 192.0, 46)], 10, 11)
a('v_mov_b32 v50, 0x00003f80')
a('ds_write_b32 v62, v50 offset:%d' % (32 * KTS))
kt_write(33, W8, 51, False)
for q in range(1, 4):
    kt_write(32 + 8 * q, CH[q], 51 + q, False)
for n in range(1, 8):
    jobs = []
    if n >= 2:
        jobs.append((CH[0], W8 if n == 2 else CH[0], W8, T[0]))
    for q in range(1, 4):
        jobs.append((CH[q], CH[q], W8, T[q]))
    cmul_multi(jobs)
    for q in range(4):
        if q == 0 and n < 2:
            continue
        kt_write(32 + 8 * q + n, CH[q], 50 + q, False)
a('s_lshl_b32 s51, %d, s4' % (1 << B_KT))
set_status('s51', 'v160', 'v50')
stamp(3)
a('s_sub_u32 s53, s4, 4')
a('s_lshl_b32 s7, s53, 6')
a('v_add_u32 v2, s7, v1')
a('v_mul_u32_u24 v3, 48, v2')
a('v_add_u32 v3, %d, v3' % WS_STATS)
a('s_lshl_b32 s7, s53, 11')
a('s_add_u32 s7, s7, %d' % XC)
a('v_lshl_add_u32 v4, v1, 4, s7')
a('v_lshlrev_b32 v5, 4, v2')
a('v_add_u32 v5, %d, v5' % (UB[0] + 512))
a('s_lshl_b32 s7, s3, 2')
a('v_lshl_add_u32 v6, v2, 13, s7')
a('s_mov_b32 s44, s36')
a('s_mov_b32 s45, s37')
a('s_mov_b32 s46, 0x200000')
a('s_mov_b32 s47, 0x00020000')
a('s_lshl_b32 s54, s49, 16')
a('s_and_b32 s55, s49, s52')
a('s_mov_b32 s56, 0x05040100')
a('s_mov_b32 s57, 0x07060302')
a('s_lshl_b32 s58, %d, s53' % (1 << B_X))


def io_read_x():
    wait_status('s58', 'v160', 'v7')
    a('ds_read_b128 v[32:35], v4')
    a('ds_read_b128 v[36:39], v4 offset:1024')
    a('s_waitcnt lgkmcnt(0)')
    for i in range(8):
        a('v_lshlrev_b32 v%d, 16, v%d' % (40 + 2 * i, 32 + i))
        a('v_and_b32 v%d, s52, v%d' % (41 + 2 * i, 32 + i))


a('s_cmp_ge_u32 s53, 2')
a('s_cbranch_scc1 L_io_poll')
io_read_x()
a.label('L_io_poll')
stamp(4)
a('s_mov_b32 s59, 0')
a.label('L_io_poll_loop')
a('global_load_dwordx4 v[20:23], v3, s[40:41] sc1')
a('global_load_dwordx4 v[24:27], v3, s[40:41] offset:16 sc1')
a('global_load_dwordx4 v[28:31], v3, s[40:41] offset:32 sc1')
a('s_add_u32 s59, s59, 1')
a('s_waitcnt vmcnt(0)')
a('v_cmp_ne_u32 vcc, s5, v23')
a('v_cmp_ne_u32 s[60:61], s5, v27')
a('v_cmp_ne_u32 s[62:63], s5, v31')
a('s_or_b64 vcc, vcc, s[60:61]')
a('s_or_b64 vcc, vcc, s[62:63]')
a('s_and_b64 exec, exec, vcc')
a('s_cbranch_execz L_io_poll_done')
a('s_sleep 2')
a('s_cmp_lt_u32 s59, %d' % POLL_MAX)
a('s_cbranch_scc1 L_io_poll_loop')
a.label('L_io_poll_done')
a('s_mov_b64 exec, -1')
stamp(5)
a('s_cmp_ge_u32 s53, 2')
a('s_cbranch_scc0 L_io_norm')
io_read_x()
a.label('L_io_norm')
MS = [20, 21, 22, 24, 25, 26, 28, 29]
for i in range(8):
    a('v_and_b32 v%d, s52, v%d' % (81 + 2 * i, MS[i]))
    a('v_lshlrev_b32 v%d, 16, v%d' % (80 + 2 * i, MS[i]))
for i in range(8):
    a('v_rcp_f32 v%d, v%d' % (81 + 2 * i, 81 + 2 * i))
    a('v_pk_add_f32 %s, %s, %s op_sel_hi:[1,0] neg_lo:[0,1] neg_hi:[0,1]' % (P(96 + 2 * i), P(40 + 2 * i), P(80 + 2 * i)))
for i in range(8):
    a('v_cvt_pk_bf16_f32 v%d, v%d, v%d' % (56 + i, 96 + 2 * i, 97 + 2 * i))
for i in range(8):
    a('v_lshlrev_b32 v%d, 16, v%d' % (96 + 2 * i, 56 + i))
    a('v_and_b32 v%d, s52, v%d' % (97 + 2 * i, 56 + i))
for i in range(8):
    a('v_pk_mul_f32 %s, %s, %s op_sel:[0,1] op_sel_hi:[1,1]' % (P(96 + 2 * i), P(96 + 2 * i), P(80 + 2 * i)))
for i in range(8):
    a('v_cvt_pk_bf16_f32 v%d, v%d, v%d' % (56 + i, 96 + 2 * i, 97 + 2 * i))
for u in range(4):
    a('v_perm_b32 v%d, v%d, v%d, s56' % (64 + u, 56 + 6 - 2 * u, 56 + 7 - 2 * u))
a('ds_write_b128 v5, v[64:67]')
for u in range(4):
    a('v_perm_b32 v%d, v%d, v%d, s57' % (68 + u, 56 + 6 - 2 * u, 56 + 7 - 2 * u))
a('ds_write_b128 v5, v[68:71] offset:%d' % (UB[1] - UB[0]))
a('s_lshl_b32 s51, %d, s53' % (1 << B_U))
set_status('s51', 'v160', 'v7')
stamp(6)
for i in range(8):
    a('v_lshlrev_b32 v%d, 16, v%d' % (80 + 2 * i, 56 + i))
    a('v_and_b32 v%d, s52, v%d' % (81 + 2 * i, 56 + i))
for i in range(8):
    a('v_pk_mul_f32 %s, %s, s[54:55]' % (P(96 + 2 * i), P(80 + 2 * i)))
for i in range(8):
    a('v_cvt_pk_bf16_f32 v%d, v%d, v%d' % (20 + i, 96 + 2 * i, 97 + 2 * i))
for i in range(8):
    a('v_lshlrev_b32 v%d, 16, v%d' % (96 + 2 * i, 20 + i))
    a('v_and_b32 v%d, s52, v%d' % (97 + 2 * i, 20 + i))
a('s_lshl_b32 s7, s53, 1')
a('s_lshl_b32 s51, %d, s7' % (3 << B_Y))
a('s_or_b32 s51, s51, %d' % (1 << B_IDX))
wait_status('s51', 'v160', 'v7', sleep=1)
stamp(7)
a('ds_read_b32 v7, v160 offset:%d' % (IDXW - STATUS))
a('ds_read_b128 v[64:67], v5 offset:%d' % (YB[0] - UB[0] - 512))
a('ds_read_b128 v[68:71], v5 offset:%d' % (YB[1] - UB[0] - 512))
a('s_movk_i32 s59, 0x1000')
a('s_waitcnt lgkmcnt(2)')
a('v_readfirstlane_b32 s60, v7')
a('s_lshr_b32 s61, s60, 3')
a('s_and_b32 s60, s60, 7')
a('s_lshr_b32 s7, s61, 6')
a('s_lshl_b64 s[62:63], 1, s61')
a('s_cmp_eq_u32 s7, s53')
a('s_cselect_b64 s[62:63], s[62:63], 0')
a('s_waitcnt lgkmcnt(0)')
specials = []
for i in range(8):
    t = 72 + 2 * (i % 2)
    o = 76 + (i % 2)
    o2 = 78 + (i % 2)
    for c in range(2):
        src = 64 + 4 * c + i // 2
        if i % 2 == 0:
            a('v_lshlrev_b32 v%d, 16, v%d' % (t + c, src))
        else:
            a('v_and_b32 v%d, s52, v%d' % (t + c, src))
    a('v_pk_add_f32 %s, %s, %s' % (P(t), P(t), P(96 + 2 * i)))
    a('v_cvt_pk_bf16_f32 v%d, v%d, v%d' % (o, t, t + 1))
    a('v_lshlrev_b32 v%d, 16, v%d' % (t, o))
    a('v_and_b32 v%d, s52, v%d' % (t + 1, o))
    a('v_pk_add_f32 %s, %s, %s' % (P(t), P(t), P(40 + 2 * i)))
    a('v_cvt_pk_bf16_f32 v%d, v%d, v%d' % (o, t, t + 1))
    a('v_lshlrev_b32 v%d, 16, v%d' % (t, o))
    a('v_and_b32 v%d, s52, v%d' % (t + 1, o))
    a('v_pk_add_f32 %s, %s, %s' % (P(t), P(t), P(80 + 2 * i)))
    a('v_cvt_pk_bf16_f32 v%d, v%d, v%d' % (o2, t, t + 1))
    st = 'buffer_store_dword v%d, v6, s[44:47], %s offen offset:%d' % (o2, 's59' if i >= 4 else '0', 1024 * (i % 4))
    a('s_cmp_eq_u32 s60, %d' % i)
    a('s_cbranch_scc1 L_sp_%d' % i)
    a(st)
    a.label('L_spb_%d' % i)
    specials.append((i, o, st))
finish()
for i, o, st in specials:
    a.label('L_sp_%d' % i)
    a('v_mov_b32 v7, %d' % (1 << B_T1))
    a('s_mov_b64 exec, s[62:63]')
    a('ds_write_b32 v160, v%d offset:%d' % (o, T1X - STATUS))
    a('ds_write_b32 v160, v%d offset:%d' % (56 + i, T1X + 4 - STATUS))
    a('ds_or_b32 v160, v7')
    a('s_not_b64 exec, s[62:63]')
    a(st)
    a('s_mov_b64 exec, -1')
    a('s_branch L_spb_%d' % i)

a.label('L_special')
a('s_getpc_b64 s[42:43]')
a.label('L_pc')
a('s_sub_u32 s42, s42, L_pc-%s' % NAME)
a('s_subb_u32 s43, s43, 0')
a('v_subrev_u32 v2, 512, v0')
a('v_lshlrev_b32 v2, 7, v2')
a('v_min_u32 v2, L_end-%s-4, v2' % NAME)
a('global_load_dword v3, v2, s[42:43]')
a('v_mov_b32 v160, %d' % STATUS)
a('s_mov_b32 s52, 0xffff0000')
a('s_waitcnt lgkmcnt(0)')
a('s_load_dword s6, s[40:41], 0')
a('s_cmp_eq_u32 s4, 8')
a('s_cbranch_scc1 L_moe')

a('s_mov_b32 s44, s8')
a('s_mov_b32 s45, s9')
a('s_mov_b32 s46, 0x200000')
a('s_mov_b32 s47, 0x00020000')
a('s_lshr_b32 s7, s2, 3')
a('s_lshl_b32 s7, s7, 16')
a('s_and_b32 s51, s2, 7')
a('s_lshl_b32 s51, s51, 7')
a('s_add_u32 s7, s7, s51')
a('v_lshl_add_u32 v4, v1, 10, s7')
a('buffer_load_dword v5, v4, s[44:47], 0 offen')
for k in range(8, 12):
    a('v_mov_b32 v%d, 0' % k)
a('v_and_b32 v6, 31, v1')
a('v_lshlrev_b32 v6, 4, v6')
a('v_lshrrev_b32 v7, 5, v1')
a('s_movk_i32 s51, %d' % (UB[1] - UB[0]))
a('v_mad_u32_u24 v6, v7, s51, v6')
a('ds_write_b128 v6, v[8:11] offset:%d' % UB[0] if UB[0] < 65536 else '')
if UB[0] >= 65536:
    a('v_add_u32 v6, %d, v6' % UB[0])
    a('ds_write_b128 v6, v[8:11]')
a('v_lshrrev_b32 v6, 1, v1')
a('v_and_b32 v7, 1, v1')
a('s_movk_i32 s51, %d' % KCS)
a('v_mul_u32_u24 v6, s51, v6')
a('v_lshl_add_u32 v6, v7, 4, v6')
a('v_add_u32 v6, %d, v6' % KC[0])
a('v_mov_b32 v7, %d' % STATUS)
a('v_cmp_gt_u32 vcc, 16, v1')
a('v_cndmask_b32 v6, v7, v6, vcc')
a('ds_write_b128 v6, v[8:11]')
a('v_lshrrev_b32 v6, 2, v1')
a('v_and_b32 v7, 3, v1')
a('v_lshl_add_u32 v6, v6, 3, v7')
a('s_lshl_b32 s7, s3, 2')
a('v_lshl_add_u32 v12, v6, 10, s7')
a('s_mul_i32 s7, s3, 48')
a('s_add_u32 s7, s7, %d' % WS_STATS)
a('v_lshl_add_u32 v13, v1, 4, s7')
a('s_lshl_b32 s7, s3, 4')
a('s_add_u32 s7, s7, %d' % WS_KEYS)
a('v_mov_b32 v7, s7')
a('s_mov_b64 s[54:55], 8')
a('s_mov_b64 s[56:57], 4')
a('v_cndmask_b32 v13, v13, v7, s[54:55]')
a('v_mul_u32_u24 v14, 12, v1')
a('v_min_u32 v14, 24, v14')
a('v_add_u32 v14, %d, v14' % STG)
a('v_mov_b32 v15, %d' % STG)
a('s_waitcnt lgkmcnt(0)')
a('s_mul_i32 s5, s6, 0x9E3779B1')
a('s_add_u32 s5, s5, 0x7F4A7C15')
a('v_mov_b32 v19, s5')
stamp(1)
a('s_barrier')
a('ds_read_b128 v[20:23], v15 offset:32')
a('ds_read_b128 v[24:27], v15 offset:48')
a('ds_read2_b32 v[16:17], v14 offset0:0 offset1:1')
a('ds_read_b32 v18, v14 offset:8')
a('s_waitcnt lgkmcnt(2)')
a('v_max3_u32 v20, v20, v21, v22')
a('v_max3_u32 v24, v24, v25, v26')
a('v_max3_u32 v20, v20, v23, v27')
a('v_max_u32 v20, v20, v24')
a('s_waitcnt lgkmcnt(0)')
a('v_cndmask_b32 v18, v18, v20, s[56:57]')
a('v_cndmask_b32 v16, v16, v20, s[54:55]')
a('s_mov_b64 exec, 15')
a('global_store_dwordx4 v13, v[16:19], s[40:41] sc1')
a('s_mov_b64 exec, -1')
stamp(2)


def col_group(q):
    for k in range(8):
        soff = (512 * q + 128 * (k & 3) + 4 * (k >> 2)) * 1024
        a('s_mov_b32 m0, %d' % (XC + 2048 * q + 256 * k))
        a('s_mov_b32 s51, %d' % soff)
        a('buffer_load_dword v12, s[44:47], s51 offen lds')


col_group(0)
for q in range(4):
    if q < 3:
        col_group(q + 1)
    a('s_waitcnt vmcnt(%d)' % (8 if q < 3 else 0))
    set_status('%d' % (1 << (B_X + q)), 'v160', 'v7')
    stamp(3 + q)
finish()

a.label('L_moe')
a('s_lshr_b32 s50, s3, 3')
a('s_and_b32 s51, s3, 7')
a('v_and_b32 v4, 15, v1')
a('v_lshrrev_b32 v5, 4, v1')
a('s_mul_i32 s7, s51, %d' % (64 * 3584))
a('s_lshl_b32 s53, s50, 7')
a('s_add_u32 s7, s7, s53')
a('v_lshl_add_u32 v6, v4, 3, s7')
a('s_movk_i32 s53, %d' % (8 * 3584))
a('v_mad_u32_u24 v6, v5, s53, v6')
a('s_lshl_b32 s7, s50, 16')
a('s_lshl_b32 s53, s51, 7')
a('s_add_u32 s7, s7, s53')
a('v_lshl_add_u32 v7, v4, 3, s7')
a('v_lshl_add_u32 v7, v5, 13, v7')
for base, ptr, size in ((44, 30, 512 * 3584), (56, 32, 512 * 3584), (60, 34, 1792 * 1024)):
    a('s_mov_b32 s%d, s%d' % (base, ptr))
    a('s_mov_b32 s%d, s%d' % (base + 1, ptr + 1))
    a('s_mov_b32 s%d, %d' % (base + 2, size))
    a('s_mov_b32 s%d, 0x00020000' % (base + 3))
a('v_lshlrev_b32 v8, 4, v1')
a('v_add_u32 v8, %d, v8' % WS_KEYS)
a('s_waitcnt lgkmcnt(0)')
a('s_mul_i32 s5, s6, 0x9E3779B1')
a('s_add_u32 s5, s5, 0x7F4A7C15')
stamp(1)
a('s_barrier')
a('s_cmp_ge_u32 s3, 224')
a('s_cbranch_scc1 L_moe_keys')
RB = lambda b, m: 16 + 16 * b + 2 * m
for h in range(2):
    for m in range(8):
        a('s_mov_b32 s53, %d' % ((32 * h + m) * 3584))
        a('buffer_load_dwordx2 %s, v6, s[44:47], s53 offen' % P(RB(h, m)))
        a('buffer_load_dwordx2 %s, v6, s[56:59], s53 offen' % P(RB(2 + h, m)))
for h in range(2):
    for m in range(8):
        if m % 4 == 0:
            a('s_mov_b32 s53, %d' % ((32 * h + m) * 1024))
        a('buffer_load_dwordx2 %s, v7, s[60:63], s53 offen offset:%d' % (P(RB(4 + h, m)), 1024 * (m % 4)))
a('s_mov_b32 s48, 0x05040100')
a('s_mov_b32 s49, 0x07060302')
TB = lambda b: 112 if b == 0 else 16 + 16 * (b - 1)
a('s_waitcnt vmcnt(16)')
stamp(2)


def transpose_block(b):
    for u in range(4):
        for dw in range(2):
            a('v_perm_b32 v%d, v%d, v%d, s48' % (TB(b) + 4 * (2 * dw) + u, RB(b, 2 * u + 1) + dw, RB(b, 2 * u) + dw))
            a('v_perm_b32 v%d, v%d, v%d, s49' % (TB(b) + 4 * (2 * dw + 1) + u, RB(b, 2 * u + 1) + dw, RB(b, 2 * u) + dw))


for b in range(4):
    transpose_block(b)
a('s_waitcnt vmcnt(0)')
for b in range(4, 6):
    transpose_block(b)
a.label('L_moe_keys')
stamp(3)
a('s_mov_b32 s53, 0')
a.label('L_key_loop')
for k in range(4):
    a('global_load_dwordx4 %s, v8, s[40:41] offset:%d sc1' % (Q(128 + 4 * k), 1024 * k))
a('s_add_u32 s53, s53, 1')
a('s_waitcnt vmcnt(0)')
a('v_cmp_ne_u32 vcc, s5, v131')
a('v_cmp_ne_u32 s[42:43], s5, v135')
a('s_or_b64 vcc, vcc, s[42:43]')
a('v_cmp_ne_u32 s[42:43], s5, v139')
a('s_or_b64 vcc, vcc, s[42:43]')
a('v_cmp_ne_u32 s[42:43], s5, v143')
a('s_or_b64 vcc, vcc, s[42:43]')
a('s_and_b64 exec, exec, vcc')
a('s_cbranch_execz L_key_done')
a('s_sleep 2')
a('s_cmp_lt_u32 s53, %d' % POLL_MAX)
a('s_cbranch_scc1 L_key_loop')
a.label('L_key_done')
a('s_mov_b64 exec, -1')
a('v_max3_u32 v128, v128, v132, v136')
a('v_max_u32 v128, v128, v140')
reduce64('v_max_u32', ['v128'])
a('v_readlane_b32 s54, v128, 63')
a('s_and_b32 s55, s54, 0xffff')
a('s_sub_u32 s55, 2047, s55')
a('s_and_b32 s55, s55, 2047')
stamp(4)
a('s_lshl_b32 s7, s55, 10')
a('s_lshl_b32 s53, s51, 7')
a('s_add_u32 s7, s7, s53')
a('v_lshl_add_u32 v9, v5, 4, s7')
a('global_load_dwordx4 v[96:99], v9, s[8:9]')
a('global_load_dwordx4 v[100:103], v9, s[8:9] offset:64')
a('s_lshr_b32 s7, s55, 3')
a('s_mul_i32 s7, s7, 48')
a('s_and_b32 s53, s55, 7')
a('s_mul_i32 s42, s53, 43')
a('s_lshr_b32 s42, s42, 7')
a('s_add_u32 s53, s53, s42')
a('s_lshl_b32 s53, s53, 2')
a('s_add_u32 s7, s7, s53')
a('s_add_u32 s7, s7, %d' % WS_STATS)
a('v_mov_b32 v10, s7')
a('global_load_dword v104, v10, s[40:41] sc1')
a('v_mov_b32 v10, s55')
a('v_mov_b32 v11, %d' % (1 << B_IDX))
a('s_mov_b64 exec, 1')
a('ds_write_b32 v160, v10 offset:%d' % (IDXW - STATUS))
a('ds_or_b32 v160, v11')
a('s_cmp_eq_u32 s2, 0')
a('s_cbranch_scc0 L_no_epoch')
a('s_add_u32 s7, s6, 1')
a('v_mov_b32 v10, 0')
a('v_mov_b32 v11, s7')
a('global_store_dword v10, v11, s[40:41] sc1')
a.label('L_no_epoch')
a('s_mov_b64 exec, -1')
a('s_and_b32 s7, s54, s52')
a('s_not_b32 s42, s7')
a('s_and_b32 s42, s42, s52')
a('s_xor_b32 s43, s7, 0x80000000')
a('s_bitcmp1_b32 s7, 31')
a('s_cselect_b32 s7, s43, s42')
a('v_mov_b32 v12, s7')
a('v_mul_f32 v12, %s, v12' % f32(-LOG2E))
a('v_exp_f32 v12, v12')
a('v_add_f32 v12, 1.0, v12')
a('v_rcp_f32 v12, v12')
a('v_cvt_pk_bf16_f32 v12, v12, v12')
a('v_and_b32 v12, s52, v12')
a('s_mov_b32 s42, 0xaaaaaaaa')
a('s_mov_b32 s43, 0xaaaaaaaa')
a('s_mov_b32 s44, 0xcccccccc')
a('s_mov_b32 s45, 0xcccccccc')
a('s_mov_b32 s46, 0xf0f0f0f0')
a('s_mov_b32 s47, 0xf0f0f0f0')
a('s_mov_b32 s48, 0xff00ff00')
a('s_mov_b32 s49, 0xff00ff00')
a('s_cmp_ge_u32 s3, 224')
a('s_cbranch_scc1 L_moe_idle')
a('s_lshl_b32 s7, s3, 10')
a('s_add_u32 s7, s7, %d' % WS_HOPA)
a('v_lshl_add_u32 v13, v1, 4, s7')
a('s_lshl_b32 s7, s50, 13')
a('s_add_u32 s7, s7, %d' % WS_HOPA)
a('v_lshl_add_u32 v14, v1, 4, s7')
a('v_add_u32 v15, 4096, v14')
a('s_waitcnt vmcnt(0)')
stamp(5)
a('v_and_b32 v3, s52, v104')
a('v_lshlrev_b32 v2, 16, v104')
a('v_rcp_f32 v3, v3')
for k in range(8):
    a('v_lshlrev_b32 v%d, 16, v%d' % (128 + 2 * k, 96 + k))
    a('v_and_b32 v%d, s52, v%d' % (129 + 2 * k, 96 + k))
for k in range(8):
    a('v_pk_add_f32 %s, %s, v[2:3] op_sel_hi:[1,0] neg_lo:[0,1] neg_hi:[0,1]' % (P(128 + 2 * k), P(128 + 2 * k)))
for k in range(8):
    a('v_cvt_pk_bf16_f32 v%d, v%d, v%d' % (96 + k, 128 + 2 * k, 129 + 2 * k))
for k in range(8):
    a('v_lshlrev_b32 v%d, 16, v%d' % (128 + 2 * k, 96 + k))
    a('v_and_b32 v%d, s52, v%d' % (129 + 2 * k, 96 + k))
for k in range(8):
    a('v_pk_mul_f32 %s, %s, v[2:3] op_sel:[0,1] op_sel_hi:[1,1]' % (P(128 + 2 * k), P(128 + 2 * k)))
for k in range(8):
    a('v_cvt_pk_bf16_f32 v%d, v%d, v%d' % (96 + k, 128 + 2 * k, 129 + 2 * k))
for h in range(2):
    for mat in range(2):
        for f in range(4):
            d = 128 + 16 * mat + 4 * f
            a('v_mfma_f32_16x16x32_bf16 %s, %s, %s, %s' % (Q(d), Q(TB(2 * mat + h) + 4 * f), Q(96 + 4 * h), '0' if h == 0 else Q(d)))


def select16(base, dst):
    for r in range(4):
        a('v_cndmask_b32 v%d, v%d, v%d, s[42:43]' % (base + r, base + r, base + 4 + r))
        a('v_cndmask_b32 v%d, v%d, v%d, s[42:43]' % (base + 8 + r, base + 8 + r, base + 12 + r))
    for r in range(4):
        a('v_cndmask_b32 v%d, v%d, v%d, s[44:45]' % (base + r, base + r, base + 8 + r))
    a('v_cndmask_b32 v%d, v%d, v%d, s[46:47]' % (base, base, base + 1))
    a('v_cndmask_b32 v%d, v%d, v%d, s[46:47]' % (base + 2, base + 2, base + 3))
    a('v_cndmask_b32 v%d, v%d, v%d, s[48:49]' % (dst, base, base + 2))


a('v_mov_b32 v110, 0')
a('v_mov_b32 v111, s5')
select16(128, 108)
select16(144, 109)
a('global_store_dwordx4 v13, v[108:111], s[40:41] sc1')
stamp(6)
a('s_sleep %d' % opt('sleepA', 20))
a('s_mov_b32 s53, 0')
a.label('L_hopa_loop')
for k in range(8):
    a('global_load_dwordx4 %s, %s, s[40:41] offset:%d sc1' % (Q(128 + 4 * k), 'v14' if k < 4 else 'v15', 1024 * (k % 4)))
a('s_add_u32 s53, s53, 1')
a('s_waitcnt vmcnt(0)')
a('v_cmp_ne_u32 vcc, s5, v131')
for k in range(1, 8):
    a('v_cmp_ne_u32 s[56:57], s5, v%d' % (131 + 4 * k))
    a('s_or_b64 vcc, vcc, s[56:57]')
a('s_and_b64 exec, exec, vcc')
a('s_cbranch_execz L_hopa_done')
a('s_sleep 2')
a('s_cmp_lt_u32 s53, %d' % POLL_MAX)
a('s_cbranch_scc1 L_hopa_loop')
a.label('L_hopa_done')
a('s_mov_b64 exec, -1')
stamp(7)
for k in range(4):
    a('v_pk_add_f32 %s, %s, %s' % (P(128 + 8 * k), P(128 + 8 * k), P(132 + 8 * k)))
a('v_pk_add_f32 v[128:129], v[128:129], v[136:137]')
a('v_pk_add_f32 v[144:145], v[144:145], v[152:153]')
a('v_pk_add_f32 v[128:129], v[128:129], v[144:145]')
a('v_cvt_pk_bf16_f32 v2, v128, v129')
a('v_lshlrev_b32 v3, 16, v2')
a('v_and_b32 v2, s52, v2')
a('v_mul_f32 v10, %s, v3' % f32(-LOG2E))
a('v_exp_f32 v10, v10')
a('v_add_f32 v10, 1.0, v10')
a('v_rcp_f32 v10, v10')
a('v_mul_f32 v10, v3, v10')
a('v_cvt_pk_bf16_f32 v10, v10, v10')
a('v_and_b32 v10, s52, v10')
a('v_mul_f32 v10, v10, v2')
a('v_cvt_pk_bf16_f32 v10, v10, v10')
a('v_lshlrev_b32 v11, 1, v1')
a('v_add_u32 v11, %d, v11' % HS)
a('ds_write_b16 v11, v10')
a('v_lshlrev_b32 v11, 4, v5')
a('v_add_u32 v11, %d, v11' % HS)
a('ds_read_b128 v[96:99], v11')
a('ds_read_b128 v[100:103], v11 offset:64')
a('s_lshl_b32 s7, s3, 9')
a('s_add_u32 s7, s7, %d' % WS_HOPB)
a('v_lshl_add_u32 v13, v1, 3, s7')
a('s_waitcnt lgkmcnt(0)')
for h in range(2):
    for f in range(4):
        d = 128 + 4 * f
        a('v_mfma_f32_16x16x32_bf16 %s, %s, %s, %s' % (Q(d), Q(TB(4 + h) + 4 * f), Q(96 + 4 * h), '0' if h == 0 else Q(d)))
select16(128, 108)
a('v_mov_b32_dpp v109, v108 quad_perm:[1,1,3,3] row_mask:0xf bank_mask:0xf')
a('s_not_b64 exec, s[42:43]')
a('global_store_dwordx4 v13, v[108:111], s[40:41] sc1')
a('s_mov_b64 exec, -1')
stamp(8)
a('s_sleep %d' % opt('sleepB', 20))
a('s_branch L_moe_final')
a.label('L_moe_idle')
a('s_sleep %d' % opt('sleepI', 70))
a.label('L_moe_final')
a('s_lshr_b32 s7, s3, 5')
a('s_lshl_b32 s7, s7, 9')
a('s_and_b32 s53, s3, 31')
a('s_lshl_b32 s53, s53, 4')
a('s_add_u32 s7, s7, s53')
a('s_add_u32 s7, s7, %d' % WS_HOPB)
a('v_lshl_add_u32 v14, v1, 12, s7')
a('v_mov_b32 v128, 0')
a('v_mov_b32 v129, 0')
a('s_mov_b32 s53, 0')
a('s_mov_b64 exec, 0xfffffff')
a.label('L_hopb_loop')
a('global_load_dwordx4 v[128:131], v14, s[40:41] sc1')
a('s_add_u32 s53, s53, 1')
a('s_waitcnt vmcnt(0)')
a('v_cmp_ne_u32 vcc, s5, v131')
a('s_and_b64 exec, exec, vcc')
a('s_cbranch_execz L_hopb_done')
a('s_sleep 2')
a('s_cmp_lt_u32 s53, %d' % POLL_MAX)
a('s_cbranch_scc1 L_hopb_loop')
a.label('L_hopb_done')
a('s_mov_b64 exec, -1')
stamp(9)
reduce64('v_add_f32', ['v128', 'v129'])
a('v_readlane_b32 s42, v128, 63')
a('v_readlane_b32 s43, v129, 63')
a('v_mov_b32 v3, s43')
a('v_cvt_pk_bf16_f32 v2, s42, v3')
a('v_and_b32 v3, s52, v2')
a('v_lshlrev_b32 v2, 16, v2')
a('v_pk_mul_f32 v[2:3], v[2:3], v[12:13] op_sel_hi:[1,0]')
a('v_cvt_pk_bf16_f32 v2, v2, v3')
a('v_and_b32 v3, s52, v2')
a('v_lshlrev_b32 v2, 16, v2')
a('s_lshl_b32 s42, s55, 10')
a('s_lshl_b32 s43, s3, 2')
a('s_add_u32 s42, s42, s43')
a('v_mov_b32 v9, s42')
wait_status('%d' % (1 << B_T1), 'v160', 'v10')
a('ds_read_b64 v[4:5], v160 offset:%d' % (T1X - STATUS))
a('s_waitcnt lgkmcnt(0)')
a('v_lshlrev_b32 v6, 16, v5')
a('v_and_b32 v7, s52, v5')
a('v_pk_add_f32 v[2:3], v[2:3], v[6:7]')
a('v_cvt_pk_bf16_f32 v2, v2, v3')
a('v_and_b32 v3, s52, v2')
a('v_lshlrev_b32 v2, 16, v2')
a('v_lshlrev_b32 v6, 16, v4')
a('v_and_b32 v7, s52, v4')
a('v_pk_add_f32 v[2:3], v[2:3], v[6:7]')
a('v_cvt_pk_bf16_f32 v2, v2, v3')
a('s_mov_b64 exec, 1')
a('global_store_dword v9, v2, s[36:37]')
a('s_mov_b64 exec, -1')
finish()
a.label('L_exit')
a('s_endpgm')
a.label('L_end')

body = a.finalize()
hdr = open('parallel_sum__ssm_conv_s4__moe_arch_mod__prompt.s.ref').read().split('; Override launch')[0]
src = hdr
src += '; Generated by work/gen.py (hand-written instruction streams, scripted unrolling and wait-state padding).\n'
src += '; @launch grid=(256,1,1) block=(640,1,1) lds=%d\n' % LDS_BYTES
src += '.amdgcn_target "amdgcn-amd-amdhsa--gfx950"\n.text\n.globl %s\n.p2align 8\n.type %s,@function\n' % (NAME, NAME)
src += body
src += '''.section .rodata,"a"
.p2align 6
.amdhsa_kernel %s
  .amdhsa_next_free_vgpr 168
  .amdhsa_next_free_sgpr 96
  .amdhsa_accum_offset 168
  .amdhsa_group_segment_fixed_size 0
  .amdhsa_kernarg_size 136
  .amdhsa_user_sgpr_count 2
  .amdhsa_user_sgpr_kernarg_segment_ptr 1
  .amdhsa_system_sgpr_workgroup_id_x 1
.end_amdhsa_kernel
''' % NAME
open(OUT, 'w').write(src)
print('wrote', OUT, 'lds', LDS_BYTES)
```

```python
import sys, struct, math
from asmlib import Asm

NAME = 'parallel_sum__ssm_conv_s4__moe_arch_mod__prompt_kernel'
DEBUG = '--debug' in sys.argv
SPAN = '--span' in sys.argv
OUT = [a for a in sys.argv[1:] if not a.startswith('--')]
OUT = OUT[0] if OUT else 'parallel_sum__ssm_conv_s4__moe_arch_mod__prompt.s'


def opt(name, default):
    for a in sys.argv:
        if a.startswith('--' + name + '='):
            return int(a.split('=')[1], 0)
    return default


def f32(x):
    return '0x%08x' % struct.unpack('<I', struct.pack('<f', x))[0]


WS_STATS = 4096
WS_KEYS = 16384
WS_HOPA = 32768
WS_HOPB = 262144
WS_DBG = 1 << 20
KTS = 528
KT = [0, 64 * KTS]
KCS = 4160
KC = [2 * 64 * KTS, 2 * 64 * KTS + 4 * KCS]
UB = [KC[1] + 4 * KCS, KC[1] + 4 * KCS + 4608]
YB = [UB[1] + 4608, UB[1] + 4608 + 4096]
XC = YB[1] + 4096
MISC = XC + 8192
STG = MISC
STATUS = MISC + 64
IDXW = MISC + 68
T1X = MISC + 72
HS = MISC + 128
LDS_BYTES = MISC + 256
B_U, B_KC, B_X, B_Y, B_IDX, B_T1, B_KT = 0, 4, 8, 12, 20, 21, 22

POLL_MAX = 1 << 16
LOG2E = 1.4426950408889634
LOG2E_HI = struct.unpack('<f', struct.pack('<f', LOG2E))[0]
LOG2E_LO = LOG2E - LOG2E_HI

a = Asm()
uid = [0]


def L(p):
    uid[0] += 1
    return 'L_%s_%d' % (p, uid[0])


def stamp(n):
    if DEBUG:
        a('s_memrealtime s[%d:%d]' % (64 + 2 * n, 65 + 2 * n))


NSTAMP = 12


def finish():
    if DEBUG:
        stamp(NSTAMP - 1)
        a('s_waitcnt lgkmcnt(0)')
        a('s_mov_b64 exec, 1')
        a('s_mul_i32 s7, s2, 10')
        a('s_add_u32 s7, s7, s4')
        a('s_lshl_b32 s7, s7, 6')
        a('s_add_u32 s7, s7, %d' % WS_DBG)
        a('v_mov_b32 v2, s7')
        for n in range(NSTAMP):
            a('v_mov_b32 v3, s%d' % (64 + 2 * n))
            a('global_store_dword v2, v3, s[40:41] offset:%d' % (4 * n))
    if SPAN:
        l = L('spanlbl')
        a('s_waitcnt vmcnt(0)')
        a('s_memrealtime s[66:67]')
        a('s_cmp_ge_u32 s2, 8')
        a('s_cbranch_scc1 %s' % l)
        a('s_sub_u32 s7, s4, 7')
        a('s_cmp_ge_u32 s7, 2')
        a('s_cbranch_scc1 %s' % l)
        a('s_waitcnt lgkmcnt(0)')
        a('s_mov_b64 exec, 1')
        a('s_lshl_b32 s7, s7, 3')
        a('s_add_u32 s7, s7, s2')
        a('s_lshl_b32 s7, s7, 2')
        a('v_mov_b32 v2, s7')
        a('s_sub_u32 s64, s66, s64')
        a('v_mov_b32 v3, s64')
        a('global_store_dword v2, v3, s[38:39]')
        a.label(l)
    a('s_endpgm')


def wait_status(need, vaddr, vtmp, sleep=0):
    l = L('ws')
    a.label(l)
    if sleep:
        a('s_sleep %d' % sleep)
    a('ds_read_b32 %s, %s' % (vtmp, vaddr))
    a('s_sub_u32 s88, s88, 1')
    a('s_cbranch_scc1 L_exit')
    a('s_waitcnt lgkmcnt(0)')
    a('v_readfirstlane_b32 s7, %s' % vtmp)
    a('s_and_b32 s7, s7, %s' % need)
    a('s_cmp_eq_u32 s7, %s' % need)
    a('s_cbranch_scc0 %s' % l)


def set_status(bits, vaddr, vtmp):
    a('s_mov_b64 exec, 1')
    a('v_mov_b32 %s, %s' % (vtmp, bits))
    a('ds_or_b32 %s, %s' % (vaddr, vtmp))
    a('s_mov_b64 exec, -1')


def reduce64(op, regs):
    for step in ('row_shr:1 row_mask:0xf', 'row_shr:2 row_mask:0xf', 'row_shr:4 row_mask:0xf', 'row_shr:8 row_mask:0xf',
                 'row_bcast:15 row_mask:0xa', 'row_bcast:31 row_mask:0xc'):
        for r in regs:
            a('%s_dpp %s, %s, %s %s bank_mask:0xf' % (op, r, r, r, step))


def P(n):
    return 'v[%d:%d]' % (n, n + 1)


def Q(n):
    return 'v[%d:%d]' % (n, n + 3)


def cmul(d, z, w, t):
    a('v_pk_mul_f32 %s, %s, %s op_sel:[0,0] op_sel_hi:[0,1]' % (P(t), P(z), P(w)))
    a('v_pk_fma_f32 %s, %s, %s, %s op_sel:[1,1,0] op_sel_hi:[1,0,1] neg_lo:[1,0,0]' % (P(d), P(z), P(w), P(t)))


def cmul_multi(jobs):
    for d, z, w, t in jobs:
        a('v_pk_mul_f32 %s, %s, %s op_sel:[0,0] op_sel_hi:[0,1]' % (P(t), P(z), P(w)))
    for d, z, w, t in jobs:
        a('v_pk_fma_f32 %s, %s, %s, %s op_sel:[1,1,0] op_sel_hi:[1,0,1] neg_lo:[1,0,0]' % (P(d), P(z), P(w), P(t)))


def cexp_multi(jobs, al, be):
    for d, l, t in jobs:
        a('v_mul_f32 v%d, %s, v%d' % (t, f32(l), al))
        a('v_mul_f32 v%d, %s, v%d' % (t + 1, f32(l), be))
    for d, l, t in jobs:
        a('v_exp_f32 v%d, v%d' % (t, t))
        a('v_fract_f32 v%d, v%d' % (t + 1, t + 1))
    for d, l, t in jobs:
        a('v_cos_f32 v%d, v%d' % (d, t + 1))
        a('v_sin_f32 v%d, v%d' % (d + 1, t + 1))
    for d, l, t in jobs:
        a('v_pk_mul_f32 %s, %s, %s op_sel:[0,0] op_sel_hi:[1,0]' % (P(d), P(d), P(t)))


a.label(NAME)
a('s_cmp_ge_u32 s2, 256')
a('s_cbranch_scc1 L_exit')
a('s_load_dwordx16 s[8:23], s[0:1], 0')
a('s_load_dwordx16 s[24:39], s[0:1], 64')
a('s_load_dwordx2 s[40:41], s[0:1], 128')
stamp(0)
if SPAN:
    a('s_memrealtime s[64:65]')
a('v_lshrrev_b32 v2, 6, v0')
a('v_and_b32 v1, 63, v0')
a('s_mov_b32 s88, 0x400000')
a('v_readfirstlane_b32 s4, v2')
a('s_and_b32 s3, s2, 7')
a('s_lshl_b32 s3, s3, 5')
a('s_lshr_b32 s7, s2, 3')
a('s_add_u32 s3, s3, s7')
a('s_cmp_ge_u32 s4, 8')
a('s_cbranch_scc1 L_special')

a('s_lshl_b32 s42, s3, 3')
a('s_add_u32 s42, s42, s4')
a('s_lshl_b32 s7, s42, 10')
a('v_lshlrev_b32 v17, 4, v1')
a('v_add_u32 v18, s7, v17')
a('s_and_b32 s43, s4, 1')
a('s_lshl_b32 s7, s3, 1')
a('s_add_u32 s7, s7, s43')
a('s_lshl_b32 s7, s7, 8')
a('s_bfe_u32 s50, s4, 0x10001')
a('s_lshl_b32 s51, s50, 7')
a('s_add_u32 s7, s7, s51')
a('v_lshl_add_u32 v19, v1, 1, s7')
for r in range(10, 16):
    a('v_mov_b32 v%d, 0' % r)
a('s_lshl_b32 s7, s3, 2')
a('s_waitcnt lgkmcnt(0)')
a('global_load_dwordx4 v[2:5], v18, s[8:9]')
a('global_load_dwordx4 v[6:9], v17, s[28:29]')
a('s_load_dword s6, s[40:41], 0')
a('s_load_dword s48, s[22:23], s7')
a('s_load_dword s49, s[24:25], s7')
a('global_load_short_d16_hi v10, v19, s[10:11]')
a('global_load_short_d16_hi v11, v19, s[12:13]')
a('global_load_short_d16_hi v12, v19, s[14:15]')
a('global_load_short_d16_hi v13, v19, s[16:17]')
a('global_load_short_d16_hi v14, v19, s[18:19]')
a('global_load_short_d16_hi v15, v19, s[20:21]')
a('s_mov_b32 s52, 0xffff0000')
a('v_mov_b32 v160, %d' % STATUS)
a('s_mul_i32 s7, s43, %d' % KT[1])
a('s_lshl_b32 s51, s50, 8')
a('s_add_u32 s7, s7, s51')
a('v_lshl_add_u32 v62, v1, 2, s7')
a('s_waitcnt lgkmcnt(0)')
a('s_mul_i32 s5, s6, 0x9E3779B1')
a('s_add_u32 s5, s5, 0x7F4A7C15')
a('s_lshl_b32 s7, s48, 16')
a('s_and_b32 s51, s48, s52')
a('s_cmp_eq_u32 s43, 0')
a('s_cselect_b32 s7, s7, s51')
a('v_mov_b32 v20, s7')
a('v_mul_f32 v21, %s, v20' % f32(LOG2E_HI))
a('v_mov_b32 v22, %s' % f32(LOG2E_HI))
a('v_fma_f32 v22, v20, v22, -v21')
a('v_fmac_f32 v22, %s, v20' % f32(LOG2E_LO))
a('v_exp_f32 v21, v21')
a('v_mul_f32 v22, %s, v22' % f32(math.log(2.0)))
a('v_fmac_f32 v21, v21, v22')
a('v_cvt_pk_bf16_f32 v21, v21, v21')
a('v_and_b32 v16, s52, v21')
a('s_waitcnt vmcnt(7)')
stamp(1)
for k in range(4):
    a('v_lshlrev_b32 v%d, 16, v%d' % (20 + 2 * k, 2 + k))
    a('v_and_b32 v%d, s52, v%d' % (21 + 2 * k, 2 + k))
a('v_readfirstlane_b32 s44, v20')
for k in range(4):
    a('v_pk_add_f32 %s, %s, s[44:45] op_sel_hi:[1,0] neg_lo:[0,1] neg_hi:[0,1]' % (P(28 + 2 * k), P(20 + 2 * k)))
a('v_pk_add_f32 v[36:37], v[28:29], v[30:31]')
a('v_pk_mul_f32 v[40:41], v[28:29], v[28:29]')
a('v_pk_add_f32 v[38:39], v[32:33], v[34:35]')
a('v_pk_fma_f32 v[40:41], v[30:31], v[30:31], v[40:41]')
a('v_pk_add_f32 v[36:37], v[36:37], v[38:39]')
a('v_pk_fma_f32 v[40:41], v[32:33], v[32:33], v[40:41]')
a('v_add_f32 v36, v36, v37')
a('v_pk_fma_f32 v[40:41], v[34:35], v[34:35], v[40:41]')
a('v_add_f32 v40, v40, v41')
reduce64('v_add_f32', ['v36', 'v40'])
a('v_readlane_b32 s46, v36, 63')
a('v_readlane_b32 s47, v40, 63')
a('v_mov_b32 v37, %s' % f32(1.0 / 512))
a('v_mul_f32 v36, s46, v37')
a('v_mul_f32 v40, s47, v37')
a('v_fma_f32 v40, -v36, v36, v40')
a('v_add_f32 v36, s44, v36')
a('v_max_f32 v40, 0, v40')
a('v_cvt_pk_bf16_f32 v41, v36, v40')
a('v_and_b32 v40, s52, v41')
a('v_lshlrev_b32 v36, 16, v41')
a('v_add_f32 v40, %s, v40' % f32(1e-5))
a('v_cvt_pk_bf16_f32 v40, v40, v40')
a('v_and_b32 v40, s52, v40')
a('v_sqrt_f32 v40, v40')
for k in range(4):
    a('v_pk_add_f32 %s, %s, v[36:37] op_sel_hi:[1,0] neg_lo:[0,1] neg_hi:[0,1]' % (P(28 + 2 * k), P(20 + 2 * k)))
a('v_cvt_pk_bf16_f32 v40, v40, v40')
a('v_and_b32 v40, s52, v40')
a('v_rcp_f32 v38, v40')
a('v_bfi_b32 v42, s52, v40, v41')
for k in range(4):
    a('v_cvt_pk_bf16_f32 v%d, v%d, v%d' % (20 + k, 28 + 2 * k, 29 + 2 * k))
for k in range(4):
    a('v_lshlrev_b32 v%d, 16, v%d' % (28 + 2 * k, 20 + k))
    a('v_and_b32 v%d, s52, v%d' % (29 + 2 * k, 20 + k))
for k in range(4):
    a('v_pk_mul_f32 %s, %s, v[38:39] op_sel_hi:[1,0]' % (P(28 + 2 * k), P(28 + 2 * k)))
for k in range(4):
    a('v_cvt_pk_bf16_f32 v%d, v%d, v%d' % (20 + k, 28 + 2 * k, 29 + 2 * k))
a('s_waitcnt vmcnt(6)')
a('v_mov_b32 v36, 0')
a('v_mov_b32 v37, 0')
a('v_dot2_f32_bf16 v36, v20, v6, v36')
a('v_dot2_f32_bf16 v37, v21, v7, v37')
a('v_dot2_f32_bf16 v36, v22, v8, v36')
a('v_dot2_f32_bf16 v37, v23, v9, v37')
a('v_add_f32 v36, v36, v37')
reduce64('v_add_f32', ['v36'])
a('v_readlane_b32 s46, v36, 63')
a('s_sub_u32 s47, 2047, s42')
a('v_cvt_pk_bf16_f32 v36, s46, s46')
a('v_ashrrev_i32 v37, 31, v36')
a('v_or_b32 v37, 0x80000000, v37')
a('v_xor_b32 v36, v36, v37')
a('v_mov_b32 v37, s47')
a('v_bfi_b32 v43, s52, v36, v37')
a('s_lshl_b32 s7, s4, 2')
a('s_add_u32 s7, s7, %d' % STG)
a('v_mov_b32 v36, s7')
a('s_mov_b64 exec, 1')
a('ds_write2_b32 v36, v42, v43 offset0:0 offset1:8')
a('s_mov_b64 exec, -1')
a('s_waitcnt lgkmcnt(0)')
stamp(2)
a('s_barrier')
a('s_waitcnt vmcnt(0)')
a('v_mul_f32 v10, v16, v10')
a('v_mul_f32 v11, v16, v11')
a('v_mul_f32 v10, %s, v10' % f32(LOG2E))
a('v_mul_f32 v11, %s, v11' % f32(1.0 / (2 * math.pi)))
a('s_cmp_ge_u32 s4, 4')
a('s_cbranch_scc1 L_io')


def kt_write(row, pair, tmp, neg):
    a('v_cvt_pk_bf16_f32 v%d, v%d, %sv%d' % (tmp, pair, '-' if neg else '', pair + 1))
    a('ds_write_b32 v62, v%d offset:%d' % (tmp, row * KTS))


W1, W2, W4, W8, G, C0 = 20, 22, 24, 26, 28, 30
cexp_multi([(W1, 1.0, 40), (G, 256.0, 42), (W8, 8.0, 44)], 10, 11)
a('v_pk_mul_f32 v[12:13], v[12:13], v[16:17] op_sel_hi:[1,0]')
cmul_multi([(C0, 14, 12, 40), (W2, W1, W1, 42)])
E0, O0, H = 32, 34, 36
T = [40, 42, 44, 46, 48]
cmul_multi([(O0, C0, W1, T[0]), (H, C0, G, T[1]), (W4, W2, W2, T[2])])
kt_write(0, C0, 50, True)
kt_write(1, O0, 51, True)
kt_write(13, H, 52, True)
Z1 = 38
Hs = {1: H}
Hn = [54, 56, 58, 60, 52 + 12, 66]
cur_e, cur_o, cur_b = C0, O0, H
step_regs = [(E0, O0, Z1)]
hprev = H
for n in range(5):
    jobs = [(E0, cur_e, W2, T[0]), (Z1, cur_b, W2, T[2]), (Hn[n], hprev, G, T[3])]
    if n < 4:
        jobs.insert(1, (O0, cur_o, W2, T[1]))
    cmul_multi(jobs)
    cur_e, cur_b, hprev = E0, Z1, Hn[n]
    kt_write(2 * n + 2, E0, 50, True)
    if n < 4:
        kt_write(2 * n + 3, O0, 51, True)
    kt_write(14 + n, Z1, 52, True)
    kt_write({0: 21, 1: 26, 2: 11, 3: 19, 4: 24}[n], Hn[n], 53, True)
H2, H3, H4, H5, H6, H7 = Hn
cmul_multi([(H7, H6, G, T[0]), (E0, H2, W4, T[1]), (O0, H3, W4, T[2]), (H2, H2, W8, T[3]), (H3, H3, W8, T[4])])
kt_write(29, H7, 50, True)
kt_write(22, E0, 51, True)
kt_write(27, O0, 52, True)
kt_write(23, H2, 53, True)
kt_write(28, H3, 50, True)
cmul_multi([(H4, H4, W8, T[0]), (H5, H5, W8, T[1]), (H6, H6, W8, T[2]), (H7, H7, W8, T[3])])
kt_write(12, H4, 50, True)
kt_write(20, H5, 51, True)
kt_write(25, H6, 52, True)
kt_write(30, H7, 53, True)
a('s_lshl_b32 s51, %d, s4' % (1 << B_KT))
set_status('s51', 'v160', 'v50')
stamp(3)
tabA0 = [min(r, 12) for r in range(16)]
tabA1 = [0, 0, 1, 2, 2, 2, 3, 4, 4, 4, 5, 6, 7, 7, 7, 7]
tabB = [min(r, 4) for r in range(16)]


def nib64(t):
    v = sum(x << (4 * i) for i, x in enumerate(t))
    return v & 0xffffffff, v >> 32


a('s_cmp_eq_u32 s50, 0')
for (sreg, ta, tb) in ((54, tabA0, tabB), (56, tabA1, tabB)):
    la, ha = nib64(ta)
    lb, hb = nib64(tb)
    a('s_mov_b32 s%d, 0x%x' % (sreg, lb))
    a('s_mov_b32 s%d, 0x%x' % (sreg + 1, hb))
    a('s_cmov_b32 s%d, 0x%x' % (sreg, la))
    a('s_cmov_b32 s%d, 0x%x' % (sreg + 1, ha))
a('s_cselect_b32 s58, 0, 21')
a('s_cselect_b32 s59, 13, 26')
a('v_and_b32 v20, 31, v1')
a('v_and_b32 v21, 4, v20')
a('v_cmp_ne_u32 vcc, 0, v21')
a('v_and_b32 v21, 3, v20')
a('v_lshrrev_b32 v22, 3, v20')
a('v_lshl_add_u32 v21, v22, 2, v21')
a('v_lshlrev_b32 v21, 2, v21')
a('v_mov_b32 v22, s54')
a('v_mov_b32 v23, s55')
a('v_mov_b32 v24, s56')
a('v_mov_b32 v25, s57')
a('v_mov_b32 v26, s58')
a('v_mov_b32 v27, s59')
a('v_cndmask_b32 v22, v22, v24, vcc')
a('v_cndmask_b32 v23, v23, v25, vcc')
a('v_cndmask_b32 v26, v26, v27, vcc')
a('v_lshrrev_b64 v[22:23], v21, v[22:23]')
a('v_and_b32 v22, 15, v22')
a('v_add_u32 v22, v22, v26')
a('s_mul_i32 s7, s43, %d' % KT[1])
a('v_lshrrev_b32 v23, 5, v1')
a('v_lshl_add_u32 v23, v23, 4, s7')
a('s_movk_i32 s51, %d' % KTS)
a('v_mad_u32_u24 v30, v22, s51, v23')
a('v_mad_u32_u24 v31, v20, s51, v23')
a('v_and_b32 v20, 15, v1')
a('v_lshrrev_b32 v21, 4, v1')
a('v_add_u32 v22, 1, v20')
a('v_and_b32 v23, 3, v22')
a('v_lshrrev_b32 v22, 2, v22')
a('s_mul_i32 s7, s43, %d' % (KC[1] - KC[0]))
a('s_add_u32 s7, s7, %d' % KC[0])
a('s_movk_i32 s51, %d' % KCS)
a('v_mov_b32 v35, s7')
a('v_mad_u32_u24 v35, v23, s51, v35')
a('v_lshl_add_u32 v35, v22, 3, v35')
a('v_lshl_add_u32 v35, v21, 4, v35')
a('s_mul_i32 s51, s43, %d' % (UB[1] - UB[0]))
a('s_add_u32 s51, s51, %d' % (UB[0] + 16 * 33 - 1216))
a('v_lshlrev_b32 v22, 1, v20')
a('v_sub_u32 v22, v22, v21')
a('v_lshl_add_u32 v36, v22, 4, s51')
a('s_mul_i32 s51, s43, %d' % (YB[1] - YB[0]))
a('s_add_u32 s51, s51, %d' % YB[0])
a('v_lshl_add_u32 v37, v20, 5, s51')
a('v_lshl_add_u32 v37, v21, 3, v37')
a('s_lshl_b32 s51, s50, 10')
a('s_add_u32 s7, s7, s51')
a('s_add_u32 s7, s7, 32')
a('v_lshl_add_u32 v38, v1, 4, s7')
a('s_lshl_b32 s51, %d, s43' % (0x55 << B_KT))
wait_status('s51', 'v160', 'v20')
stamp(4)
KA = [80, 84, 88, 92]
KB = [96, 100, 104, 108]
for s in range(4):
    a('ds_read_b128 %s, v30 offset:%d' % (Q(KA[s]), 32 * s))
    a('ds_read_b128 %s, v31 offset:%d' % (Q(KB[s]), 32 * KTS + 32 * s))
for s in range(16):
    a('s_waitcnt lgkmcnt(%d)' % min(6, 2 * (15 - s)))
    a('v_mfma_f32_32x32x16_bf16 v[64:79], %s, %s, %s' % (Q(KA[s % 4]), Q(KB[s % 4]), '0' if s == 0 else 'v[64:79]'))
    if s + 4 < 16:
        a('ds_read_b128 %s, v30 offset:%d' % (Q(KA[s % 4]), 32 * (s + 4)))
        a('ds_read_b128 %s, v31 offset:%d' % (Q(KB[s % 4]), 32 * KTS + 32 * (s + 4)))
a('s_mov_b32 s54, 0x80000000')
a('s_mov_b32 s55, 0x80000000')
a('s_mov_b32 s56, 0')
a('s_mov_b32 s57, 0x80000000')
a('s_mov_b32 s58, 0xaaaaaaaa')
a('s_mov_b32 s59, 0xaaaaaaaa')
a('s_cmp_eq_u32 s50, 0')
a('s_cbranch_scc0 L_kwin_b')


def write_window(seq, off):
    for s in range(4):
        base = 80 + 4 * s
        for k in range(4):
            a('v_cvt_pk_bf16_f32 v%d, v%d, v%d' % (base + k, seq[s + 2 * k], seq[s + 2 * k + 1]))
        a('ds_write_b128 v38, %s offset:%d' % (Q(base), off + s * KCS))


def seg3_window(y0, y1, z, off):
    a('v_cndmask_b32 v%d, v%d, v%d, s[58:59]' % (z, y0, y1))
    write_window([y0, y0, y0, y0, z] + [y1] * 6, off)


a('v_cndmask_b32 v73, v73, v72, s[54:55]')
a('v_cndmask_b32 v74, v74, v72, s[56:57]')
write_window(list(range(64, 75)), 0)
seg3_window(75, 76, 77, 4 * 512)
a('v_cvt_pk_bf16_f32 v96, 0, v64')
a('v_cvt_pk_bf16_f32 v97, v65, v66')
a('v_cvt_pk_bf16_f32 v98, v64, v65')
a('v_subrev_u32 v99, 16, v38')
a('s_mov_b64 exec, 1')
a('ds_write_b32 v99, v96 offset:%d' % (1 * KCS + 12))
a('ds_write_b32 v99, v98 offset:%d' % (2 * KCS + 12))
a('ds_write_b64 v99, v[96:97] offset:%d' % (3 * KCS + 8))
a('s_mov_b64 exec, -1')
a('s_branch L_kwin_done')
a.label('L_kwin_b')
write_window([64, 64, 64, 65, 65, 65, 66, 66, 66, 66, 66], 0)
seg3_window(67, 68, 77, 4 * 512)
a.label('L_kwin_done')
a('s_lshl_b32 s51, %d, s4' % (1 << B_KC))
set_status('s51', 'v160', 'v20')
stamp(5)
a('s_mov_b32 s53, s50')
AR = lambda e: 64 + 4 * (e % 16)
FR = lambda e: 48 + 4 * (e % 4)
ACC0, ACC1 = 40, 44


def conv_loads(e, rel):
    a('ds_read_b64 %s, v32 offset:%d' % (P(AR(e)), 64 * rel))
    a('ds_read_b64 %s, v32 offset:%d' % (P(AR(e) + 2), 64 * rel + 8))
    a('ds_read_b128 %s, v33 offset:%d' % (Q(FR(e)), 1216 - 64 * rel))


def conv_step(e, both, first=False):
    conv_loads(e + 3, e + 3)
    a('s_waitcnt lgkmcnt(9)')
    a('v_mfma_f32_16x16x32_bf16 %s, %s, %s, %s' % (Q(ACC1), Q(AR(e)), Q(FR(e)), '0' if first else Q(ACC1)))
    if both:
        a('v_mfma_f32_16x16x32_bf16 %s, %s, %s, %s' % (Q(ACC0), Q(AR(e - 8)), Q(FR(e)), Q(ACC0)))


a.label('L_pair')
a('s_lshl_b32 s51, %d, s43' % (0x5 << B_KC))
a('s_lshl_b32 s7, 2, s53')
a('s_sub_u32 s7, s7, 1')
a('s_or_b32 s51, s51, s7')
a('s_lshl_b32 s60, s53, 10')
a('s_add_u32 s61, s60, 512')
a('v_mov_b32 v32, v35')
a('v_add_u32 v33, s61, v36')
a('v_add_u32 v34, s60, v37')
for k in range(4):
    a('v_mov_b32 v%d, 0' % (ACC0 + k))
a('s_mov_b32 s61, s53')
wait_status('s51', 'v160', 'v20')
if DEBUG:
    l = L('st')
    a('s_cmp_ge_u32 s53, 2')
    a('s_cbranch_scc1 %s' % l)
    stamp(6)
    a.label(l)
for e in range(3):
    conv_loads(e, e)
for e in range(8):
    conv_step(e, False, first=(e == 0))
a.label('L_conv_loop')
for e in range(8, 16):
    conv_step(e, True)
a('s_cmp_eq_u32 s61, 0')
a('s_cbranch_scc1 L_conv_done')
a('s_sub_u32 s61, s61, 1')
a('v_add_u32 v32, 1024, v32')
a('v_subrev_u32 v33, 1024, v33')
for e in range(8):
    conv_step(e, True)
a('s_branch L_conv_loop')
a.label('L_conv_done')
a('v_cvt_pk_bf16_f32 v20, v%d, v%d' % (ACC0, ACC0 + 1))
a('v_cvt_pk_bf16_f32 v21, v%d, v%d' % (ACC0 + 2, ACC0 + 3))
a('v_cvt_pk_bf16_f32 v22, v%d, v%d' % (ACC1, ACC1 + 1))
a('v_cvt_pk_bf16_f32 v23, v%d, v%d' % (ACC1 + 2, ACC1 + 3))
a('ds_write_b64 v34, v[20:21]')
a('ds_write_b64 v34, v[22:23] offset:512')
a('s_lshl_b32 s7, s53, 1')
a('s_add_u32 s7, s7, s43')
a('s_lshl_b32 s51, %d, s7' % (1 << B_Y))
set_status('s51', 'v160', 'v24')
if DEBUG:
    l = L('st')
    a('s_cmp_ge_u32 s53, 2')
    a('s_cbranch_scc1 %s' % l)
    stamp(7)
    a.label(l)
a('s_add_u32 s53, s53, 2')
a('s_cmp_lt_u32 s53, 4')
a('s_cbranch_scc1 L_pair')
finish()

a.label('L_io')
W8 = 20
CH = [22, 24, 26, 28]
T = [40, 42, 44, 46]
cexp_multi([(W8, 8.0, 40), (CH[1], 64.0, 42), (CH[2], 128.0, 44), (CH[3], 192.0, 46)], 10, 11)
a('v_mov_b32 v50, 0x00003f80')
a('ds_write_b32 v62, v50 offset:%d' % (32 * KTS))
kt_write(33, W8, 51, False)
for q in range(1, 4):
    kt_write(32 + 8 * q, CH[q], 51 + q, False)
for n in range(1, 8):
    jobs = []
    if n >= 2:
        jobs.append((CH[0], W8 if n == 2 else CH[0], W8, T[0]))
    for q in range(1, 4):
        jobs.append((CH[q], CH[q], W8, T[q]))
    cmul_multi(jobs)
    for q in range(4):
        if q == 0 and n < 2:
            continue
        kt_write(32 + 8 * q + n, CH[q], 50 + q, False)
a('s_lshl_b32 s51, %d, s4' % (1 << B_KT))
set_status('s51', 'v160', 'v50')
stamp(3)
a('s_sub_u32 s53, s4, 4')
a('s_lshl_b32 s7, s53, 6')
a('v_add_u32 v2, s7, v1')
a('v_mul_u32_u24 v3, 48, v2')
a('v_add_u32 v3, %d, v3' % WS_STATS)
a('s_lshl_b32 s7, s53, 11')
a('s_add_u32 s7, s7, %d' % XC)
a('v_lshl_add_u32 v4, v1, 4, s7')
a('v_lshlrev_b32 v5, 4, v2')
a('v_add_u32 v5, %d, v5' % (UB[0] + 512))
a('s_lshl_b32 s7, s3, 2')
a('v_lshl_add_u32 v6, v2, 13, s7')
a('s_mov_b32 s44, s36')
a('s_mov_b32 s45, s37')
a('s_mov_b32 s46, 0x200000')
a('s_mov_b32 s47, 0x00020000')
a('s_lshl_b32 s54, s49, 16')
a('s_and_b32 s55, s49, s52')
a('s_mov_b32 s56, 0x05040100')
a('s_mov_b32 s57, 0x07060302')
a('s_lshl_b32 s58, %d, s53' % (1 << B_X))


def io_read_x():
    wait_status('s58', 'v160', 'v7')
    a('ds_read_b128 v[32:35], v4')
    a('ds_read_b128 v[36:39], v4 offset:1024')
    a('s_waitcnt lgkmcnt(0)')
    for i in range(8):
        a('v_lshlrev_b32 v%d, 16, v%d' % (40 + 2 * i, 32 + i))
        a('v_and_b32 v%d, s52, v%d' % (41 + 2 * i, 32 + i))


a('s_cmp_ge_u32 s53, 2')
a('s_cbranch_scc1 L_io_poll')
io_read_x()
a.label('L_io_poll')
stamp(4)
a('s_mov_b32 s59, 0')
a.label('L_io_poll_loop')
a('global_load_dwordx4 v[20:23], v3, s[40:41] sc1')
a('global_load_dwordx4 v[24:27], v3, s[40:41] offset:16 sc1')
a('global_load_dwordx4 v[28:31], v3, s[40:41] offset:32 sc1')
a('s_add_u32 s59, s59, 1')
a('s_waitcnt vmcnt(0)')
a('v_cmp_ne_u32 vcc, s5, v23')
a('v_cmp_ne_u32 s[60:61], s5, v27')
a('v_cmp_ne_u32 s[62:63], s5, v31')
a('s_or_b64 vcc, vcc, s[60:61]')
a('s_or_b64 vcc, vcc, s[62:63]')
a('s_and_b64 exec, exec, vcc')
a('s_cbranch_execz L_io_poll_done')
a('s_sleep 2')
a('s_cmp_lt_u32 s59, %d' % POLL_MAX)
a('s_cbranch_scc1 L_io_poll_loop')
a.label('L_io_poll_done')
a('s_mov_b64 exec, -1')
stamp(5)
a('s_cmp_ge_u32 s53, 2')
a('s_cbranch_scc0 L_io_norm')
io_read_x()
a.label('L_io_norm')
MS = [20, 21, 22, 24, 25, 26, 28, 29]
for i in range(8):
    a('v_and_b32 v%d, s52, v%d' % (81 + 2 * i, MS[i]))
    a('v_lshlrev_b32 v%d, 16, v%d' % (80 + 2 * i, MS[i]))
for i in range(8):
    a('v_rcp_f32 v%d, v%d' % (81 + 2 * i, 81 + 2 * i))
    a('v_pk_add_f32 %s, %s, %s op_sel_hi:[1,0] neg_lo:[0,1] neg_hi:[0,1]' % (P(96 + 2 * i), P(40 + 2 * i), P(80 + 2 * i)))
for i in range(8):
    a('v_cvt_pk_bf16_f32 v%d, v%d, v%d' % (56 + i, 96 + 2 * i, 97 + 2 * i))
for i in range(8):
    a('v_lshlrev_b32 v%d, 16, v%d' % (96 + 2 * i, 56 + i))
    a('v_and_b32 v%d, s52, v%d' % (97 + 2 * i, 56 + i))
for i in range(8):
    a('v_pk_mul_f32 %s, %s, %s op_sel:[0,1] op_sel_hi:[1,1]' % (P(96 + 2 * i), P(96 + 2 * i), P(80 + 2 * i)))
for i in range(8):
    a('v_cvt_pk_bf16_f32 v%d, v%d, v%d' % (56 + i, 96 + 2 * i, 97 + 2 * i))
for u in range(4):
    a('v_perm_b32 v%d, v%d, v%d, s56' % (64 + u, 56 + 6 - 2 * u, 56 + 7 - 2 * u))
a('ds_write_b128 v5, v[64:67]')
for u in range(4):
    a('v_perm_b32 v%d, v%d, v%d, s57' % (68 + u, 56 + 6 - 2 * u, 56 + 7 - 2 * u))
a('ds_write_b128 v5, v[68:71] offset:%d' % (UB[1] - UB[0]))
a('s_lshl_b32 s51, %d, s53' % (1 << B_U))
set_status('s51', 'v160', 'v7')
stamp(6)
for i in range(8):
    a('v_lshlrev_b32 v%d, 16, v%d' % (80 + 2 * i, 56 + i))
    a('v_and_b32 v%d, s52, v%d' % (81 + 2 * i, 56 + i))
for i in range(8):
    a('v_pk_mul_f32 %s, %s, s[54:55]' % (P(96 + 2 * i), P(80 + 2 * i)))
for i in range(8):
    a('v_cvt_pk_bf16_f32 v%d, v%d, v%d' % (20 + i, 96 + 2 * i, 97 + 2 * i))
for i in range(8):
    a('v_lshlrev_b32 v%d, 16, v%d' % (96 + 2 * i, 20 + i))
    a('v_and_b32 v%d, s52, v%d' % (97 + 2 * i, 20 + i))
a('s_lshl_b32 s7, s53, 1')
a('s_lshl_b32 s51, %d, s7' % (3 << B_Y))
a('s_or_b32 s51, s51, %d' % (1 << B_IDX))
wait_status('s51', 'v160', 'v7', sleep=1)
stamp(7)
a('ds_read_b32 v7, v160 offset:%d' % (IDXW - STATUS))
a('ds_read_b128 v[64:67], v5 offset:%d' % (YB[0] - UB[0] - 512))
a('ds_read_b128 v[68:71], v5 offset:%d' % (YB[1] - UB[0] - 512))
a('s_movk_i32 s59, 0x1000')
a('s_waitcnt lgkmcnt(2)')
a('v_readfirstlane_b32 s60, v7')
a('s_lshr_b32 s61, s60, 3')
a('s_and_b32 s60, s60, 7')
a('s_lshr_b32 s7, s61, 6')
a('s_lshl_b64 s[62:63], 1, s61')
a('s_cmp_eq_u32 s7, s53')
a('s_cselect_b64 s[62:63], s[62:63], 0')
a('s_waitcnt lgkmcnt(0)')
specials = []
for i in range(8):
    t = 72 + 2 * (i % 2)
    o = 76 + (i % 2)
    o2 = 78 + (i % 2)
    for c in range(2):
        src = 64 + 4 * c + i // 2
        if i % 2 == 0:
            a('v_lshlrev_b32 v%d, 16, v%d' % (t + c, src))
        else:
            a('v_and_b32 v%d, s52, v%d' % (t + c, src))
    a('v_pk_add_f32 %s, %s, %s' % (P(t), P(t), P(96 + 2 * i)))
    a('v_cvt_pk_bf16_f32 v%d, v%d, v%d' % (o, t, t + 1))
    a('v_lshlrev_b32 v%d, 16, v%d' % (t, o))
    a('v_and_b32 v%d, s52, v%d' % (t + 1, o))
    a('v_pk_add_f32 %s, %s, %s' % (P(t), P(t), P(40 + 2 * i)))
    a('v_cvt_pk_bf16_f32 v%d, v%d, v%d' % (o, t, t + 1))
    a('v_lshlrev_b32 v%d, 16, v%d' % (t, o))
    a('v_and_b32 v%d, s52, v%d' % (t + 1, o))
    a('v_pk_add_f32 %s, %s, %s' % (P(t), P(t), P(80 + 2 * i)))
    a('v_cvt_pk_bf16_f32 v%d, v%d, v%d' % (o2, t, t + 1))
    st = 'buffer_store_dword v%d, v6, s[44:47], %s offen offset:%d' % (o2, 's59' if i >= 4 else '0', 1024 * (i % 4))
    a('s_cmp_eq_u32 s60, %d' % i)
    a('s_cbranch_scc1 L_sp_%d' % i)
    a(st)
    a.label('L_spb_%d' % i)
    specials.append((i, o, st))
finish()
for i, o, st in specials:
    a.label('L_sp_%d' % i)
    a('v_mov_b32 v7, %d' % (1 << B_T1))
    a('s_mov_b64 exec, s[62:63]')
    a('ds_write_b32 v160, v%d offset:%d' % (o, T1X - STATUS))
    a('ds_write_b32 v160, v%d offset:%d' % (56 + i, T1X + 4 - STATUS))
    a('ds_or_b32 v160, v7')
    a('s_not_b64 exec, s[62:63]')
    a(st)
    a('s_mov_b64 exec, -1')
    a('s_branch L_spb_%d' % i)

a.label('L_special')
a('s_getpc_b64 s[42:43]')
a.label('L_pc')
a('s_sub_u32 s42, s42, L_pc-%s' % NAME)
a('s_subb_u32 s43, s43, 0')
a('v_subrev_u32 v2, 512, v0')
a('v_lshlrev_b32 v2, 7, v2')
a('v_min_u32 v2, L_end-%s-4, v2' % NAME)
a('global_load_dword v3, v2, s[42:43]')
a('v_mov_b32 v160, %d' % STATUS)
a('s_mov_b32 s52, 0xffff0000')
a('s_waitcnt lgkmcnt(0)')
a('s_load_dword s6, s[40:41], 0')
a('s_cmp_eq_u32 s4, 8')
a('s_cbranch_scc1 L_moe')

a('s_mov_b32 s44, s8')
a('s_mov_b32 s45, s9')
a('s_mov_b32 s46, 0x200000')
a('s_mov_b32 s47, 0x00020000')
a('s_lshr_b32 s7, s2, 3')
a('s_lshl_b32 s7, s7, 16')
a('s_and_b32 s51, s2, 7')
a('s_lshl_b32 s51, s51, 7')
a('s_add_u32 s7, s7, s51')
a('v_lshl_add_u32 v4, v1, 10, s7')
a('buffer_load_dword v5, v4, s[44:47], 0 offen')
for k in range(8, 12):
    a('v_mov_b32 v%d, 0' % k)
a('v_and_b32 v6, 31, v1')
a('v_lshlrev_b32 v6, 4, v6')
a('v_lshrrev_b32 v7, 5, v1')
a('s_movk_i32 s51, %d' % (UB[1] - UB[0]))
a('v_mad_u32_u24 v6, v7, s51, v6')
a('ds_write_b128 v6, v[8:11] offset:%d' % UB[0] if UB[0] < 65536 else '')
if UB[0] >= 65536:
    a('v_add_u32 v6, %d, v6' % UB[0])
    a('ds_write_b128 v6, v[8:11]')
a('v_lshrrev_b32 v6, 1, v1')
a('v_and_b32 v7, 1, v1')
a('s_movk_i32 s51, %d' % KCS)
a('v_mul_u32_u24 v6, s51, v6')
a('v_lshl_add_u32 v6, v7, 4, v6')
a('v_add_u32 v6, %d, v6' % KC[0])
a('v_mov_b32 v7, %d' % STATUS)
a('v_cmp_gt_u32 vcc, 16, v1')
a('v_cndmask_b32 v6, v7, v6, vcc')
a('ds_write_b128 v6, v[8:11]')
a('v_lshrrev_b32 v6, 2, v1')
a('v_and_b32 v7, 3, v1')
a('v_lshl_add_u32 v6, v6, 3, v7')
a('s_lshl_b32 s7, s3, 2')
a('v_lshl_add_u32 v12, v6, 10, s7')
a('s_mul_i32 s7, s3, 48')
a('s_add_u32 s7, s7, %d' % WS_STATS)
a('v_lshl_add_u32 v13, v1, 4, s7')
a('s_lshl_b32 s7, s3, 4')
a('s_add_u32 s7, s7, %d' % WS_KEYS)
a('v_mov_b32 v7, s7')
a('s_mov_b64 s[54:55], 8')
a('s_mov_b64 s[56:57], 4')
a('v_cndmask_b32 v13, v13, v7, s[54:55]')
a('v_mul_u32_u24 v14, 12, v1')
a('v_min_u32 v14, 24, v14')
a('v_add_u32 v14, %d, v14' % STG)
a('v_mov_b32 v15, %d' % STG)
a('s_waitcnt lgkmcnt(0)')
a('s_mul_i32 s5, s6, 0x9E3779B1')
a('s_add_u32 s5, s5, 0x7F4A7C15')
a('v_mov_b32 v19, s5')
stamp(1)
a('s_barrier')
a('ds_read_b128 v[20:23], v15 offset:32')
a('ds_read_b128 v[24:27], v15 offset:48')
a('ds_read2_b32 v[16:17], v14 offset0:0 offset1:1')
a('ds_read_b32 v18, v14 offset:8')
a('s_waitcnt lgkmcnt(2)')
a('v_max3_u32 v20, v20, v21, v22')
a('v_max3_u32 v24, v24, v25, v26')
a('v_max3_u32 v20, v20, v23, v27')
a('v_max_u32 v20, v20, v24')
a('s_waitcnt lgkmcnt(0)')
a('v_cndmask_b32 v18, v18, v20, s[56:57]')
a('v_cndmask_b32 v16, v16, v20, s[54:55]')
a('s_mov_b64 exec, 15')
a('global_store_dwordx4 v13, v[16:19], s[40:41] sc1')
a('s_mov_b64 exec, -1')
stamp(2)


def col_group(q):
    for k in range(8):
        soff = (512 * q + 128 * (k & 3) + 4 * (k >> 2)) * 1024
        a('s_mov_b32 m0, %d' % (XC + 2048 * q + 256 * k))
        a('s_mov_b32 s51, %d' % soff)
        a('buffer_load_dword v12, s[44:47], s51 offen lds')


col_group(0)
for q in range(4):
    if q < 3:
        col_group(q + 1)
    a('s_waitcnt vmcnt(%d)' % (8 if q < 3 else 0))
    set_status('%d' % (1 << (B_X + q)), 'v160', 'v7')
    stamp(3 + q)
finish()

a.label('L_moe')
a('s_lshr_b32 s50, s3, 3')
a('s_and_b32 s51, s3, 7')
a('v_and_b32 v4, 15, v1')
a('v_lshrrev_b32 v5, 4, v1')
a('s_mul_i32 s7, s51, %d' % (64 * 3584))
a('s_lshl_b32 s53, s50, 7')
a('s_add_u32 s7, s7, s53')
a('v_lshl_add_u32 v6, v4, 3, s7')
a('s_movk_i32 s53, %d' % (8 * 3584))
a('v_mad_u32_u24 v6, v5, s53, v6')
a('s_lshl_b32 s7, s50, 16')
a('s_lshl_b32 s53, s51, 7')
a('s_add_u32 s7, s7, s53')
a('v_lshl_add_u32 v7, v4, 3, s7')
a('v_lshl_add_u32 v7, v5, 13, v7')
for base, ptr, size in ((44, 30, 512 * 3584), (56, 32, 512 * 3584), (60, 34, 1792 * 1024)):
    a('s_mov_b32 s%d, s%d' % (base, ptr))
    a('s_mov_b32 s%d, s%d' % (base + 1, ptr + 1))
    a('s_mov_b32 s%d, %d' % (base + 2, size))
    a('s_mov_b32 s%d, 0x00020000' % (base + 3))
a('v_lshlrev_b32 v8, 4, v1')
a('v_add_u32 v8, %d, v8' % WS_KEYS)
a('s_waitcnt lgkmcnt(0)')
a('s_mul_i32 s5, s6, 0x9E3779B1')
a('s_add_u32 s5, s5, 0x7F4A7C15')
stamp(1)
a('s_barrier')
a('s_cmp_ge_u32 s3, 224')
a('s_cbranch_scc1 L_moe_keys')
RB = lambda b, m: 16 + 16 * b + 2 * m
for h in range(2):
    for m in range(8):
        a('s_mov_b32 s53, %d' % ((32 * h + m) * 3584))
        a('buffer_load_dwordx2 %s, v6, s[44:47], s53 offen' % P(RB(h, m)))
        a('buffer_load_dwordx2 %s, v6, s[56:59], s53 offen' % P(RB(2 + h, m)))
for h in range(2):
    for m in range(8):
        if m % 4 == 0:
            a('s_mov_b32 s53, %d' % ((32 * h + m) * 1024))
        a('buffer_load_dwordx2 %s, v7, s[60:63], s53 offen offset:%d' % (P(RB(4 + h, m)), 1024 * (m % 4)))
a('s_mov_b32 s48, 0x05040100')
a('s_mov_b32 s49, 0x07060302')
TB = lambda b: 112 if b == 0 else 16 + 16 * (b - 1)
a('s_waitcnt vmcnt(16)')
stamp(2)


def transpose_block(b):
    for u in range(4):
        for dw in range(2):
            a('v_perm_b32 v%d, v%d, v%d, s48' % (TB(b) + 4 * (2 * dw) + u, RB(b, 2 * u + 1) + dw, RB(b, 2 * u) + dw))
            a('v_perm_b32 v%d, v%d, v%d, s49' % (TB(b) + 4 * (2 * dw + 1) + u, RB(b, 2 * u + 1) + dw, RB(b, 2 * u) + dw))


for b in range(4):
    transpose_block(b)
a('s_waitcnt vmcnt(0)')
for b in range(4, 6):
    transpose_block(b)
a.label('L_moe_keys')
stamp(3)
a('s_mov_b32 s53, 0')
a.label('L_key_loop')
for k in range(4):
    a('global_load_dwordx4 %s, v8, s[40:41] offset:%d sc1' % (Q(128 + 4 * k), 1024 * k))
a('s_add_u32 s53, s53, 1')
a('s_waitcnt vmcnt(0)')
a('v_cmp_ne_u32 vcc, s5, v131')
a('v_cmp_ne_u32 s[42:43], s5, v135')
a('s_or_b64 vcc, vcc, s[42:43]')
a('v_cmp_ne_u32 s[42:43], s5, v139')
a('s_or_b64 vcc, vcc, s[42:43]')
a('v_cmp_ne_u32 s[42:43], s5, v143')
a('s_or_b64 vcc, vcc, s[42:43]')
a('s_and_b64 exec, exec, vcc')
a('s_cbranch_execz L_key_done')
a('s_sleep 2')
a('s_cmp_lt_u32 s53, %d' % POLL_MAX)
a('s_cbranch_scc1 L_key_loop')
a.label('L_key_done')
a('s_mov_b64 exec, -1')
a('v_max3_u32 v128, v128, v132, v136')
a('v_max_u32 v128, v128, v140')
reduce64('v_max_u32', ['v128'])
a('v_readlane_b32 s54, v128, 63')
a('s_and_b32 s55, s54, 0xffff')
a('s_sub_u32 s55, 2047, s55')
a('s_and_b32 s55, s55, 2047')
stamp(4)
a('s_lshl_b32 s7, s55, 10')
a('s_lshl_b32 s53, s51, 7')
a('s_add_u32 s7, s7, s53')
a('v_lshl_add_u32 v9, v5, 4, s7')
a('global_load_dwordx4 v[96:99], v9, s[8:9]')
a('global_load_dwordx4 v[100:103], v9, s[8:9] offset:64')
a('s_lshr_b32 s7, s55, 3')
a('s_mul_i32 s7, s7, 48')
a('s_and_b32 s53, s55, 7')
a('s_mul_i32 s42, s53, 43')
a('s_lshr_b32 s42, s42, 7')
a('s_add_u32 s53, s53, s42')
a('s_lshl_b32 s53, s53, 2')
a('s_add_u32 s7, s7, s53')
a('s_add_u32 s7, s7, %d' % WS_STATS)
a('v_mov_b32 v10, s7')
a('global_load_dword v104, v10, s[40:41] sc1')
a('v_mov_b32 v10, s55')
a('v_mov_b32 v11, %d' % (1 << B_IDX))
a('s_mov_b64 exec, 1')
a('ds_write_b32 v160, v10 offset:%d' % (IDXW - STATUS))
a('ds_or_b32 v160, v11')
a('s_cmp_eq_u32 s2, 0')
a('s_cbranch_scc0 L_no_epoch')
a('s_add_u32 s7, s6, 1')
a('v_mov_b32 v10, 0')
a('v_mov_b32 v11, s7')
a('global_store_dword v10, v11, s[40:41] sc1')
a.label('L_no_epoch')
a('s_mov_b64 exec, -1')
a('s_and_b32 s7, s54, s52')
a('s_not_b32 s42, s7')
a('s_and_b32 s42, s42, s52')
a('s_xor_b32 s43, s7, 0x80000000')
a('s_bitcmp1_b32 s7, 31')
a('s_cselect_b32 s7, s43, s42')
a('v_mov_b32 v12, s7')
a('v_mul_f32 v12, %s, v12' % f32(-LOG2E))
a('v_exp_f32 v12, v12')
a('v_add_f32 v12, 1.0, v12')
a('v_rcp_f32 v12, v12')
a('v_cvt_pk_bf16_f32 v12, v12, v12')
a('v_and_b32 v12, s52, v12')
a('s_mov_b32 s42, 0xaaaaaaaa')
a('s_mov_b32 s43, 0xaaaaaaaa')
a('s_mov_b32 s44, 0xcccccccc')
a('s_mov_b32 s45, 0xcccccccc')
a('s_mov_b32 s46, 0xf0f0f0f0')
a('s_mov_b32 s47, 0xf0f0f0f0')
a('s_mov_b32 s48, 0xff00ff00')
a('s_mov_b32 s49, 0xff00ff00')
a('s_cmp_ge_u32 s3, 224')
a('s_cbranch_scc1 L_moe_idle')
a('s_lshl_b32 s7, s3, 10')
a('s_add_u32 s7, s7, %d' % WS_HOPA)
a('v_lshl_add_u32 v13, v1, 4, s7')
a('s_lshl_b32 s7, s50, 13')
a('s_add_u32 s7, s7, %d' % WS_HOPA)
a('v_lshl_add_u32 v14, v1, 4, s7')
a('v_add_u32 v15, 4096, v14')
a('s_waitcnt vmcnt(0)')
stamp(5)
a('v_and_b32 v3, s52, v104')
a('v_lshlrev_b32 v2, 16, v104')
a('v_rcp_f32 v3, v3')
for k in range(8):
    a('v_lshlrev_b32 v%d, 16, v%d' % (128 + 2 * k, 96 + k))
    a('v_and_b32 v%d, s52, v%d' % (129 + 2 * k, 96 + k))
for k in range(8):
    a('v_pk_add_f32 %s, %s, v[2:3] op_sel_hi:[1,0] neg_lo:[0,1] neg_hi:[0,1]' % (P(128 + 2 * k), P(128 + 2 * k)))
for k in range(8):
    a('v_cvt_pk_bf16_f32 v%d, v%d, v%d' % (96 + k, 128 + 2 * k, 129 + 2 * k))
for k in range(8):
    a('v_lshlrev_b32 v%d, 16, v%d' % (128 + 2 * k, 96 + k))
    a('v_and_b32 v%d, s52, v%d' % (129 + 2 * k, 96 + k))
for k in range(8):
    a('v_pk_mul_f32 %s, %s, v[2:3] op_sel:[0,1] op_sel_hi:[1,1]' % (P(128 + 2 * k), P(128 + 2 * k)))
for k in range(8):
    a('v_cvt_pk_bf16_f32 v%d, v%d, v%d' % (96 + k, 128 + 2 * k, 129 + 2 * k))
for h in range(2):
    for mat in range(2):
        for f in range(4):
            d = 128 + 16 * mat + 4 * f
            a('v_mfma_f32_16x16x32_bf16 %s, %s, %s, %s' % (Q(d), Q(TB(2 * mat + h) + 4 * f), Q(96 + 4 * h), '0' if h == 0 else Q(d)))


def select16(base, dst):
    for r in range(4):
        a('v_cndmask_b32 v%d, v%d, v%d, s[42:43]' % (base + r, base + r, base + 4 + r))
        a('v_cndmask_b32 v%d, v%d, v%d, s[42:43]' % (base + 8 + r, base + 8 + r, base + 12 + r))
    for r in range(4):
        a('v_cndmask_b32 v%d, v%d, v%d, s[44:45]' % (base + r, base + r, base + 8 + r))
    a('v_cndmask_b32 v%d, v%d, v%d, s[46:47]' % (base, base, base + 1))
    a('v_cndmask_b32 v%d, v%d, v%d, s[46:47]' % (base + 2, base + 2, base + 3))
    a('v_cndmask_b32 v%d, v%d, v%d, s[48:49]' % (dst, base, base + 2))


a('v_mov_b32 v110, 0')
a('v_mov_b32 v111, s5')
select16(128, 108)
select16(144, 109)
a('global_store_dwordx4 v13, v[108:111], s[40:41] sc1')
stamp(6)
a('s_sleep %d' % opt('sleepA', 20))
a('s_mov_b32 s53, 0')
a.label('L_hopa_loop')
for k in range(8):
    a('global_load_dwordx4 %s, %s, s[40:41] offset:%d sc1' % (Q(128 + 4 * k), 'v14' if k < 4 else 'v15', 1024 * (k % 4)))
a('s_add_u32 s53, s53, 1')
a('s_waitcnt vmcnt(0)')
a('v_cmp_ne_u32 vcc, s5, v131')
for k in range(1, 8):
    a('v_cmp_ne_u32 s[56:57], s5, v%d' % (131 + 4 * k))
    a('s_or_b64 vcc, vcc, s[56:57]')
a('s_and_b64 exec, exec, vcc')
a('s_cbranch_execz L_hopa_done')
a('s_sleep 2')
a('s_cmp_lt_u32 s53, %d' % POLL_MAX)
a('s_cbranch_scc1 L_hopa_loop')
a.label('L_hopa_done')
a('s_mov_b64 exec, -1')
stamp(7)
for k in range(4):
    a('v_pk_add_f32 %s, %s, %s' % (P(128 + 8 * k), P(128 + 8 * k), P(132 + 8 * k)))
a('v_pk_add_f32 v[128:129], v[128:129], v[136:137]')
a('v_pk_add_f32 v[144:145], v[144:145], v[152:153]')
a('v_pk_add_f32 v[128:129], v[128:129], v[144:145]')
a('v_cvt_pk_bf16_f32 v2, v128, v129')
a('v_lshlrev_b32 v3, 16, v2')
a('v_and_b32 v2, s52, v2')
a('v_mul_f32 v10, %s, v3' % f32(-LOG2E))
a('v_exp_f32 v10, v10')
a('v_add_f32 v10, 1.0, v10')
a('v_rcp_f32 v10, v10')
a('v_mul_f32 v10, v3, v10')
a('v_cvt_pk_bf16_f32 v10, v10, v10')
a('v_and_b32 v10, s52, v10')
a('v_mul_f32 v10, v10, v2')
a('v_cvt_pk_bf16_f32 v10, v10, v10')
a('v_lshlrev_b32 v11, 1, v1')
a('v_add_u32 v11, %d, v11' % HS)
a('ds_write_b16 v11, v10')
a('v_lshlrev_b32 v11, 4, v5')
a('v_add_u32 v11, %d, v11' % HS)
a('ds_read_b128 v[96:99], v11')
a('ds_read_b128 v[100:103], v11 offset:64')
a('s_lshl_b32 s7, s3, 9')
a('s_add_u32 s7, s7, %d' % WS_HOPB)
a('v_lshl_add_u32 v13, v1, 3, s7')
a('s_waitcnt lgkmcnt(0)')
for h in range(2):
    for f in range(4):
        d = 128 + 4 * f
        a('v_mfma_f32_16x16x32_bf16 %s, %s, %s, %s' % (Q(d), Q(TB(4 + h) + 4 * f), Q(96 + 4 * h), '0' if h == 0 else Q(d)))
select16(128, 108)
a('v_mov_b32_dpp v109, v108 quad_perm:[1,1,3,3] row_mask:0xf bank_mask:0xf')
a('s_not_b64 exec, s[42:43]')
a('global_store_dwordx4 v13, v[108:111], s[40:41] sc1')
a('s_mov_b64 exec, -1')
stamp(8)
a('s_sleep %d' % opt('sleepB', 20))
a('s_branch L_moe_final')
a.label('L_moe_idle')
a('s_sleep %d' % opt('sleepI', 70))
a.label('L_moe_final')
a('s_lshr_b32 s7, s3, 5')
a('s_lshl_b32 s7, s7, 9')
a('s_and_b32 s53, s3, 31')
a('s_lshl_b32 s53, s53, 4')
a('s_add_u32 s7, s7, s53')
a('s_add_u32 s7, s7, %d' % WS_HOPB)
a('v_lshl_add_u32 v14, v1, 12, s7')
a('v_mov_b32 v128, 0')
a('v_mov_b32 v129, 0')
a('s_mov_b32 s53, 0')
a('s_mov_b64 exec, 0xfffffff')
a.label('L_hopb_loop')
a('global_load_dwordx4 v[128:131], v14, s[40:41] sc1')
a('s_add_u32 s53, s53, 1')
a('s_waitcnt vmcnt(0)')
a('v_cmp_ne_u32 vcc, s5, v131')
a('s_and_b64 exec, exec, vcc')
a('s_cbranch_execz L_hopb_done')
a('s_sleep 2')
a('s_cmp_lt_u32 s53, %d' % POLL_MAX)
a('s_cbranch_scc1 L_hopb_loop')
a.label('L_hopb_done')
a('s_mov_b64 exec, -1')
stamp(9)
reduce64('v_add_f32', ['v128', 'v129'])
a('v_readlane_b32 s42, v128, 63')
a('v_readlane_b32 s43, v129, 63')
a('v_mov_b32 v3, s43')
a('v_cvt_pk_bf16_f32 v2, s42, v3')
a('v_and_b32 v3, s52, v2')
a('v_lshlrev_b32 v2, 16, v2')
a('v_pk_mul_f32 v[2:3], v[2:3], v[12:13] op_sel_hi:[1,0]')
a('v_cvt_pk_bf16_f32 v2, v2, v3')
a('v_and_b32 v3, s52, v2')
a('v_lshlrev_b32 v2, 16, v2')
a('s_lshl_b32 s42, s55, 10')
a('s_lshl_b32 s43, s3, 2')
a('s_add_u32 s42, s42, s43')
a('v_mov_b32 v9, s42')
wait_status('%d' % (1 << B_T1), 'v160', 'v10')
a('ds_read_b64 v[4:5], v160 offset:%d' % (T1X - STATUS))
a('s_waitcnt lgkmcnt(0)')
a('v_lshlrev_b32 v6, 16, v5')
a('v_and_b32 v7, s52, v5')
a('v_pk_add_f32 v[2:3], v[2:3], v[6:7]')
a('v_cvt_pk_bf16_f32 v2, v2, v3')
a('v_and_b32 v3, s52, v2')
a('v_lshlrev_b32 v2, 16, v2')
a('v_lshlrev_b32 v6, 16, v4')
a('v_and_b32 v7, s52, v4')
a('v_pk_add_f32 v[2:3], v[2:3], v[6:7]')
a('v_cvt_pk_bf16_f32 v2, v2, v3')
a('s_mov_b64 exec, 1')
a('global_store_dword v9, v2, s[36:37]')
a('s_mov_b64 exec, -1')
finish()
a.label('L_exit')
a('s_endpgm')
a.label('L_end')

body = a.finalize()
hdr = open('parallel_sum__ssm_conv_s4__moe_arch_mod__prompt.s.ref').read().split('; Override launch')[0]
src = hdr
src += '; Generated by work/gen.py (hand-written instruction streams, scripted unrolling and wait-state padding).\n'
src += '; @launch grid=(256,1,1) block=(640,1,1) lds=%d\n' % LDS_BYTES
src += '.amdgcn_target "amdgcn-amd-amdhsa--gfx950"\n.text\n.globl %s\n.p2align 8\n.type %s,@function\n' % (NAME, NAME)
src += body
src += '''.section .rodata,"a"
.p2align 6
.amdhsa_kernel %s
  .amdhsa_next_free_vgpr 168
  .amdhsa_next_free_sgpr 96
  .amdhsa_accum_offset 168
  .amdhsa_group_segment_fixed_size 0
  .amdhsa_kernarg_size 136
  .amdhsa_user_sgpr_count 2
  .amdhsa_user_sgpr_kernarg_segment_ptr 1
  .amdhsa_system_sgpr_workgroup_id_x 1
.end_amdhsa_kernel
''' % NAME
open(OUT, 'w').write(src)
print('wrote', OUT, 'lds', LDS_BYTES)
```

```python
import sys, struct, math
from asmlib import Asm

NAME = 'parallel_sum__ssm_conv_s4__moe_arch_mod__prompt_kernel'
DEBUG = '--debug' in sys.argv
SPAN = '--span' in sys.argv
OUT = [a for a in sys.argv[1:] if not a.startswith('--')]
OUT = OUT[0] if OUT else 'parallel_sum__ssm_conv_s4__moe_arch_mod__prompt.s'


def opt(name, default):
    for a in sys.argv:
        if a.startswith('--' + name + '='):
            return int(a.split('=')[1], 0)
    return default


def f32(x):
    return '0x%08x' % struct.unpack('<I', struct.pack('<f', x))[0]


WS_STATS = 4096
WS_KEYS = 16384
WS_HOPA = 32768
WS_HOPB = 262144
WS_XT = 0x80000
WS_OT = 4 << 20
WS_DBG = 8 << 20
KTS = 528
KT = [0, 64 * KTS]
KCS = 4160
KC = [2 * 64 * KTS, 2 * 64 * KTS + 4 * KCS]
UB = [KC[1] + 4 * KCS, KC[1] + 4 * KCS + 4608]
YB = [UB[1] + 4608, UB[1] + 4608 + 4096]
MISC = YB[1] + 4096
STG = MISC
STATUS = MISC + 64
IDXW = MISC + 68
T1X = MISC + 72
HS = MISC + 128
XS = MISC + 256
LDS_BYTES = MISC + 384
B_U, B_KC, B_Y, B_IDX, B_T1, B_KT = 0, 4, 8, 16, 17, 18
LNW = MISC + 80

POLL_MAX = 1 << 16
FOFF = 64 * 19
LOG2E = 1.4426950408889634
LOG2E_HI = struct.unpack('<f', struct.pack('<f', LOG2E))[0]
LOG2E_LO = LOG2E - LOG2E_HI

a = Asm()
uid = [0]


def L(p):
    uid[0] += 1
    return 'L_%s_%d' % (p, uid[0])


def stamp(n):
    if DEBUG:
        a('%s s[%d:%d]' % ('s_memtime' if '--cyc' in sys.argv else 's_memrealtime', 64 + 2 * n, 65 + 2 * n))


NSTAMP = 12


def finish():
    if DEBUG:
        stamp(NSTAMP - 1)
        a('s_waitcnt lgkmcnt(0)')
        a('s_mov_b64 exec, 1')
        a('s_mul_i32 s7, s2, 10')
        a('s_add_u32 s7, s7, s4')
        a('s_lshl_b32 s7, s7, 6')
        a('s_add_u32 s7, s7, %d' % WS_DBG)
        a('v_mov_b32 v2, s7')
        for n in range(NSTAMP):
            a('v_mov_b32 v3, s%d' % (64 + 2 * n))
            a('global_store_dword v2, v3, s[40:41] offset:%d' % (4 * n))
    if SPAN:
        l = L('spanlbl')
        a('s_waitcnt vmcnt(0)')
        a('s_memrealtime s[66:67]')
        a('s_cmp_ge_u32 s2, 8')
        a('s_cbranch_scc1 %s' % l)
        a('s_sub_u32 s7, s4, 7')
        a('s_cmp_ge_u32 s7, 2')
        a('s_cbranch_scc1 %s' % l)
        a('s_waitcnt lgkmcnt(0)')
        a('s_mov_b64 exec, 1')
        a('s_lshl_b32 s7, s7, 3')
        a('s_add_u32 s7, s7, s2')
        a('s_lshl_b32 s7, s7, 2')
        a('v_mov_b32 v2, s7')
        a('s_sub_u32 s64, s66, s64')
        a('v_mov_b32 v3, s64')
        a('global_store_dword v2, v3, s[38:39]')
        K = opt('echo', 0)
        if K:
            a('s_cmp_eq_u32 s2, 0')
            a('s_cbranch_scc0 %s' % l)
            a('s_cmp_eq_u32 s4, 8')
            a('s_cbranch_scc0 %s' % l)
            a('s_mul_i32 s64, s64, %d' % K)
            l2 = L('spin')
            a.label(l2)
            a('s_memrealtime s[68:69]')
            a('s_waitcnt lgkmcnt(0)')
            a('s_sub_u32 s68, s68, s66')
            a('s_cmp_lt_u32 s68, s64')
            a('s_cbranch_scc1 %s' % l2)
        a.label(l)
    a('s_endpgm')


def wait_status(need, vaddr, vtmp, sleep=0):
    l = L('ws')
    a.label(l)
    if sleep:
        a('s_sleep %d' % sleep)
    a('ds_read_b32 %s, %s' % (vtmp, vaddr))
    a('s_sub_u32 s88, s88, 1')
    a('s_cbranch_scc1 L_exit')
    a('s_waitcnt lgkmcnt(0)')
    a('v_readfirstlane_b32 s7, %s' % vtmp)
    a('s_and_b32 s7, s7, %s' % need)
    a('s_cmp_eq_u32 s7, %s' % need)
    a('s_cbranch_scc0 %s' % l)


def set_status(bits, vaddr, vtmp):
    a('s_mov_b64 exec, 1')
    a('v_mov_b32 %s, %s' % (vtmp, bits))
    a('ds_or_b32 %s, %s' % (vaddr, vtmp))
    a('s_mov_b64 exec, -1')


def reduce64(op, regs):
    for step in ('row_shr:1 row_mask:0xf', 'row_shr:2 row_mask:0xf', 'row_shr:4 row_mask:0xf', 'row_shr:8 row_mask:0xf',
                 'row_bcast:15 row_mask:0xa', 'row_bcast:31 row_mask:0xc'):
        for r in regs:
            a('%s_dpp %s, %s, %s %s bank_mask:0xf' % (op, r, r, r, step))


def P(n):
    return 'v[%d:%d]' % (n, n + 1)


def Q(n):
    return 'v[%d:%d]' % (n, n + 3)


def cmul(d, z, w, t):
    a('v_pk_mul_f32 %s, %s, %s op_sel:[0,0] op_sel_hi:[0,1]' % (P(t), P(z), P(w)))
    a('v_pk_fma_f32 %s, %s, %s, %s op_sel:[1,1,0] op_sel_hi:[1,0,1] neg_lo:[1,0,0]' % (P(d), P(z), P(w), P(t)))


def cmul_multi(jobs):
    for d, z, w, t in jobs:
        a('v_pk_mul_f32 %s, %s, %s op_sel:[0,0] op_sel_hi:[0,1]' % (P(t), P(z), P(w)))
    for d, z, w, t in jobs:
        a('v_pk_fma_f32 %s, %s, %s, %s op_sel:[1,1,0] op_sel_hi:[1,0,1] neg_lo:[1,0,0]' % (P(d), P(z), P(w), P(t)))


def cexp_multi(jobs, al, be):
    for d, l, t in jobs:
        a('v_mul_f32 v%d, %s, v%d' % (t, f32(l), al))
        a('v_mul_f32 v%d, %s, v%d' % (t + 1, f32(l), be))
    for d, l, t in jobs:
        a('v_exp_f32 v%d, v%d' % (t, t))
        a('v_fract_f32 v%d, v%d' % (t + 1, t + 1))
    for d, l, t in jobs:
        a('v_cos_f32 v%d, v%d' % (d, t + 1))
        a('v_sin_f32 v%d, v%d' % (d + 1, t + 1))
    for d, l, t in jobs:
        a('v_pk_mul_f32 %s, %s, %s op_sel:[0,0] op_sel_hi:[1,0]' % (P(d), P(d), P(t)))


a.label(NAME)
a('s_cmp_ge_u32 s2, 256')
a('s_cbranch_scc1 L_exit')
a('s_load_dwordx16 s[8:23], s[0:1], 0')
a('s_load_dwordx16 s[24:39], s[0:1], 64')
a('s_load_dwordx2 s[40:41], s[0:1], 128')
stamp(0)
if SPAN:
    a('s_memrealtime s[64:65]')
a('v_lshrrev_b32 v2, 6, v0')
a('v_and_b32 v1, 63, v0')
a('s_mov_b32 s88, 0x400000')
a('v_readfirstlane_b32 s4, v2')
a('s_and_b32 s3, s2, 7')
a('s_lshl_b32 s3, s3, 5')
a('s_lshr_b32 s7, s2, 3')
a('s_add_u32 s3, s3, s7')
a('s_cmp_ge_u32 s4, 8')
a('s_cbranch_scc1 L_special')

a('s_lshl_b32 s42, s3, 3')
a('s_add_u32 s42, s42, s4')
a('s_lshl_b32 s7, s42, 10')
a('v_lshlrev_b32 v17, 4, v1')
a('v_add_u32 v18, s7, v17')
a('s_and_b32 s43, s4, 1')
a('s_lshl_b32 s7, s3, 1')
a('s_add_u32 s7, s7, s43')
a('s_lshl_b32 s7, s7, 8')
a('s_bfe_u32 s50, s4, 0x10001')
a('s_lshl_b32 s51, s50, 7')
a('s_add_u32 s7, s7, s51')
a('v_lshl_add_u32 v19, v1, 1, s7')
for r in range(10, 16):
    a('v_mov_b32 v%d, 0' % r)
a('s_lshl_b32 s7, s3, 2')
a('s_waitcnt lgkmcnt(0)')
a('global_load_dwordx4 v[2:5], v18, s[8:9]')
a('s_load_dword s6, s[40:41], 0')
a('s_load_dword s48, s[22:23], s7')
a('s_load_dword s49, s[24:25], s7')
if opt('wfirst', 1):
    a('global_load_dwordx4 v[6:9], v17, s[28:29]')
if not opt('pfirst', 0):
    a('s_barrier')
if not opt('wfirst', 1):
    a('global_load_dwordx4 v[6:9], v17, s[28:29]')
a('global_load_short_d16_hi v10, v19, s[10:11]')
a('global_load_short_d16_hi v11, v19, s[12:13]')
a('s_cmp_ge_u32 s4, 4')
a('s_cbranch_scc1 L_skip_bc')
a('global_load_short_d16_hi v12, v19, s[14:15]')
a('global_load_short_d16_hi v13, v19, s[16:17]')
a('global_load_short_d16_hi v14, v19, s[18:19]')
a('global_load_short_d16_hi v15, v19, s[20:21]')
a.label('L_skip_bc')
if opt('pfirst', 0):
    a('s_barrier')
a('s_mov_b32 s52, 0xffff0000')
a('v_mov_b32 v160, %d' % STATUS)
a('s_mul_i32 s7, s43, %d' % KT[1])
a('s_lshl_b32 s51, s50, 8')
a('s_add_u32 s7, s7, s51')
a('v_lshl_add_u32 v62, v1, 2, s7')
a('s_waitcnt lgkmcnt(0)')
a('s_mul_i32 s5, s6, 0x9E3779B1')
a('s_add_u32 s5, s5, 0x7F4A7C15')
a('s_lshl_b32 s7, s48, 16')
a('s_and_b32 s51, s48, s52')
a('s_cmp_eq_u32 s43, 0')
a('s_cselect_b32 s7, s7, s51')
a('v_mov_b32 v20, s7')
a('v_mul_f32 v21, %s, v20' % f32(LOG2E_HI))
a('v_mov_b32 v22, %s' % f32(LOG2E_HI))
a('v_fma_f32 v22, v20, v22, -v21')
a('v_fmac_f32 v22, %s, v20' % f32(LOG2E_LO))
a('v_exp_f32 v21, v21')
a('v_mul_f32 v22, %s, v22' % f32(math.log(2.0)))
a('v_fmac_f32 v21, v21, v22')
a('v_cvt_pk_bf16_f32 v21, v21, v21')
a('v_and_b32 v16, s52, v21')
a('v_mov_b32 v44, 0')
a('v_mov_b32 v45, 0')
a('v_mov_b32 v46, 0x3f803f80')
a('v_mov_b32 v47, %s' % f32(1.0 / 512))
a('s_sub_u32 s47, 2047, s42')
a('v_mov_b32 v43, s47')
a('s_lshl_b32 s7, s4, 2')
a('s_add_u32 s7, s7, %d' % STG)
a('v_mov_b32 v48, s7')
a('v_mov_b32 v49, 1')
a('s_mul_i32 s7, s3, 48')
a('s_add_u32 s7, s7, %d' % WS_STATS)
a('v_lshl_add_u32 v50, v1, 4, s7')
a('s_lshl_b32 s7, s3, 4')
a('s_add_u32 s7, s7, %d' % WS_KEYS)
a('v_mov_b32 v51, s7')
a('s_mov_b64 s[54:55], 8')
a('s_mov_b64 s[56:57], 4')
a('v_cndmask_b32 v50, v50, v51, s[54:55]')
a('v_mul_u32_u24 v51, 12, v1')
a('v_min_u32 v51, 24, v51')
a('v_add_u32 v51, %d, v51' % STG)
a('v_mov_b32 v55, s5')
a('s_setprio 2')
a('s_cmp_ge_u32 s4, 4')
a('s_cbranch_scc1 L_wait_io')
a('s_waitcnt vmcnt(6)')
a.label('L_wait_io')
a('s_waitcnt vmcnt(%d)' % 6 if False else '')
a('s_cbranch_scc0 L_wait_done')
a('s_waitcnt vmcnt(2)')
a.label('L_wait_done')
stamp(1)
a('v_lshlrev_b32 v20, 16, v2')
a('v_and_b32 v21, s52, v2')
a('v_readfirstlane_b32 s44, v20')
for k in range(1, 4):
    a('v_lshlrev_b32 v%d, 16, v%d' % (20 + 2 * k, 2 + k))
    a('v_and_b32 v%d, s52, v%d' % (21 + 2 * k, 2 + k))
for k in range(4):
    a('v_pk_add_f32 %s, %s, s[44:45] op_sel_hi:[1,0] neg_lo:[0,1] neg_hi:[0,1]' % (P(28 + 2 * k), P(20 + 2 * k)))
    a('v_dot2_f32_bf16 v44, v%d, v%d, v44' % (2 + k, 6 + k))
    a('v_dot2_f32_bf16 v45, v46, v%d, v45' % (6 + k))
a('v_pk_add_f32 v[36:37], v[28:29], v[30:31]')
a('v_pk_mul_f32 v[40:41], v[28:29], v[28:29]')
a('v_pk_add_f32 v[38:39], v[32:33], v[34:35]')
a('v_pk_fma_f32 v[40:41], v[30:31], v[30:31], v[40:41]')
a('v_pk_add_f32 v[36:37], v[36:37], v[38:39]')
a('v_pk_fma_f32 v[40:41], v[32:33], v[32:33], v[40:41]')
a('v_add_f32 v36, v36, v37')
a('v_pk_fma_f32 v[40:41], v[34:35], v[34:35], v[40:41]')
a('v_add_f32 v40, v40, v41')
reduce64('v_add_f32', ['v44', 'v45', 'v36', 'v40'])
a('v_mul_f32 v36, v36, v47')
a('v_mul_f32 v40, v40, v47')
a('v_fma_f32 v40, -v36, v36, v40')
a('v_add_f32 v36, s44, v36')
a('v_max_f32 v40, 0, v40')
a('v_cvt_pk_bf16_f32 v41, v36, v40')
a('v_and_b32 v40, s52, v41')
a('v_lshlrev_b32 v36, 16, v41')
a('v_add_f32 v40, %s, v40' % f32(1e-5))
a('v_fma_f32 v44, -v36, v45, v44')
a('v_cvt_pk_bf16_f32 v40, v40, v40')
a('v_and_b32 v40, s52, v40')
a('v_sqrt_f32 v40, v40')
a('v_cvt_pk_bf16_f32 v40, v40, v40')
a('v_and_b32 v40, s52, v40')
a('v_rcp_f32 v38, v40')
a('v_bfi_b32 v42, s52, v40, v41')
a('v_mul_f32 v36, v44, v38')
a('v_cvt_pk_bf16_f32 v36, v36, v36')
a('v_ashrrev_i32 v37, 31, v36')
a('v_or_b32 v37, 0x80000000, v37')
a('v_xor_b32 v36, v36, v37')
a('v_bfi_b32 v43, s52, v36, v43')
a('s_mov_b32 exec_lo, 0')
a('s_mov_b32 exec_hi, 0x80000000')
a('ds_write2_b32 v48, v42, v43 offset0:0 offset1:8')
a('ds_add_rtn_u32 v49, v160, v49 offset:%d' % (LNW - STATUS))
a('s_mov_b64 exec, -1')
a('s_waitcnt lgkmcnt(0)')
a('v_readlane_b32 s7, v49, 63')
stamp(2)
a('s_and_b32 s51, s7, 15')
a('s_cmp_eq_u32 s51, 7')
a('s_cbranch_scc0 L_no_publish')
a.label('L_pub_wait')
a('s_and_b32 s7, s7, 63')
a('s_cmp_ge_u32 s7, 32')
a('s_cbranch_scc1 L_pub_go')
a('ds_read_b32 v49, v160 offset:%d' % (LNW - STATUS))
a('s_sub_u32 s88, s88, 1')
a('s_cbranch_scc1 L_exit')
a('s_waitcnt lgkmcnt(0)')
a('v_readfirstlane_b32 s7, v49')
a('s_branch L_pub_wait')
a.label('L_pub_go')
a('v_mov_b32 v49, %d' % STG)
a('ds_read_b128 v[20:23], v49 offset:32')
a('ds_read_b128 v[24:27], v49 offset:48')
a('ds_read2_b32 v[52:53], v51 offset0:0 offset1:1')
a('ds_read_b32 v54, v51 offset:8')
a('s_waitcnt lgkmcnt(2)')
a('v_max3_u32 v20, v20, v21, v22')
a('v_max3_u32 v24, v24, v25, v26')
a('v_max3_u32 v20, v20, v23, v27')
a('v_max_u32 v20, v20, v24')
a('s_waitcnt lgkmcnt(0)')
a('v_cndmask_b32 v54, v54, v20, s[56:57]')
a('v_cndmask_b32 v52, v52, v20, s[54:55]')
a('s_mov_b64 exec, 15')
a('global_store_dwordx4 v50, v[52:55], s[40:41] sc1')
if opt('wmode', 1) == 1:
    a('s_mov_b64 exec, 1')
    a('v_mov_b32 v49, 64')
    a('ds_add_u32 v160, v49 offset:%d' % (LNW - STATUS))
a('s_mov_b64 exec, -1')
a('s_setprio 0')
stamp(10)
a('s_waitcnt vmcnt(1)')
a('s_branch L_params_ok')
a.label('L_no_publish')
a('s_setprio 0')
a('s_waitcnt vmcnt(0)')
a.label('L_params_ok')
stamp(9)
a('v_mul_f32 v10, v16, v10')
a('v_mul_f32 v11, v16, v11')
a('v_mul_f32 v10, %s, v10' % f32(LOG2E))
a('v_mul_f32 v11, %s, v11' % f32(1.0 / (2 * math.pi)))
a('s_cmp_ge_u32 s4, 4')
a('s_cbranch_scc1 L_io')


def kt_write(row, pair, tmp, neg):
    a('v_cvt_pk_bf16_f32 v%d, v%d, %sv%d' % (tmp, pair, '-' if neg else '', pair + 1))
    a('ds_write_b32 v62, v%d offset:%d' % (tmp, row * KTS))


W1, W2, W4, W8, G, C0 = 20, 22, 24, 26, 28, 30
cexp_multi([(W1, 1.0, 40), (G, 256.0, 42), (W8, 8.0, 44)], 10, 11)
a('v_pk_mul_f32 v[12:13], v[12:13], v[16:17] op_sel_hi:[1,0]')
cmul_multi([(C0, 14, 12, 40), (W2, W1, W1, 42)])
E0, O0, H = 32, 34, 36
T = [40, 42, 44, 46, 48]
cmul_multi([(O0, C0, W1, T[0]), (H, C0, G, T[1]), (W4, W2, W2, T[2])])
kt_write(0, C0, 50, True)
kt_write(1, O0, 51, True)
kt_write(13, H, 52, True)
Z1 = 38
Hs = {1: H}
Hn = [54, 56, 58, 60, 52 + 12, 66]
cur_e, cur_o, cur_b = C0, O0, H
step_regs = [(E0, O0, Z1)]
hprev = H
for n in range(5):
    jobs = [(E0, cur_e, W2, T[0]), (Z1, cur_b, W2, T[2]), (Hn[n], hprev, G, T[3])]
    if n < 4:
        jobs.insert(1, (O0, cur_o, W2, T[1]))
    cmul_multi(jobs)
    cur_e, cur_b, hprev = E0, Z1, Hn[n]
    kt_write(2 * n + 2, E0, 50, True)
    if n < 4:
        kt_write(2 * n + 3, O0, 51, True)
    kt_write(14 + n, Z1, 52, True)
    kt_write({0: 21, 1: 26, 2: 11, 3: 19, 4: 24}[n], Hn[n], 53, True)
H2, H3, H4, H5, H6, H7 = Hn
cmul_multi([(H7, H6, G, T[0]), (E0, H2, W4, T[1]), (O0, H3, W4, T[2]), (H2, H2, W8, T[3]), (H3, H3, W8, T[4])])
kt_write(29, H7, 50, True)
kt_write(22, E0, 51, True)
kt_write(27, O0, 52, True)
kt_write(23, H2, 53, True)
kt_write(28, H3, 50, True)
cmul_multi([(H4, H4, W8, T[0]), (H5, H5, W8, T[1]), (H6, H6, W8, T[2]), (H7, H7, W8, T[3])])
kt_write(12, H4, 50, True)
kt_write(20, H5, 51, True)
kt_write(25, H6, 52, True)
kt_write(30, H7, 53, True)
a('s_lshl_b32 s51, %d, s4' % (1 << B_KT))
set_status('s51', 'v160', 'v50')
stamp(3)
tabA0 = [min(r, 12) for r in range(16)]
tabA1 = [0, 0, 1, 2, 2, 2, 3, 4, 4, 4, 5, 6, 7, 7, 7, 7]
tabB = [min(r, 4) for r in range(16)]


def nib64(t):
    v = sum(x << (4 * i) for i, x in enumerate(t))
    return v & 0xffffffff, v >> 32


a('s_cmp_eq_u32 s50, 0')
for (sreg, ta, tb) in ((54, tabA0, tabB), (56, tabA1, tabB)):
    la, ha = nib64(ta)
    lb, hb = nib64(tb)
    a('s_mov_b32 s%d, 0x%x' % (sreg, lb))
    a('s_mov_b32 s%d, 0x%x' % (sreg + 1, hb))
    a('s_cmov_b32 s%d, 0x%x' % (sreg, la))
    a('s_cmov_b32 s%d, 0x%x' % (sreg + 1, ha))
a('s_cselect_b32 s58, 0, 21')
a('s_cselect_b32 s59, 13, 26')
a('v_and_b32 v20, 31, v1')
a('v_and_b32 v21, 4, v20')
a('v_cmp_ne_u32 vcc, 0, v21')
a('v_and_b32 v21, 3, v20')
a('v_lshrrev_b32 v22, 3, v20')
a('v_lshl_add_u32 v21, v22, 2, v21')
a('v_lshlrev_b32 v21, 2, v21')
a('v_mov_b32 v22, s54')
a('v_mov_b32 v23, s55')
a('v_mov_b32 v24, s56')
a('v_mov_b32 v25, s57')
a('v_mov_b32 v26, s58')
a('v_mov_b32 v27, s59')
a('v_cndmask_b32 v22, v22, v24, vcc')
a('v_cndmask_b32 v23, v23, v25, vcc')
a('v_cndmask_b32 v26, v26, v27, vcc')
a('v_lshrrev_b64 v[22:23], v21, v[22:23]')
a('v_and_b32 v22, 15, v22')
a('v_add_u32 v22, v22, v26')
a('s_mul_i32 s7, s43, %d' % KT[1])
a('v_lshrrev_b32 v23, 5, v1')
a('v_lshl_add_u32 v23, v23, 4, s7')
a('s_movk_i32 s51, %d' % KTS)
a('v_mad_u32_u24 v30, v22, s51, v23')
a('v_mad_u32_u24 v31, v20, s51, v23')
a('v_and_b32 v20, 15, v1')
a('v_lshrrev_b32 v21, 4, v1')
a('v_add_u32 v22, 1, v20')
a('v_and_b32 v23, 3, v22')
a('v_lshrrev_b32 v22, 2, v22')
a('s_mul_i32 s7, s43, %d' % (KC[1] - KC[0]))
a('s_add_u32 s7, s7, %d' % KC[0])
a('s_movk_i32 s51, %d' % KCS)
a('v_mov_b32 v35, s7')
a('v_mad_u32_u24 v35, v23, s51, v35')
a('v_lshl_add_u32 v35, v22, 3, v35')
a('v_lshl_add_u32 v35, v21, 4, v35')
a('s_mul_i32 s51, s43, %d' % (UB[1] - UB[0]))
a('s_add_u32 s51, s51, %d' % (UB[0] + 16 * 33 - 448))
a('v_lshlrev_b32 v22, 1, v20')
a('v_sub_u32 v22, v22, v21')
a('v_lshl_add_u32 v36, v22, 4, s51')
a('s_mul_i32 s51, s43, %d' % (YB[1] - YB[0]))
a('s_add_u32 s51, s51, %d' % YB[0])
a('v_lshl_add_u32 v37, v20, 5, s51')
a('v_lshl_add_u32 v37, v21, 3, v37')
a('s_lshl_b32 s51, s50, 10')
a('s_add_u32 s7, s7, s51')
a('s_add_u32 s7, s7, 32')
a('v_lshl_add_u32 v38, v1, 4, s7')
a('s_lshl_b32 s51, %d, s43' % (0x55 << B_KT))
wait_status('s51', 'v160', 'v20')
stamp(4)
KA = [80, 84, 88, 92]
KB = [96, 100, 104, 108]
for s in range(4):
    a('ds_read_b128 %s, v30 offset:%d' % (Q(KA[s]), 32 * s))
    a('ds_read_b128 %s, v31 offset:%d' % (Q(KB[s]), 32 * KTS + 32 * s))
for s in range(16):
    a('s_waitcnt lgkmcnt(%d)' % min(6, 2 * (15 - s)))
    a('v_mfma_f32_32x32x16_bf16 v[64:79], %s, %s, %s' % (Q(KA[s % 4]), Q(KB[s % 4]), '0' if s == 0 else 'v[64:79]'))
    if s + 4 < 16:
        a('ds_read_b128 %s, v30 offset:%d' % (Q(KA[s % 4]), 32 * (s + 4)))
        a('ds_read_b128 %s, v31 offset:%d' % (Q(KB[s % 4]), 32 * KTS + 32 * (s + 4)))
a('s_mov_b32 s54, 0x80000000')
a('s_mov_b32 s55, 0x80000000')
a('s_mov_b32 s56, 0')
a('s_mov_b32 s57, 0x80000000')
a('s_mov_b32 s58, 0xaaaaaaaa')
a('s_mov_b32 s59, 0xaaaaaaaa')
a('s_cmp_eq_u32 s50, 0')
a('s_cbranch_scc0 L_kwin_b')


def write_window(seq, off):
    for s in range(4):
        base = 80 + 4 * s
        for k in range(4):
            a('v_cvt_pk_bf16_f32 v%d, v%d, v%d' % (base + k, seq[s + 2 * k], seq[s + 2 * k + 1]))
        a('ds_write_b128 v38, %s offset:%d' % (Q(base), off + s * KCS))


def seg3_window(y0, y1, z, off):
    a('v_cndmask_b32 v%d, v%d, v%d, s[58:59]' % (z, y0, y1))
    write_window([y0, y0, y0, y0, z] + [y1] * 6, off)


a('v_cndmask_b32 v73, v73, v72, s[54:55]')
a('v_cndmask_b32 v74, v74, v72, s[56:57]')
write_window(list(range(64, 75)), 0)
seg3_window(75, 76, 77, 4 * 512)
a('v_cvt_pk_bf16_f32 v96, 0, v64')
a('v_cvt_pk_bf16_f32 v97, v65, v66')
a('v_cvt_pk_bf16_f32 v98, v64, v65')
a('v_subrev_u32 v99, 16, v38')
a('s_mov_b64 exec, 1')
a('ds_write_b32 v99, v96 offset:%d' % (1 * KCS + 12))
a('ds_write_b32 v99, v98 offset:%d' % (2 * KCS + 12))
a('ds_write_b64 v99, v[96:97] offset:%d' % (3 * KCS + 8))
a('s_mov_b64 exec, -1')
a('s_branch L_kwin_done')
a.label('L_kwin_b')
write_window([64, 64, 64, 65, 65, 65, 66, 66, 66, 66, 66], 0)
seg3_window(67, 68, 77, 4 * 512)
a.label('L_kwin_done')
a('s_lshl_b32 s51, %d, s4' % (1 << B_KC))
set_status('s51', 'v160', 'v20')
stamp(5)
import math as _m
FBASE = 448


def conv_role(tiles):
    acc = {t: 40 + 4 * n for n, t in enumerate(tiles)}
    top = max(tiles)
    loads = []
    mf = []
    for e0 in range(8):
        for g in range(top, -1, -1):
            loads.append(('A', e0, g))
            loads.append(('B', e0, top - g))
            for t in sorted(tiles, reverse=True):
                if 0 <= t - g:
                    mf.append((t, ('A', e0, g), ('B', e0, t - g)))
    last = {}
    for n, (t, ka, kb) in enumerate(mf):
        last[ka] = n
        last[kb] = n
    free = [64 + 4 * n for n in range(16)]
    slot = {}
    issued = []
    done_upto = [0]
    nxt = [0]
    ninstr = lambda k: 2 if k[0] == 'A' else 1
    total = sum(ninstr(k) for k in loads)
    R = total / float(len(mf))
    LEAD = opt('lead', 15)

    def issue_one():
        k = loads[nxt[0]]
        if not free:
            return False
        r = free.pop(0)
        slot[k] = r
        if k[0] == 'A':
            off = 64 * k[1] + 512 * k[2]
            a('ds_read_b64 %s, v35 offset:%d' % (P(r), off))
            a('ds_read_b64 %s, v35 offset:%d' % (P(r + 2), off + 8))
            issued.extend([k, k])
        else:
            a('ds_read_b128 %s, v36 offset:%d' % (Q(r), FBASE + 512 * k[2] - 64 * k[1]))
            issued.append(k)
        nxt[0] += 1
        return True

    def issue_until(target):
        while nxt[0] < len(loads) and len(issued) + ninstr(loads[nxt[0]]) <= target and \
                len(issued) + ninstr(loads[nxt[0]]) - done_upto[0] <= 15:
            if not issue_one():
                break

    issue_until(LEAD)
    seen = set()
    for n, (t, ka, kb) in enumerate(mf):
        need = 0
        for k in (ka, kb):
            while k not in slot:
                assert issue_one()
            need = max(need, max(i for i, x in enumerate(issued) if x == k) + 1)
        if need > done_upto[0]:
            a('s_waitcnt lgkmcnt(%d)' % (len(issued) - need))
            done_upto[0] = need
        a('v_mfma_f32_16x16x32_bf16 %s, %s, %s, %s' % (Q(acc[t]), Q(slot[ka]), Q(slot[kb]), Q(acc[t]) if t in seen else '0'))
        seen.add(t)
        for k in (ka, kb):
            if last[k] == n:
                free.append(slot[k])
        issue_until(int(_m.ceil((n + 1) * R)) + LEAD)
    for n, t in enumerate(sorted(tiles)):
        a('v_cvt_pk_bf16_f32 v%d, v%d, v%d' % (20 + 2 * n, acc[t], acc[t] + 1))
        a('v_cvt_pk_bf16_f32 v%d, v%d, v%d' % (21 + 2 * n, acc[t] + 2, acc[t] + 3))
        a('ds_write_b64 v37, %s offset:%d' % (P(20 + 2 * n), 512 * t))
    bits = sum(1 << (2 * q) for q in set(t // 2 for t in tiles)) << B_Y
    a('s_lshl_b32 s51, %d, s43' % bits)
    set_status('s51', 'v160', 'v28')
    stamp(7)
    finish()


a('s_setprio 1')
a('s_lshl_b32 s51, %d, s43' % (0x5 << B_KC))
a('s_or_b32 s51, s51, %d' % (15 << B_U))
wait_status('s51', 'v160', 'v20')
stamp(6)
a('s_cmp_eq_u32 s50, 0')
a('s_cbranch_scc0 L_conv_y')
conv_role([7, 6, 1, 0])
a.label('L_conv_y')
conv_role([5, 4, 3, 2])

a.label('L_io')
W8 = 20
CH = [22, 24, 26, 28]
T = [40, 42, 44, 46]
cexp_multi([(W8, 8.0, 40), (CH[1], 64.0, 42), (CH[2], 128.0, 44), (CH[3], 192.0, 46)], 10, 11)
a('v_mov_b32 v50, 0x00003f80')
a('ds_write_b32 v62, v50 offset:%d' % (32 * KTS))
kt_write(33, W8, 51, False)
for q in range(1, 4):
    kt_write(32 + 8 * q, CH[q], 51 + q, False)
for n in range(1, 8):
    jobs = []
    if n >= 2:
        jobs.append((CH[0], W8 if n == 2 else CH[0], W8, T[0]))
    for q in range(1, 4):
        jobs.append((CH[q], CH[q], W8, T[q]))
    cmul_multi(jobs)
    for q in range(4):
        if q == 0 and n < 2:
            continue
        kt_write(32 + 8 * q + n, CH[q], 50 + q, False)
a('s_lshl_b32 s51, %d, s4' % (1 << B_KT))
set_status('s51', 'v160', 'v50')
stamp(3)
a('s_sub_u32 s53, s4, 4')
a('s_lshl_b32 s7, s53, 6')
a('v_add_u32 v2, s7, v1')
a('v_mul_u32_u24 v3, 48, v2')
a('v_add_u32 v3, %d, v3' % WS_STATS)
a('s_mul_i32 s7, s3, 12288')
a('s_add_u32 s7, s7, %d' % WS_XT)
a('v_lshrrev_b32 v4, 3, v2')
a('v_mul_u32_u24 v4, 384, v4')
a('v_and_b32 v7, 7, v2')
a('v_lshl_add_u32 v4, v7, 4, v4')
a('v_add_u32 v4, s7, v4')
a('v_lshlrev_b32 v5, 4, v2')
a('v_add_u32 v5, %d, v5' % (UB[0] + 512))
a('s_lshl_b32 s54, s49, 16')
a('s_and_b32 s55, s49, s52')
a('s_mov_b32 s56, 0x05040100')
a('s_mov_b32 s57, 0x07060302')
a('s_setprio 2')
if opt('sleepS', 0):
    a('s_sleep %d' % opt('sleepS', 0))
if opt('gateK', 0):
    wait_status('%d' % (1 << B_IDX), 'v160', 'v7')
stamp(4)
a('s_mov_b32 s59, 0')
a.label('L_io_poll_loop')
a('global_load_dwordx4 v[112:115], v4, s[40:41] sc1')
a('global_load_dwordx4 v[116:119], v4, s[40:41] offset:128 sc1')
a('global_load_dwordx4 v[120:123], v4, s[40:41] offset:256 sc1')
a('global_load_dwordx4 v[20:23], v3, s[40:41] sc1')
a('global_load_dwordx4 v[24:27], v3, s[40:41] offset:16 sc1')
a('global_load_dwordx4 v[28:31], v3, s[40:41] offset:32 sc1')
a('s_add_u32 s59, s59, 1')
a('s_waitcnt vmcnt(3)')
a('v_cmp_ne_u32 vcc, s5, v115')
a('v_cmp_ne_u32 s[60:61], s5, v119')
a('v_cmp_ne_u32 s[62:63], s5, v123')
XR = [112, 113, 114, 116, 117, 118, 120, 121]
for i in range(8):
    a('v_lshlrev_b32 v%d, 16, v%d' % (40 + 2 * i, XR[i]))
    a('v_and_b32 v%d, s52, v%d' % (41 + 2 * i, XR[i]))
a('s_or_b64 vcc, vcc, s[60:61]')
a('s_or_b64 vcc, vcc, s[62:63]')
a('s_waitcnt vmcnt(0)')
a('v_cmp_ne_u32 s[60:61], s5, v23')
a('v_cmp_ne_u32 s[62:63], s5, v27')
a('s_or_b64 vcc, vcc, s[60:61]')
a('v_cmp_ne_u32 s[60:61], s5, v31')
a('s_or_b64 vcc, vcc, s[62:63]')
a('s_or_b64 vcc, vcc, s[60:61]')
a('s_and_b64 exec, exec, vcc')
a('s_cbranch_execz L_io_poll_done')
a('s_sleep 2')
a('s_cmp_lt_u32 s59, %d' % POLL_MAX)
a('s_cbranch_scc1 L_io_poll_loop')
a.label('L_io_poll_done')
a('s_mov_b64 exec, -1')
stamp(5)
MS = [20, 21, 22, 24, 25, 26, 28, 29]
for i in range(8):
    a('v_and_b32 v%d, s52, v%d' % (81 + 2 * i, MS[i]))
    a('v_lshlrev_b32 v%d, 16, v%d' % (80 + 2 * i, MS[i]))
for i in range(8):
    a('v_rcp_f32 v%d, v%d' % (81 + 2 * i, 81 + 2 * i))
    a('v_pk_add_f32 %s, %s, %s op_sel_hi:[1,0] neg_lo:[0,1] neg_hi:[0,1]' % (P(96 + 2 * i), P(40 + 2 * i), P(80 + 2 * i)))
for i in range(8):
    a('v_cvt_pk_bf16_f32 v%d, v%d, v%d' % (56 + i, 96 + 2 * i, 97 + 2 * i))
for i in range(8):
    a('v_lshlrev_b32 v%d, 16, v%d' % (96 + 2 * i, 56 + i))
    a('v_and_b32 v%d, s52, v%d' % (97 + 2 * i, 56 + i))
for i in range(8):
    a('v_pk_mul_f32 %s, %s, %s op_sel:[0,1] op_sel_hi:[1,1]' % (P(96 + 2 * i), P(96 + 2 * i), P(80 + 2 * i)))
for i in range(8):
    a('v_cvt_pk_bf16_f32 v%d, v%d, v%d' % (56 + i, 96 + 2 * i, 97 + 2 * i))
for u in range(4):
    a('v_perm_b32 v%d, v%d, v%d, s56' % (64 + u, 56 + 6 - 2 * u, 56 + 7 - 2 * u))
a('ds_write_b128 v5, v[64:67]')
for u in range(4):
    a('v_perm_b32 v%d, v%d, v%d, s57' % (68 + u, 56 + 6 - 2 * u, 56 + 7 - 2 * u))
a('ds_write_b128 v5, v[68:71] offset:%d' % (UB[1] - UB[0]))
a('s_lshl_b32 s51, %d, s53' % (1 << B_U))
set_status('s51', 'v160', 'v7')
stamp(6)
for i in range(8):
    a('v_lshlrev_b32 v%d, 16, v%d' % (80 + 2 * i, 56 + i))
    a('v_and_b32 v%d, s52, v%d' % (81 + 2 * i, 56 + i))
for i in range(8):
    a('v_pk_mul_f32 %s, %s, s[54:55]' % (P(96 + 2 * i), P(80 + 2 * i)))
    a('v_pk_add_f32 %s, %s, %s' % (P(40 + 2 * i), P(40 + 2 * i), P(80 + 2 * i)))
for i in range(8):
    a('v_cvt_pk_bf16_f32 v%d, v%d, v%d' % (20 + i, 96 + 2 * i, 97 + 2 * i))
for i in range(8):
    a('v_lshlrev_b32 v%d, 16, v%d' % (96 + 2 * i, 20 + i))
    a('v_and_b32 v%d, s52, v%d' % (97 + 2 * i, 20 + i))
for i in range(8):
    a('v_pk_add_f32 %s, %s, %s' % (P(40 + 2 * i), P(40 + 2 * i), P(96 + 2 * i)))
a('s_not_b32 s7, s5')
for j in range(3):
    a('v_mov_b32 v%d, s7' % (23 + 4 * j))
a('s_lshl_b32 s7, s53, 1')
a('s_lshl_b32 s51, %d, s7' % (3 << B_Y))
a('s_setprio 0')
wait_status('s51', 'v160', 'v7', sleep=opt('sleepY', 0))
a('s_setprio 2')
stamp(7)
a('ds_read_b128 v[64:67], v5 offset:%d' % (YB[0] - UB[0] - 512))
a('ds_read_b128 v[68:71], v5 offset:%d' % (YB[1] - UB[0] - 512))
a('s_waitcnt lgkmcnt(0)')
for j in range(3):
    toks = [i for i in range(3 * j, min(3 * j + 3, 8))]
    for i in toks:
        for c in range(2):
            src = 64 + 4 * c + i // 2
            if i % 2 == 0:
                a('v_lshlrev_b32 v%d, 16, v%d' % (80 + 2 * i + c, src))
            else:
                a('v_and_b32 v%d, s52, v%d' % (80 + 2 * i + c, src))
    for i in toks:
        a('v_pk_add_f32 %s, %s, %s' % (P(80 + 2 * i), P(80 + 2 * i), P(40 + 2 * i)))
    for i in toks:
        a('v_cvt_pk_bf16_f32 v%d, v%d, v%d' % (20 + i + i // 3, 80 + 2 * i, 81 + 2 * i))
    a('global_store_dwordx4 v4, %s, s[40:41] offset:%d sc1' % (Q(20 + 4 * j), 128 * j))
stamp(8)
a('s_setprio 0')
wait_status('%d' % (1 << B_IDX), 'v160', 'v7')
a('ds_read_b32 v7, v160 offset:%d' % (IDXW - STATUS))
a('s_waitcnt lgkmcnt(0)')
a('v_readfirstlane_b32 s60, v7')
a('s_lshr_b32 s7, s60, 9')
a('s_cmp_eq_u32 s7, s53')
a('s_cbranch_scc0 L_io_end')
a('s_lshr_b32 s61, s60, 3')
a('s_and_b32 s60, s60, 7')
a('s_lshl_b64 exec, 1, s61')
a('v_mov_b32 v7, %d' % (1 << B_T1))
for i in range(8):
    l = L('t1')
    a('s_cmp_eq_u32 s60, %d' % i)
    a('s_cbranch_scc0 %s' % l)
    a('ds_write_b64 v160, %s offset:%d' % (P(80 + 2 * i), T1X - STATUS))
    a.label(l)
a('ds_or_b32 v160, v7')
a('s_mov_b64 exec, -1')
a.label('L_io_end')
finish()

a.label('L_special')
a('s_getpc_b64 s[42:43]')
a.label('L_pc')
a('s_sub_u32 s42, s42, L_pc-%s' % NAME)
a('s_subb_u32 s43, s43, 0')
a('s_bfe_u32 s7, s2, 0x30003')
a('s_lshl_b32 s7, s7, 12')
a('v_and_b32 v2, 15, v1')
a('s_sub_u32 s53, s4, 8')
a('s_lshl_b32 s53, s53, 11')
a('s_add_u32 s7, s7, s53')
a('v_lshl_add_u32 v2, v2, 7, s7')
if opt('fullpf', 0):
    a('v_subrev_u32 v2, 512, v0')
    a('v_lshlrev_b32 v2, 7, v2')
a('v_min_u32 v2, L_end-%s-4, v2' % NAME)
a('global_load_dword v3, v2, s[42:43]')
a('v_mov_b32 v160, %d' % STATUS)
a('s_mov_b32 s52, 0xffff0000')
a('s_cmp_eq_u32 s4, 8')
a('s_cbranch_scc1 L_moe')


def have_epoch():
    a('s_waitcnt lgkmcnt(0)')
    a('s_mul_i32 s5, s6, 0x9E3779B1')
    a('s_add_u32 s5, s5, 0x7F4A7C15')
    a('s_mov_b64 exec, 1')
    a('v_mov_b32 v13, 16')
    a('ds_add_u32 v160, v13 offset:%d' % (LNW - STATUS))
    a('s_mov_b64 exec, -1')


a('s_and_b32 s50, s3, 31')
a('s_lshr_b32 s51, s3, 5')
a('s_lshl_b32 s7, s50, 16')
a('s_lshl_b32 s53, s51, 7')
a('s_add_u32 s7, s7, s53')
a('v_and_b32 v6, 7, v1')
a('v_lshrrev_b32 v7, 3, v1')
a('v_lshl_add_u32 v4, v7, 4, s7')
a('v_lshl_add_u32 v4, v6, 13, v4')
a('v_add_u32 v5, 4096, v4')
a('s_waitcnt lgkmcnt(0)')
if opt('tlast', 0):
    a('s_barrier')
RW = lambda i: 64 + 4 * i
GR = lambda rho, i: 16 + 12 * rho + i + i // 3
for i in range(8):
    a('global_load_dwordx4 %s, %s, s[8:9] offset:%d' % (Q(RW(i)), 'v4' if i < 4 else 'v5', 1024 * (i % 4)))
a('s_load_dword s6, s[40:41], 0')
if not opt('tlast', 0):
    a('s_barrier')
a('s_mul_i32 s7, s51, %d' % (32 * 12288))
a('s_mul_i32 s53, s50, 384')
a('s_add_u32 s7, s7, s53')
a('s_add_u32 s7, s7, %d' % WS_XT)
a('s_mov_b32 s53, %d' % (4 * 12288))
a('v_lshl_add_u32 v8, v6, 4, s7')
a('v_mad_u32_u24 v8, v7, s53, v8')
for rho in range(1, 4):
    a('v_add_u32 v%d, %d, v8' % (8 + rho, rho * 12288))
have_epoch()
for rho in range(4):
    for j in range(3):
        a('v_mov_b32 v%d, s5' % (16 + 12 * rho + 4 * j + 3))
stamp(1)
a('s_setprio 3')
for j in range(3):
    toks = [i for i in range(3 * j, min(3 * j + 3, 8))]
    if j == 0:
        a('s_waitcnt vmcnt(0)')
        stamp(2)
    for rho in range(4):
        for i in toks:
            a('v_mov_b32 v%d, v%d' % (GR(rho, i), RW(i) + rho))
        a('global_store_dwordx4 v%d, %s, s[40:41] offset:%d sc1' % (8 + rho, Q(16 + 12 * rho + 4 * j), 128 * j))
stamp(3)
if opt('wmode', 1) == 1:
    a('s_mov_b64 exec, 1')
    a('v_mov_b32 v13, 64')
    a('ds_add_u32 v160, v13 offset:%d' % (LNW - STATUS))
    a('s_mov_b64 exec, -1')
a('s_setprio 0')
a('s_not_b32 s5, s5')
a('s_lshr_b32 s7, s50, 3')
a('s_lshl_b32 s7, s7, 1')
a('s_lshl_b32 s53, %d, s7' % (3 << B_Y))
a('s_or_b32 s53, s53, %d' % (1 << B_IDX))
wait_status('s53', 'v160', 'v13', sleep=2)
a('ds_read_b32 v13, v160 offset:%d' % (IDXW - STATUS))
a('s_waitcnt lgkmcnt(0)')
a('v_readfirstlane_b32 s60, v13')
a('s_lshr_b32 s7, s60, 6')
a('s_bfe_u32 s61, s60, 0x30003')
a('s_and_b32 s60, s60, 7')
a('s_cmp_eq_u32 s7, s50')
a('s_cselect_b32 s60, s60, 8')
a('s_mov_b32 s62, 0x01010101')
a('s_mov_b32 s63, 0x01010101')
a('s_lshl_b64 s[62:63], s[62:63], s61')
a('s_not_b64 s[62:63], s[62:63]')
a('s_setprio 3')
stamp(4)
a('s_sleep %d' % opt('sleepO', 24))
a('s_mov_b32 s59, 0')
a.label('L_ot_loop')
for rho in range(4):
    for j in range(3):
        a('global_load_dwordx4 %s, v%d, s[40:41] offset:%d sc1' % (Q(16 + 12 * rho + 4 * j), 8 + rho, 128 * j))
a('s_add_u32 s59, s59, 1')
a('s_waitcnt vmcnt(0)')
a('v_cmp_ne_u32 vcc, s5, v19')
for n in range(1, 12):
    a('v_cmp_ne_u32 s[56:57], s5, v%d' % (19 + 4 * n))
    a('s_or_b64 vcc, vcc, s[56:57]')
a('s_and_b64 exec, exec, vcc')
a('s_cbranch_execz L_ot_done')
a('s_sleep 2')
a('s_cmp_lt_u32 s59, %d' % POLL_MAX)
a('s_cbranch_scc1 L_ot_loop')
a.label('L_ot_done')
a('s_mov_b64 exec, -1')
stamp(5)
for i in range(8):
    for rho in range(4):
        a('v_mov_b32 v%d, v%d' % (RW(i) + rho, GR(rho, i)))
    a('s_cmp_eq_u32 s60, %d' % i)
    a('s_cselect_b64 exec, s[62:63], -1')
    a('global_store_dwordx4 %s, %s, s[36:37] offset:%d' % ('v4' if i < 4 else 'v5', Q(RW(i)), 1024 * (i % 4)))
    a('s_mov_b64 exec, -1')
finish()

a.label('L_moe')
a('s_setprio 3')
for k in range(8, 12):
    a('v_mov_b32 v%d, 0' % k)
a('v_and_b32 v6, 31, v1')
a('v_lshlrev_b32 v6, 4, v6')
a('v_lshrrev_b32 v7, 5, v1')
a('s_movk_i32 s51, %d' % (UB[1] - UB[0]))
a('v_mad_u32_u24 v6, v7, s51, v6')
a('ds_write_b128 v6, v[8:11] offset:%d' % UB[0] if UB[0] < 65536 else '')
if UB[0] >= 65536:
    a('v_add_u32 v6, %d, v6' % UB[0])
    a('ds_write_b128 v6, v[8:11]')
a('v_lshrrev_b32 v6, 1, v1')
a('v_and_b32 v7, 1, v1')
a('s_movk_i32 s51, %d' % KCS)
a('v_mul_u32_u24 v6, s51, v6')
a('v_lshl_add_u32 v6, v7, 4, v6')
a('v_add_u32 v6, %d, v6' % KC[0])
a('v_mov_b32 v7, %d' % STATUS)
a('v_cmp_gt_u32 vcc, 16, v1')
a('v_cndmask_b32 v6, v7, v6, vcc')
a('ds_write_b128 v6, v[8:11]')
a('ds_write_b128 v7, v[8:11] offset:16')
a('s_lshr_b32 s50, s3, 3')
a('s_and_b32 s51, s3, 7')
a('v_and_b32 v4, 15, v1')
a('v_lshrrev_b32 v5, 4, v1')
a('s_mul_i32 s7, s51, %d' % (64 * 3584))
a('s_lshl_b32 s53, s50, 7')
a('s_add_u32 s7, s7, s53')
a('v_lshl_add_u32 v6, v4, 3, s7')
a('s_movk_i32 s53, %d' % (8 * 3584))
a('v_mad_u32_u24 v6, v5, s53, v6')
a('s_lshl_b32 s7, s50, 16')
a('s_lshl_b32 s53, s51, 7')
a('s_add_u32 s7, s7, s53')
a('v_lshl_add_u32 v7, v4, 3, s7')
a('v_lshl_add_u32 v7, v5, 13, v7')
a('s_waitcnt lgkmcnt(0)')
a('s_load_dword s6, s[40:41], 0')
for base, ptr, size in ((44, 30, 512 * 3584), (56, 32, 512 * 3584), (60, 34, 1792 * 1024)):
    a('s_mov_b32 s%d, s%d' % (base, ptr))
    a('s_mov_b32 s%d, s%d' % (base + 1, ptr + 1))
    a('s_mov_b32 s%d, %d' % (base + 2, size))
    a('s_mov_b32 s%d, 0x00020000' % (base + 3))
a('v_lshlrev_b32 v8, 4, v1')
a('v_add_u32 v8, %d, v8' % WS_KEYS)
a('s_barrier')
RB = lambda b, m: 16 + 16 * b + 2 * m
LATE_D = opt('lateD', 1)


def gate_up_loads():
    for h in range(2):
        for m in range(8):
            a('s_mov_b32 s53, %d' % ((32 * h + m) * 3584))
            a('buffer_load_dwordx2 %s, v6, s[44:47], s53 offen' % P(RB(h, m)))
            a('buffer_load_dwordx2 %s, v6, s[56:59], s53 offen' % P(RB(2 + h, m)))


def down_loads(base):
    for h in range(2):
        for m in range(8):
            if m % 4 == 0:
                a('s_mov_b32 s53, %d' % ((32 * h + m) * 1024))
            a('buffer_load_dwordx2 %s, v7, s[60:63], s53 offen offset:%d' % (P(base + 16 * h + 2 * m), 1024 * (m % 4)))


if opt('sleepW', 4):
    a('s_sleep %d' % opt('sleepW', 4))
if opt('touch', 1):
    a('s_lshl_b32 s7, s3, 13')
    a('v_mov_b32 v9, s7')
    a('global_load_dword v2, v9, s[36:37]')
a('s_lshr_b32 s7, s2, 3')
a('s_lshl_b32 s7, s7, 9')
a('s_add_u32 s7, s7, %d' % WS_STATS)
a('v_and_b32 v9, 3, v1')
a('v_lshl_add_u32 v9, v9, 7, s7')
if opt('touchS', 1):
    a('global_load_dword v2, v9, s[40:41] sc1')
if opt('touch', 1):
    a('v_mov_b32 v9, 0x3f0000')
    a('global_load_dword v2, v9, s[40:41]')
if opt('touchH', 1):
    a('s_lshl_b32 s7, s3, 10')
    a('s_add_u32 s7, s7, %d' % WS_HOPA)
    a('v_and_b32 v9, 7, v1')
    a('v_lshl_add_u32 v9, v9, 7, s7')
    a('s_lshl_b32 s7, s3, 9')
    a('s_add_u32 s7, s7, %d' % WS_HOPB)
    a('v_and_b32 v10, 3, v1')
    a('v_lshl_add_u32 v10, v10, 7, s7')
    a('v_cmp_gt_u32 vcc, 8, v1')
    a('v_cndmask_b32 v9, v10, v9, vcc')
    a('global_load_dword v2, v9, s[40:41] sc1')
have_epoch()
a('s_cmp_ge_u32 s3, 224')
a('s_cbranch_scc1 L_no_w')
if opt('wmode', 1) == 1:
    a.label('L_w_wait')
    a('s_sleep 1')
    a('ds_read_b32 v13, v160 offset:%d' % (LNW - STATUS))
    a('s_sub_u32 s88, s88, 1')
    a('s_cbranch_scc1 L_exit')
    a('s_waitcnt lgkmcnt(0)')
    a('v_readfirstlane_b32 s7, v13')
    a('s_cmp_ge_u32 s7, 168')
    a('s_cbranch_scc0 L_w_wait')
gate_up_loads()
if not LATE_D:
    down_loads(RB(4, 0))
a.label('L_no_w')
stamp(1)
a('s_setprio 0')
a('s_cmp_ge_u32 s3, 224')
a('s_cbranch_scc0 L_moe_has_w')
a('s_sleep %d' % opt('sleepN', 50))
a('s_branch L_moe_keys')
a.label('L_moe_has_w')
a('s_mov_b32 s92, 0x05040100')
a('s_mov_b32 s93, 0x07060302')
if LATE_D:
    RB = lambda b, m: (16 + 16 * b + 2 * m) if b < 4 else (64 + 16 * (b - 4) + 2 * m)
    TB = lambda b: {0: 112, 1: 16, 2: 32, 3: 48, 4: 16, 5: 32}[b]
else:
    TB = lambda b: 112 if b == 0 else 16 + 16 * (b - 1)
a('s_waitcnt vmcnt(0)')
stamp(2)


def transpose_block(b):
    for u in range(4):
        for dw in range(2):
            a('v_perm_b32 v%d, v%d, v%d, s92' % (TB(b) + 4 * (2 * dw) + u, RB(b, 2 * u + 1) + dw, RB(b, 2 * u) + dw))
            a('v_perm_b32 v%d, v%d, v%d, s93' % (TB(b) + 4 * (2 * dw + 1) + u, RB(b, 2 * u + 1) + dw, RB(b, 2 * u) + dw))


for b in range(4 if LATE_D else 6):
    transpose_block(b)
a.label('L_moe_keys')
if opt('warmH', 0):
    a('s_lshl_b32 s7, s50, 13')
    a('s_add_u32 s7, s7, %d' % WS_HOPA)
    a('v_lshl_add_u32 v14, v1, 7, s7')
    a('global_load_dword v2, v14, s[40:41] sc1')
    a('s_lshr_b32 s7, s3, 5')
    a('s_lshl_b32 s7, s7, 9')
    a('s_and_b32 s53, s3, 31')
    a('s_lshl_b32 s53, s53, 4')
    a('s_add_u32 s7, s7, s53')
    a('s_add_u32 s7, s7, %d' % WS_HOPB)
    a('v_min_u32 v14, 27, v1')
    a('v_lshl_add_u32 v14, v14, 12, s7')
    a('global_load_dword v2, v14, s[40:41] sc1')
a('s_setprio 3')
if opt('sleepK', 0):
    a('s_sleep %d' % opt('sleepK', 0))
stamp(3)
a('s_mov_b32 s53, 0')
a.label('L_key_loop')
for k in range(4):
    a('global_load_dwordx4 %s, v8, s[40:41] offset:%d sc1' % (Q(128 + 4 * k), 1024 * k))
a('s_add_u32 s53, s53, 1')
a('s_waitcnt vmcnt(0)')
a('v_cmp_ne_u32 vcc, s5, v131')
a('v_cmp_ne_u32 s[42:43], s5, v135')
a('s_or_b64 vcc, vcc, s[42:43]')
a('v_cmp_ne_u32 s[42:43], s5, v139')
a('s_or_b64 vcc, vcc, s[42:43]')
a('v_cmp_ne_u32 s[42:43], s5, v143')
a('s_or_b64 vcc, vcc, s[42:43]')
a('s_and_b64 exec, exec, vcc')
a('s_cbranch_execz L_key_done')
a('s_sleep 2')
a('s_cmp_lt_u32 s53, %d' % POLL_MAX)
a('s_cbranch_scc1 L_key_loop')
a.label('L_key_done')
a('s_mov_b64 exec, -1')
a('v_max3_u32 v128, v128, v132, v136')
a('v_max_u32 v128, v128, v140')
reduce64('v_max_u32', ['v128'])
a('v_readlane_b32 s54, v128, 63')
a('s_and_b32 s55, s54, 0xffff')
a('s_sub_u32 s55, 2047, s55')
a('s_and_b32 s55, s55, 2047')
stamp(4)
a('s_lshl_b32 s7, s55, 10')
a('s_lshl_b32 s53, s51, 7')
a('s_add_u32 s7, s7, s53')
a('v_lshl_add_u32 v9, v1, 1, s7')
a('v_mov_b32 v96, 0')
a('global_load_short_d16_hi v96, v9, s[8:9]')
a('s_lshr_b32 s7, s55, 3')
a('s_mul_i32 s7, s7, 48')
a('s_and_b32 s53, s55, 7')
a('s_mul_i32 s42, s53, 43')
a('s_lshr_b32 s42, s42, 7')
a('s_mul_i32 s43, s42, 3')
a('s_sub_u32 s94, s53, s43')
a('s_lshl_b32 s42, s42, 4')
a('s_add_u32 s7, s7, s42')
a('s_add_u32 s7, s7, %d' % WS_STATS)
a('v_mov_b32 v107, s7')
a('global_load_dwordx4 v[100:103], v107, s[40:41] sc1')
a('v_mov_b32 v10, s55')
a('v_mov_b32 v11, %d' % (1 << B_IDX))
a('s_mov_b64 exec, 1')
a('ds_write_b32 v160, v10 offset:%d' % (IDXW - STATUS))
a('ds_or_b32 v160, v11')
a('s_mov_b64 exec, -1')
a('s_and_b32 s7, s54, s52')
a('s_not_b32 s42, s7')
a('s_and_b32 s42, s42, s52')
a('s_xor_b32 s43, s7, 0x80000000')
a('s_bitcmp1_b32 s7, 31')
a('s_cselect_b32 s7, s43, s42')
a('v_mov_b32 v12, s7')
a('v_mul_f32 v12, %s, v12' % f32(-LOG2E))
a('v_exp_f32 v12, v12')
a('v_add_f32 v12, 1.0, v12')
a('v_rcp_f32 v12, v12')
a('v_cvt_pk_bf16_f32 v12, v12, v12')
a('v_and_b32 v12, s52, v12')
a('s_mov_b32 s42, 0xaaaaaaaa')
a('s_mov_b32 s43, 0xaaaaaaaa')
a('s_mov_b32 s44, 0xcccccccc')
a('s_mov_b32 s45, 0xcccccccc')
a('s_mov_b32 s46, 0xf0f0f0f0')
a('s_mov_b32 s47, 0xf0f0f0f0')
a('s_mov_b32 s48, 0xff00ff00')
a('s_mov_b32 s49, 0xff00ff00')
a('s_cmp_ge_u32 s3, 224')
a('s_cbranch_scc1 L_moe_idle')
if LATE_D:
    down_loads(RB(4, 0))
a('s_lshl_b32 s7, s3, 10')
a('s_add_u32 s7, s7, %d' % WS_HOPA)
a('v_lshl_add_u32 v13, v1, 4, s7')
a('s_lshl_b32 s7, s50, 13')
a('s_add_u32 s7, s7, %d' % WS_HOPA)
a('v_lshl_add_u32 v14, v1, 4, s7')
a('v_add_u32 v15, 4096, v14')
a('v_lshlrev_b32 v105, 1, v1')
a('v_add_u32 v105, %d, v105' % HS)
a('v_lshlrev_b32 v106, 4, v5')
a('v_add_u32 v106, %d, v106' % HS)
a('v_mov_b32 v110, 0')
a('v_mov_b32 v111, s5')
a('s_mov_b32 s53, 0')
a('s_waitcnt vmcnt(%d)' % (16 if LATE_D else 0))
a.label('L_ms_check')
a('v_readfirstlane_b32 s7, v103')
a('v_readfirstlane_b32 s89, v100')
a('v_readfirstlane_b32 s90, v101')
a('v_readfirstlane_b32 s91, v102')
a('s_cmp_eq_u32 s7, s5')
a('s_cbranch_scc1 L_ms_ok')
a('global_load_dwordx4 v[100:103], v107, s[40:41] sc1')
a('s_add_u32 s53, s53, 1')
a('s_cmp_lt_u32 s53, %d' % POLL_MAX)
a('s_waitcnt vmcnt(0)')
a('s_cbranch_scc1 L_ms_check')
a.label('L_ms_ok')
stamp(5)
a('s_cmp_eq_u32 s94, 1')
a('s_cselect_b32 s89, s90, s89')
a('s_cmp_eq_u32 s94, 2')
a('s_cselect_b32 s89, s91, s89')
a('s_and_b32 s90, s89, s52')
a('s_lshl_b32 s89, s89, 16')
a('v_rcp_f32 v3, s90')
a('v_subrev_f32 v96, s89, v96')
a('v_cvt_pk_bf16_f32 v96, v96, v96')
a('v_and_b32 v96, s52, v96')
a('v_mul_f32 v96, v96, v3')
a('v_cvt_pk_bf16_f32 v96, v96, v96')
a('ds_write_b16 v105, v96 offset:%d' % (XS - HS))
a('ds_read_b128 v[96:99], v106 offset:%d' % (XS - HS))
a('ds_read_b128 v[100:103], v106 offset:%d' % (XS - HS + 64))
a('s_waitcnt lgkmcnt(0)')
for h in range(2):
    for mat in range(2):
        for f in range(4):
            d = 128 + 16 * mat + 4 * f
            a('v_mfma_f32_16x16x32_bf16 %s, %s, %s, %s' % (Q(d), Q(TB(2 * mat + h) + 4 * f), Q(96 + 4 * h), '0' if h == 0 else Q(d)))


def select16(base, dst):
    for r in range(4):
        a('v_cndmask_b32 v%d, v%d, v%d, s[42:43]' % (base + r, base + r, base + 4 + r))
        a('v_cndmask_b32 v%d, v%d, v%d, s[42:43]' % (base + 8 + r, base + 8 + r, base + 12 + r))
    for r in range(4):
        a('v_cndmask_b32 v%d, v%d, v%d, s[44:45]' % (base + r, base + r, base + 8 + r))
    a('v_cndmask_b32 v%d, v%d, v%d, s[46:47]' % (base, base, base + 1))
    a('v_cndmask_b32 v%d, v%d, v%d, s[46:47]' % (base + 2, base + 2, base + 3))
    a('v_cndmask_b32 v%d, v%d, v%d, s[48:49]' % (dst, base, base + 2))


select16(128, 108)
select16(144, 109)
a('global_store_dwordx4 v13, v[108:111], s[40:41] sc1')
stamp(6)
if LATE_D:
    a('s_waitcnt vmcnt(1)')
    stamp(10)
    transpose_block(4)
    transpose_block(5)
if opt('sleepA', 8 if LATE_D else 22):
    a('s_sleep %d' % opt('sleepA', 8 if LATE_D else 22))
a('s_mov_b32 s53, 0')
a.label('L_hopa_loop')
for k in range(8):
    a('global_load_dwordx4 %s, %s, s[40:41] offset:%d sc1' % (Q(128 + 4 * k), 'v14' if k < 4 else 'v15', 1024 * (k % 4)))
a('s_add_u32 s53, s53, 1')
a('s_waitcnt vmcnt(0)')
a('v_cmp_ne_u32 vcc, s5, v131')
for k in range(1, 8):
    a('v_cmp_ne_u32 s[56:57], s5, v%d' % (131 + 4 * k))
    a('s_or_b64 vcc, vcc, s[56:57]')
a('s_and_b64 exec, exec, vcc')
a('s_cbranch_execz L_hopa_done')
a('s_sleep 2')
a('s_cmp_lt_u32 s53, %d' % POLL_MAX)
a('s_cbranch_scc1 L_hopa_loop')
a.label('L_hopa_done')
a('s_mov_b64 exec, -1')
stamp(7)
for k in range(4):
    a('v_pk_add_f32 %s, %s, %s' % (P(128 + 8 * k), P(128 + 8 * k), P(132 + 8 * k)))
a('v_pk_add_f32 v[128:129], v[128:129], v[136:137]')
a('v_pk_add_f32 v[144:145], v[144:145], v[152:153]')
a('v_pk_add_f32 v[128:129], v[128:129], v[144:145]')
a('v_cvt_pk_bf16_f32 v2, v128, v129')
a('v_lshlrev_b32 v3, 16, v2')
a('v_and_b32 v2, s52, v2')
a('v_mul_f32 v10, %s, v3' % f32(-LOG2E))
a('v_exp_f32 v10, v10')
a('v_add_f32 v10, 1.0, v10')
a('v_rcp_f32 v10, v10')
a('v_mul_f32 v10, v3, v10')
a('v_cvt_pk_bf16_f32 v10, v10, v10')
a('v_and_b32 v10, s52, v10')
a('v_mul_f32 v10, v10, v2')
a('v_cvt_pk_bf16_f32 v10, v10, v10')
a('ds_write_b16 v105, v10')
a('ds_read_b128 v[96:99], v106')
a('ds_read_b128 v[100:103], v106 offset:64')
a('s_lshl_b32 s7, s3, 9')
a('s_add_u32 s7, s7, %d' % WS_HOPB)
a('v_lshl_add_u32 v13, v1, 3, s7')
a('s_waitcnt lgkmcnt(0)')
for h in range(2):
    for f in range(4):
        d = 128 + 4 * f
        a('v_mfma_f32_16x16x32_bf16 %s, %s, %s, %s' % (Q(d), Q(TB(4 + h) + 4 * f), Q(96 + 4 * h), '0' if h == 0 else Q(d)))
select16(128, 108)
a('v_mov_b32_dpp v109, v108 quad_perm:[1,1,3,3] row_mask:0xf bank_mask:0xf')
a('s_not_b64 exec, s[42:43]')
a('global_store_dwordx4 v13, v[108:111], s[40:41] sc1')
a('s_mov_b64 exec, -1')
stamp(8)
a('s_sleep %d' % opt('sleepB', 26))
a('s_branch L_moe_final')
a.label('L_moe_idle')
a('s_sleep %d' % opt('sleepI', 70))
a.label('L_moe_final')
a('s_lshr_b32 s7, s3, 5')
a('s_lshl_b32 s7, s7, 9')
a('s_and_b32 s53, s3, 31')
a('s_lshl_b32 s53, s53, 4')
a('s_add_u32 s7, s7, s53')
a('s_add_u32 s7, s7, %d' % WS_HOPB)
a('v_lshl_add_u32 v14, v1, 12, s7')
a('v_mov_b32 v128, 0')
a('v_mov_b32 v129, 0')
a('s_mov_b32 s53, 0')
a('s_mov_b64 exec, 0xfffffff')
a.label('L_hopb_loop')
a('global_load_dwordx4 v[128:131], v14, s[40:41] sc1')
a('s_add_u32 s53, s53, 1')
a('s_waitcnt vmcnt(0)')
a('v_cmp_ne_u32 vcc, s5, v131')
a('s_and_b64 exec, exec, vcc')
a('s_cbranch_execz L_hopb_done')
a('s_sleep 2')
a('s_cmp_lt_u32 s53, %d' % POLL_MAX)
a('s_cbranch_scc1 L_hopb_loop')
a.label('L_hopb_done')
a('s_mov_b64 exec, -1')
stamp(9)
reduce64('v_add_f32', ['v128', 'v129'])
a('v_readlane_b32 s42, v128, 63')
a('v_readlane_b32 s43, v129, 63')
a('v_mov_b32 v3, s43')
a('v_cvt_pk_bf16_f32 v2, s42, v3')
a('v_and_b32 v3, s52, v2')
a('v_lshlrev_b32 v2, 16, v2')
a('v_pk_mul_f32 v[2:3], v[2:3], v[12:13] op_sel_hi:[1,0]')
a('v_cvt_pk_bf16_f32 v2, v2, v3')
a('v_and_b32 v3, s52, v2')
a('v_lshlrev_b32 v2, 16, v2')
a('s_lshl_b32 s42, s55, 10')
a('s_lshl_b32 s43, s3, 2')
a('s_add_u32 s42, s42, s43')
a('v_mov_b32 v9, s42')
wait_status('%d' % (1 << B_T1), 'v160', 'v10')
a('ds_read_b64 v[4:5], v160 offset:%d' % (T1X - STATUS))
a('s_waitcnt lgkmcnt(0)')
a('v_pk_add_f32 v[2:3], v[2:3], v[4:5]')
a('v_cvt_pk_bf16_f32 v2, v2, v3')
a('s_mov_b64 exec, 1')
a('global_store_dword v9, v2, s[36:37]')
a('s_cmp_eq_u32 s2, 0')
a('s_cbranch_scc0 L_no_epoch')
a('s_add_u32 s7, s6, 1')
a('v_mov_b32 v10, 0')
a('v_mov_b32 v11, s7')
a('global_store_dword v10, v11, s[40:41] sc1')
a.label('L_no_epoch')
a('s_mov_b64 exec, -1')
finish()
a.label('L_exit')
a('s_endpgm')
a.label('L_end')

body = a.finalize()
hdr = open('parallel_sum__ssm_conv_s4__moe_arch_mod__prompt.s.ref').read().split('; Override launch')[0]
src = hdr
src += '; Generated by work/gen.py (hand-written instruction streams, scripted unrolling and wait-state padding).\n'
src += '; @launch grid=(256,1,1) block=(640,1,1) lds=%d\n' % LDS_BYTES
src += '.amdgcn_target "amdgcn-amd-amdhsa--gfx950"\n.text\n.globl %s\n.p2align 8\n.type %s,@function\n' % (NAME, NAME)
src += body
src += '''.section .rodata,"a"
.p2align 6
.amdhsa_kernel %s
  .amdhsa_next_free_vgpr 168
  .amdhsa_next_free_sgpr 96
  .amdhsa_accum_offset 168
  .amdhsa_group_segment_fixed_size 0
  .amdhsa_kernarg_size 136
  .amdhsa_user_sgpr_count 2
  .amdhsa_user_sgpr_kernarg_segment_ptr 1
  .amdhsa_system_sgpr_workgroup_id_x 1
.end_amdhsa_kernel
''' % NAME
open(OUT, 'w').write(src)
print('wrote', OUT, 'lds', LDS_BYTES)
```

```python
import sys, struct, math
from asmlib import Asm

NAME = 'parallel_sum__ssm_conv_s4__moe_arch_mod__prompt_kernel'
DEBUG = '--debug' in sys.argv
SPAN = '--span' in sys.argv
OUT = [a for a in sys.argv[1:] if not a.startswith('--')]
OUT = OUT[0] if OUT else 'parallel_sum__ssm_conv_s4__moe_arch_mod__prompt.s'


def opt(name, default):
    for a in sys.argv:
        if a.startswith('--' + name + '='):
            return int(a.split('=')[1], 0)
    return default


def f32(x):
    return '0x%08x' % struct.unpack('<I', struct.pack('<f', x))[0]


WS_STATS = 4096
WS_KEYS = 16384
WS_HOPA = 32768
WS_HOPB = 262144
WS_XT = 0x80000
WS_OT = 4 << 20
WS_DBG = 8 << 20
KTS = 528
KT = [0, 64 * KTS]
KCS = 4160
KC = [2 * 64 * KTS, 2 * 64 * KTS + 4 * KCS]
UB = [KC[1] + 4 * KCS, KC[1] + 4 * KCS + 4608]
YB = [UB[1] + 4608, UB[1] + 4608 + 4096]
MISC = YB[1] + 4096
STG = MISC
STATUS = MISC + 64
IDXW = MISC + 68
T1X = MISC + 72
HS = MISC + 128
XS = MISC + 256
LDS_BYTES = MISC + 384
B_U, B_KC, B_Y, B_IDX, B_T1, B_KT = 0, 4, 8, 16, 17, 18
LNW = MISC + 80
BEST = MISC + 88

POLL_MAX = 1 << 16
FOFF = 64 * 19
LOG2E = 1.4426950408889634
LOG2E_HI = struct.unpack('<f', struct.pack('<f', LOG2E))[0]
LOG2E_LO = LOG2E - LOG2E_HI

a = Asm()
uid = [0]
NTW = ' nt' if opt('ntw', 1) else ''
NTX = ' nt' if opt('ntx', 1) else ''
NTT = ' nt' if opt('ntt', 1) else ''
NTP = ' nt' if opt('ntp', 1) else ''


def L(p):
    uid[0] += 1
    return 'L_%s_%d' % (p, uid[0])


def stamp(n):
    if DEBUG:
        a('%s s[%d:%d]' % ('s_memtime' if '--cyc' in sys.argv else 's_memrealtime', 64 + 2 * n, 65 + 2 * n))


NSTAMP = 12


def finish():
    if DEBUG:
        stamp(NSTAMP - 1)
        a('s_waitcnt lgkmcnt(0)')
        a('s_mov_b64 exec, 1')
        a('s_mul_i32 s7, s2, 10')
        a('s_add_u32 s7, s7, s4')
        a('s_lshl_b32 s7, s7, 6')
        a('s_add_u32 s7, s7, %d' % WS_DBG)
        a('v_mov_b32 v2, s7')
        for n in range(NSTAMP):
            a('v_mov_b32 v3, s%d' % (64 + 2 * n))
            a('global_store_dword v2, v3, s[40:41] offset:%d' % (4 * n))
        for n, r in enumerate((96, 97, 98)):
            a('v_mov_b32 v3, s%d' % r)
            a('global_store_dword v2, v3, s[40:41] offset:%d' % (48 + 4 * n))
    if SPAN:
        l = L('spanlbl')
        a('s_waitcnt vmcnt(0)')
        a('s_memrealtime s[66:67]')
        a('s_cmp_ge_u32 s2, 8')
        a('s_cbranch_scc1 %s' % l)
        a('s_sub_u32 s7, s4, 7')
        a('s_cmp_ge_u32 s7, 2')
        a('s_cbranch_scc1 %s' % l)
        a('s_waitcnt lgkmcnt(0)')
        a('s_mov_b64 exec, 1')
        a('s_lshl_b32 s7, s7, 3')
        a('s_add_u32 s7, s7, s2')
        a('s_lshl_b32 s7, s7, 2')
        a('v_mov_b32 v2, s7')
        a('s_sub_u32 s64, s66, s64')
        a('v_mov_b32 v3, s64')
        a('global_store_dword v2, v3, s[38:39]')
        K = opt('echo', 0)
        if K:
            a('s_cmp_eq_u32 s2, 0')
            a('s_cbranch_scc0 %s' % l)
            a('s_cmp_eq_u32 s4, 8')
            a('s_cbranch_scc0 %s' % l)
            a('s_mul_i32 s64, s64, %d' % K)
            l2 = L('spin')
            a.label(l2)
            a('s_memrealtime s[68:69]')
            a('s_waitcnt lgkmcnt(0)')
            a('s_sub_u32 s68, s68, s66')
            a('s_cmp_lt_u32 s68, s64')
            a('s_cbranch_scc1 %s' % l2)
        a.label(l)
    a('s_endpgm')


def wait_status(need, vaddr, vtmp, sleep=0):
    l = L('ws')
    a.label(l)
    if sleep:
        a('s_sleep %d' % sleep)
    a('ds_read_b32 %s, %s' % (vtmp, vaddr))
    a('s_sub_u32 s88, s88, 1')
    a('s_cbranch_scc1 L_exit')
    a('s_waitcnt lgkmcnt(0)')
    a('v_readfirstlane_b32 s7, %s' % vtmp)
    a('s_and_b32 s7, s7, %s' % need)
    a('s_cmp_eq_u32 s7, %s' % need)
    a('s_cbranch_scc0 %s' % l)


def set_status(bits, vaddr, vtmp):
    a('s_mov_b64 exec, 1')
    a('v_mov_b32 %s, %s' % (vtmp, bits))
    a('ds_or_b32 %s, %s' % (vaddr, vtmp))
    a('s_mov_b64 exec, -1')


def reduce64(op, regs):
    for step in ('row_shr:1 row_mask:0xf', 'row_shr:2 row_mask:0xf', 'row_shr:4 row_mask:0xf', 'row_shr:8 row_mask:0xf',
                 'row_bcast:15 row_mask:0xa', 'row_bcast:31 row_mask:0xc'):
        for r in regs:
            a('%s_dpp %s, %s, %s %s bank_mask:0xf' % (op, r, r, r, step))


def P(n):
    return 'v[%d:%d]' % (n, n + 1)


def Q(n):
    return 'v[%d:%d]' % (n, n + 3)


def cmul(d, z, w, t):
    a('v_pk_mul_f32 %s, %s, %s op_sel:[0,0] op_sel_hi:[0,1]' % (P(t), P(z), P(w)))
    a('v_pk_fma_f32 %s, %s, %s, %s op_sel:[1,1,0] op_sel_hi:[1,0,1] neg_lo:[1,0,0]' % (P(d), P(z), P(w), P(t)))


def cmul_multi(jobs):
    for d, z, w, t in jobs:
        a('v_pk_mul_f32 %s, %s, %s op_sel:[0,0] op_sel_hi:[0,1]' % (P(t), P(z), P(w)))
    for d, z, w, t in jobs:
        a('v_pk_fma_f32 %s, %s, %s, %s op_sel:[1,1,0] op_sel_hi:[1,0,1] neg_lo:[1,0,0]' % (P(d), P(z), P(w), P(t)))


def cexp_multi(jobs, al, be):
    for d, l, t in jobs:
        a('v_mul_f32 v%d, %s, v%d' % (t, f32(l), al))
        a('v_mul_f32 v%d, %s, v%d' % (t + 1, f32(l), be))
    for d, l, t in jobs:
        a('v_exp_f32 v%d, v%d' % (t, t))
        a('v_fract_f32 v%d, v%d' % (t + 1, t + 1))
    for d, l, t in jobs:
        a('v_cos_f32 v%d, v%d' % (d, t + 1))
        a('v_sin_f32 v%d, v%d' % (d + 1, t + 1))
    for d, l, t in jobs:
        a('v_pk_mul_f32 %s, %s, %s op_sel:[0,0] op_sel_hi:[1,0]' % (P(d), P(d), P(t)))


a.label(NAME)
a('s_cmp_ge_u32 s2, 256')
a('s_cbranch_scc1 L_exit')
a('s_load_dwordx16 s[8:23], s[0:1], 0')
a('s_load_dwordx16 s[24:39], s[0:1], 64')
a('s_load_dwordx2 s[40:41], s[0:1], 128')
stamp(0)
if SPAN:
    a('s_memrealtime s[64:65]')
a('v_lshrrev_b32 v2, 6, v0')
a('v_and_b32 v1, 63, v0')
a('s_mov_b32 s88, 0x400000')
a('v_readfirstlane_b32 s4, v2')
a('s_and_b32 s3, s2, 7')
a('s_lshl_b32 s3, s3, 5')
a('s_lshr_b32 s7, s2, 3')
a('s_add_u32 s3, s3, s7')
a('s_cmp_ge_u32 s4, 8')
a('s_cbranch_scc1 L_special')

a('s_lshl_b32 s42, s3, 3')
a('s_add_u32 s42, s42, s4')
a('s_lshl_b32 s7, s42, 10')
a('v_lshlrev_b32 v17, 4, v1')
a('v_add_u32 v18, s7, v17')
a('s_and_b32 s43, s4, 1')
a('s_lshl_b32 s7, s3, 1')
a('s_add_u32 s7, s7, s43')
a('s_lshl_b32 s7, s7, 8')
a('s_bfe_u32 s50, s4, 0x10001')
a('s_lshl_b32 s51, s50, 7')
a('s_add_u32 s7, s7, s51')
a('v_lshl_add_u32 v19, v1, 1, s7')
for r in range(10, 16):
    a('v_mov_b32 v%d, 0' % r)
a('s_lshl_b32 s7, s3, 2')
if opt('st8', 0) == 1:
    stamp(8)
a('s_waitcnt lgkmcnt(0)')
if opt('st8', 0) == 2:
    stamp(8)
a('global_load_dwordx4 v[2:5], v18, s[8:9]' + NTX)
a('s_load_dword s6, s[40:41], 0')
a('s_load_dword s48, s[22:23], s7')
a('s_load_dword s49, s[24:25], s7')
if opt('wfirst', 1):
    a('global_load_dwordx4 v[6:9], v17, s[28:29]')
if not opt('pfirst', 0):
    a('s_barrier')
if not opt('wfirst', 1):
    a('global_load_dwordx4 v[6:9], v17, s[28:29]')
a('global_load_short_d16_hi v10, v19, s[10:11]' + NTP)
a('global_load_short_d16_hi v11, v19, s[12:13]' + NTP)
a('s_cmp_ge_u32 s4, 4')
a('s_cbranch_scc1 L_skip_bc')
a('global_load_short_d16_hi v12, v19, s[14:15]' + NTP)
a('global_load_short_d16_hi v13, v19, s[16:17]' + NTP)
a('global_load_short_d16_hi v14, v19, s[18:19]' + NTP)
a('global_load_short_d16_hi v15, v19, s[20:21]' + NTP)
a.label('L_skip_bc')
if opt('pfirst', 0):
    a('s_barrier')
a('s_mov_b32 s52, 0xffff0000')
a('v_mov_b32 v160, %d' % STATUS)
a('s_mul_i32 s7, s43, %d' % KT[1])
a('s_lshl_b32 s51, s50, 8')
a('s_add_u32 s7, s7, s51')
a('v_lshl_add_u32 v62, v1, 2, s7')
a('s_waitcnt lgkmcnt(0)')
a('s_mul_i32 s5, s6, 0x9E3779B1')
a('s_add_u32 s5, s5, 0x7F4A7C15')
a('s_lshl_b32 s7, s48, 16')
a('s_and_b32 s51, s48, s52')
a('s_cmp_eq_u32 s43, 0')
a('s_cselect_b32 s7, s7, s51')
a('v_mov_b32 v20, s7')
a('v_mul_f32 v21, %s, v20' % f32(LOG2E_HI))
a('v_mov_b32 v22, %s' % f32(LOG2E_HI))
a('v_fma_f32 v22, v20, v22, -v21')
a('v_fmac_f32 v22, %s, v20' % f32(LOG2E_LO))
a('v_exp_f32 v21, v21')
a('v_mul_f32 v22, %s, v22' % f32(math.log(2.0)))
a('v_fmac_f32 v21, v21, v22')
a('v_cvt_pk_bf16_f32 v21, v21, v21')
a('v_and_b32 v16, s52, v21')
a('v_mov_b32 v44, 0')
a('v_mov_b32 v45, 0')
a('v_mov_b32 v46, 0x3f803f80')
a('v_mov_b32 v47, %s' % f32(1.0 / 512))
a('s_sub_u32 s47, 2047, s42')
a('v_mov_b32 v43, s47')
a('s_lshl_b32 s7, s4, 2')
a('s_add_u32 s7, s7, %d' % STG)
a('v_mov_b32 v48, s7')
a('v_mov_b32 v49, 1')
a('s_mul_i32 s7, s3, 48')
a('s_add_u32 s7, s7, %d' % WS_STATS)
a('v_lshl_add_u32 v50, v1, 4, s7')
a('s_lshl_b32 s7, s3, 4')
a('s_add_u32 s7, s7, %d' % WS_KEYS)
a('v_mov_b32 v51, s7')
a('s_mov_b64 s[54:55], 8')
a('v_cndmask_b32 v50, v50, v51, s[54:55]')
a('v_mul_u32_u24 v51, 12, v1')
a('v_min_u32 v51, 24, v51')
a('v_add_u32 v51, %d, v51' % STG)
a('v_mov_b32 v52, %d' % BEST)
a('v_cndmask_b32 v51, v51, v52, s[54:55]')
a('v_and_b32 v136, 255, v0')
a('v_mul_u32_u24 v137, 48, v136')
a('v_add_u32 v137, %d, v137' % WS_STATS)
a('s_mul_i32 s7, s3, 12288')
a('s_add_u32 s7, s7, %d' % WS_XT)
a('v_lshrrev_b32 v138, 3, v136')
a('v_mul_u32_u24 v138, 384, v138')
a('v_and_b32 v139, 7, v136')
a('v_lshl_add_u32 v138, v139, 4, v138')
a('v_add_u32 v138, s7, v138')
a('v_lshlrev_b32 v139, 4, v136')
a('v_add_u32 v139, %d, v139' % (UB[0] + 512))
a('v_mov_b32 v55, s5')
a('s_setprio 2')
a('s_cmp_ge_u32 s4, 4')
a('s_cbranch_scc1 L_wait_io')
a('s_waitcnt vmcnt(6)')
a.label('L_wait_io')
a('s_waitcnt vmcnt(%d)' % 6 if False else '')
a('s_cbranch_scc0 L_wait_done')
a('s_waitcnt vmcnt(2)')
a.label('L_wait_done')
stamp(1)
a('v_lshlrev_b32 v20, 16, v2')
a('v_and_b32 v21, s52, v2')
a('v_readfirstlane_b32 s44, v20')
for k in range(1, 4):
    a('v_lshlrev_b32 v%d, 16, v%d' % (20 + 2 * k, 2 + k))
    a('v_and_b32 v%d, s52, v%d' % (21 + 2 * k, 2 + k))
for k in range(4):
    a('v_pk_add_f32 %s, %s, s[44:45] op_sel_hi:[1,0] neg_lo:[0,1] neg_hi:[0,1]' % (P(28 + 2 * k), P(20 + 2 * k)))
    a('v_dot2_f32_bf16 v44, v%d, v%d, v44' % (2 + k, 6 + k))
    a('v_dot2_f32_bf16 v45, v46, v%d, v45' % (6 + k))
a('v_pk_add_f32 v[36:37], v[28:29], v[30:31]')
a('v_pk_mul_f32 v[40:41], v[28:29], v[28:29]')
a('v_pk_add_f32 v[38:39], v[32:33], v[34:35]')
a('v_pk_fma_f32 v[40:41], v[30:31], v[30:31], v[40:41]')
a('v_pk_add_f32 v[36:37], v[36:37], v[38:39]')
a('v_pk_fma_f32 v[40:41], v[32:33], v[32:33], v[40:41]')
a('v_add_f32 v36, v36, v37')
a('v_pk_fma_f32 v[40:41], v[34:35], v[34:35], v[40:41]')
a('v_add_f32 v40, v40, v41')
reduce64('v_add_f32', ['v44', 'v45', 'v36', 'v40'])
a('v_mul_f32 v36, v36, v47')
a('v_mul_f32 v40, v40, v47')
a('v_fma_f32 v40, -v36, v36, v40')
a('v_add_f32 v36, s44, v36')
a('v_max_f32 v40, 0, v40')
a('v_cvt_pk_bf16_f32 v41, v36, v40')
a('v_and_b32 v40, s52, v41')
a('v_lshlrev_b32 v36, 16, v41')
a('v_add_f32 v40, %s, v40' % f32(1e-5))
a('v_fma_f32 v44, -v36, v45, v44')
a('v_cvt_pk_bf16_f32 v40, v40, v40')
a('v_and_b32 v40, s52, v40')
a('v_sqrt_f32 v40, v40')
a('v_cvt_pk_bf16_f32 v40, v40, v40')
a('v_and_b32 v40, s52, v40')
a('v_rcp_f32 v38, v40')
a('v_bfi_b32 v42, s52, v40, v41')
a('v_mul_f32 v36, v44, v38')
a('v_cvt_pk_bf16_f32 v36, v36, v36')
a('v_ashrrev_i32 v37, 31, v36')
a('v_or_b32 v37, 0x80000000, v37')
a('v_xor_b32 v36, v36, v37')
a('v_bfi_b32 v43, s52, v36, v43')
a('s_mov_b32 exec_lo, 0')
a('s_mov_b32 exec_hi, 0x80000000')
a('ds_write_b32 v48, v42')
a('ds_max_u64 v160, v[42:43] offset:%d' % (BEST - STATUS))
a('ds_add_rtn_u32 v49, v160, v49 offset:%d' % (LNW - STATUS))
a('s_mov_b64 exec, -1')
a('s_waitcnt lgkmcnt(0)')
a('v_readlane_b32 s7, v49, 63')
stamp(2)
a('s_and_b32 s51, s7, 15')
a('s_cmp_eq_u32 s51, 7')
a('s_cbranch_scc0 L_no_publish')
a.label('L_pub_wait')
a('s_and_b32 s7, s7, 63')
a('s_cmp_ge_u32 s7, 32')
a('s_cbranch_scc1 L_pub_go')
a('ds_read_b32 v49, v160 offset:%d' % (LNW - STATUS))
a('s_sub_u32 s88, s88, 1')
a('s_cbranch_scc1 L_exit')
a('s_waitcnt lgkmcnt(0)')
a('v_readfirstlane_b32 s7, v49')
a('s_branch L_pub_wait')
a.label('L_pub_go')
a('ds_read2_b32 v[52:53], v51 offset0:0 offset1:1')
a('ds_read_b32 v54, v51 offset:8')
a('s_waitcnt lgkmcnt(0)')
a('s_mov_b64 exec, 15')
a('global_store_dwordx4 v50, v[52:55], s[40:41] sc1')
if True:
    a('s_mov_b64 exec, 1')
    a('v_mov_b32 v49, 64')
    a('ds_add_u32 v160, v49 offset:%d' % (LNW - STATUS))
a('s_mov_b64 exec, -1')
a('s_setprio 0')
stamp(10)
a('s_waitcnt vmcnt(1)')
a('s_branch L_params_ok')
a.label('L_no_publish')
a('s_setprio 0')
a('s_waitcnt vmcnt(0)')
a.label('L_params_ok')
stamp(9)
a('v_mul_f32 v10, v16, v10')
a('v_mul_f32 v11, v16, v11')
a('v_mul_f32 v10, %s, v10' % f32(LOG2E))
a('v_mul_f32 v11, %s, v11' % f32(1.0 / (2 * math.pi)))
a('s_cmp_ge_u32 s4, 4')
a('s_cbranch_scc1 L_io')


def kt_write(row, pair, tmp, neg):
    a('v_cvt_pk_bf16_f32 v%d, v%d, %sv%d' % (tmp, pair, '-' if neg else '', pair + 1))
    a('ds_write_b32 v62, v%d offset:%d' % (tmp, row * KTS))


W1, W2, W4, W8, G, C0 = 20, 22, 24, 26, 28, 30
cexp_multi([(W1, 1.0, 40), (G, 256.0, 42), (W8, 8.0, 44)], 10, 11)
a('v_pk_mul_f32 v[12:13], v[12:13], v[16:17] op_sel_hi:[1,0]')
cmul_multi([(C0, 14, 12, 40), (W2, W1, W1, 42)])
E0, O0, H = 32, 34, 36
T = [40, 42, 44, 46, 48]
cmul_multi([(O0, C0, W1, T[0]), (H, C0, G, T[1]), (W4, W2, W2, T[2])])
kt_write(0, C0, 50, True)
kt_write(1, O0, 51, True)
kt_write(13, H, 52, True)
Z1 = 38
Hs = {1: H}
Hn = [54, 56, 58, 60, 52 + 12, 66]
cur_e, cur_o, cur_b = C0, O0, H
step_regs = [(E0, O0, Z1)]
hprev = H
for n in range(5):
    jobs = [(E0, cur_e, W2, T[0]), (Z1, cur_b, W2, T[2]), (Hn[n], hprev, G, T[3])]
    if n < 4:
        jobs.insert(1, (O0, cur_o, W2, T[1]))
    cmul_multi(jobs)
    cur_e, cur_b, hprev = E0, Z1, Hn[n]
    kt_write(2 * n + 2, E0, 50, True)
    if n < 4:
        kt_write(2 * n + 3, O0, 51, True)
    kt_write(14 + n, Z1, 52, True)
    kt_write({0: 21, 1: 26, 2: 11, 3: 19, 4: 24}[n], Hn[n], 53, True)
H2, H3, H4, H5, H6, H7 = Hn
cmul_multi([(H7, H6, G, T[0]), (E0, H2, W4, T[1]), (O0, H3, W4, T[2]), (H2, H2, W8, T[3]), (H3, H3, W8, T[4])])
kt_write(29, H7, 50, True)
kt_write(22, E0, 51, True)
kt_write(27, O0, 52, True)
kt_write(23, H2, 53, True)
kt_write(28, H3, 50, True)
cmul_multi([(H4, H4, W8, T[0]), (H5, H5, W8, T[1]), (H6, H6, W8, T[2]), (H7, H7, W8, T[3])])
kt_write(12, H4, 50, True)
kt_write(20, H5, 51, True)
kt_write(25, H6, 52, True)
kt_write(30, H7, 53, True)
a('s_lshl_b32 s51, %d, s4' % (1 << B_KT))
set_status('s51', 'v160', 'v50')
stamp(3)
tabA0 = [min(r, 12) for r in range(16)]
tabA1 = [0, 0, 1, 2, 2, 2, 3, 4, 4, 4, 5, 6, 7, 7, 7, 7]
tabB = [min(r, 4) for r in range(16)]


def nib64(t):
    v = sum(x << (4 * i) for i, x in enumerate(t))
    return v & 0xffffffff, v >> 32


a('s_cmp_eq_u32 s50, 0')
for (sreg, ta, tb) in ((54, tabA0, tabB), (56, tabA1, tabB)):
    la, ha = nib64(ta)
    lb, hb = nib64(tb)
    a('s_mov_b32 s%d, 0x%x' % (sreg, lb))
    a('s_mov_b32 s%d, 0x%x' % (sreg + 1, hb))
    a('s_cmov_b32 s%d, 0x%x' % (sreg, la))
    a('s_cmov_b32 s%d, 0x%x' % (sreg + 1, ha))
a('s_cselect_b32 s58, 0, 21')
a('s_cselect_b32 s59, 13, 26')
a('v_and_b32 v20, 31, v1')
a('v_and_b32 v21, 4, v20')
a('v_cmp_ne_u32 vcc, 0, v21')
a('v_and_b32 v21, 3, v20')
a('v_lshrrev_b32 v22, 3, v20')
a('v_lshl_add_u32 v21, v22, 2, v21')
a('v_lshlrev_b32 v21, 2, v21')
a('v_mov_b32 v22, s54')
a('v_mov_b32 v23, s55')
a('v_mov_b32 v24, s56')
a('v_mov_b32 v25, s57')
a('v_mov_b32 v26, s58')
a('v_mov_b32 v27, s59')
a('v_cndmask_b32 v22, v22, v24, vcc')
a('v_cndmask_b32 v23, v23, v25, vcc')
a('v_cndmask_b32 v26, v26, v27, vcc')
a('v_lshrrev_b64 v[22:23], v21, v[22:23]')
a('v_and_b32 v22, 15, v22')
a('v_add_u32 v22, v22, v26')
a('s_mul_i32 s7, s43, %d' % KT[1])
a('v_lshrrev_b32 v23, 5, v1')
a('v_lshl_add_u32 v23, v23, 4, s7')
a('s_movk_i32 s51, %d' % KTS)
a('v_mad_u32_u24 v30, v22, s51, v23')
a('v_mad_u32_u24 v31, v20, s51, v23')
a('v_and_b32 v20, 15, v1')
a('v_lshrrev_b32 v21, 4, v1')
a('v_add_u32 v22, 1, v20')
a('v_and_b32 v23, 3, v22')
a('v_lshrrev_b32 v22, 2, v22')
a('s_mul_i32 s7, s43, %d' % (KC[1] - KC[0]))
a('s_add_u32 s7, s7, %d' % KC[0])
a('s_movk_i32 s51, %d' % KCS)
a('v_mov_b32 v35, s7')
a('v_mad_u32_u24 v35, v23, s51, v35')
a('v_lshl_add_u32 v35, v22, 3, v35')
a('v_lshl_add_u32 v35, v21, 4, v35')
a('s_mul_i32 s51, s43, %d' % (UB[1] - UB[0]))
a('s_add_u32 s51, s51, %d' % (UB[0] + 16 * 33 - 448))
a('v_lshlrev_b32 v22, 1, v20')
a('v_sub_u32 v22, v22, v21')
a('v_lshl_add_u32 v36, v22, 4, s51')
a('s_mul_i32 s51, s43, %d' % (YB[1] - YB[0]))
a('s_add_u32 s51, s51, %d' % YB[0])
a('v_lshl_add_u32 v37, v20, 5, s51')
a('v_lshl_add_u32 v37, v21, 3, v37')
a('s_lshl_b32 s51, s50, 10')
a('s_add_u32 s7, s7, s51')
a('s_add_u32 s7, s7, 32')
a('v_lshl_add_u32 v38, v1, 4, s7')
a('s_lshl_b32 s51, %d, s43' % (0x55 << B_KT))
wait_status('s51', 'v160', 'v20')
stamp(4)
KA = [80, 84, 88, 92]
KB = [96, 100, 104, 108]
for s in range(4):
    a('ds_read_b128 %s, v30 offset:%d' % (Q(KA[s]), 32 * s))
    a('ds_read_b128 %s, v31 offset:%d' % (Q(KB[s]), 32 * KTS + 32 * s))
for s in range(16):
    a('s_waitcnt lgkmcnt(%d)' % min(6, 2 * (15 - s)))
    a('v_mfma_f32_32x32x16_bf16 v[64:79], %s, %s, %s' % (Q(KA[s % 4]), Q(KB[s % 4]), '0' if s == 0 else 'v[64:79]'))
    if s + 4 < 16:
        a('ds_read_b128 %s, v30 offset:%d' % (Q(KA[s % 4]), 32 * (s + 4)))
        a('ds_read_b128 %s, v31 offset:%d' % (Q(KB[s % 4]), 32 * KTS + 32 * (s + 4)))
a('s_mov_b32 s54, 0x80000000')
a('s_mov_b32 s55, 0x80000000')
a('s_mov_b32 s56, 0')
a('s_mov_b32 s57, 0x80000000')
a('s_mov_b32 s58, 0xaaaaaaaa')
a('s_mov_b32 s59, 0xaaaaaaaa')
a('s_cmp_eq_u32 s50, 0')
a('s_cbranch_scc0 L_kwin_b')


def write_window(seq, off):
    for s in range(4):
        base = 80 + 4 * s
        for k in range(4):
            a('v_cvt_pk_bf16_f32 v%d, v%d, v%d' % (base + k, seq[s + 2 * k], seq[s + 2 * k + 1]))
        a('ds_write_b128 v38, %s offset:%d' % (Q(base), off + s * KCS))


def seg3_window(y0, y1, z, off):
    a('v_cndmask_b32 v%d, v%d, v%d, s[58:59]' % (z, y0, y1))
    write_window([y0, y0, y0, y0, z] + [y1] * 6, off)


a('v_cndmask_b32 v73, v73, v72, s[54:55]')
a('v_cndmask_b32 v74, v74, v72, s[56:57]')
write_window(list(range(64, 75)), 0)
seg3_window(75, 76, 77, 4 * 512)
a('v_cvt_pk_bf16_f32 v96, 0, v64')
a('v_cvt_pk_bf16_f32 v97, v65, v66')
a('v_cvt_pk_bf16_f32 v98, v64, v65')
a('v_subrev_u32 v99, 16, v38')
a('s_mov_b64 exec, 1')
a('ds_write_b32 v99, v96 offset:%d' % (1 * KCS + 12))
a('ds_write_b32 v99, v98 offset:%d' % (2 * KCS + 12))
a('ds_write_b64 v99, v[96:97] offset:%d' % (3 * KCS + 8))
a('s_mov_b64 exec, -1')
a('s_branch L_kwin_done')
a.label('L_kwin_b')
write_window([64, 64, 64, 65, 65, 65, 66, 66, 66, 66, 66], 0)
seg3_window(67, 68, 77, 4 * 512)
a.label('L_kwin_done')
a('s_lshl_b32 s51, %d, s4' % (1 << B_KC))
set_status('s51', 'v160', 'v20')
stamp(5)
import math as _m
FBASE = 448


def conv_role(tiles):
    acc = {t: 40 + 4 * n for n, t in enumerate(tiles)}
    top = max(tiles)
    loads = []
    mf = []
    for e0 in range(8):
        for g in range(top, -1, -1):
            loads.append(('A', e0, g))
            loads.append(('B', e0, top - g))
            for t in sorted(tiles, reverse=True):
                if 0 <= t - g:
                    mf.append((t, ('A', e0, g), ('B', e0, t - g)))
    last = {}
    for n, (t, ka, kb) in enumerate(mf):
        last[ka] = n
        last[kb] = n
    free = [64 + 4 * n for n in range(16)]
    slot = {}
    issued = []
    done_upto = [0]
    nxt = [0]
    ninstr = lambda k: 2 if k[0] == 'A' else 1
    total = sum(ninstr(k) for k in loads)
    R = total / float(len(mf))
    LEAD = opt('lead', 15)

    def issue_one():
        k = loads[nxt[0]]
        if not free:
            return False
        r = free.pop(0)
        slot[k] = r
        if k[0] == 'A':
            off = 64 * k[1] + 512 * k[2]
            a('ds_read_b64 %s, v35 offset:%d' % (P(r), off))
            a('ds_read_b64 %s, v35 offset:%d' % (P(r + 2), off + 8))
            issued.extend([k, k])
        else:
            a('ds_read_b128 %s, v36 offset:%d' % (Q(r), FBASE + 512 * k[2] - 64 * k[1]))
            issued.append(k)
        nxt[0] += 1
        return True

    def issue_until(target):
        while nxt[0] < len(loads) and len(issued) + ninstr(loads[nxt[0]]) <= target and \
                len(issued) + ninstr(loads[nxt[0]]) - done_upto[0] <= 15:
            if not issue_one():
                break

    issue_until(LEAD)
    seen = set()
    for n, (t, ka, kb) in enumerate(mf):
        need = 0
        for k in (ka, kb):
            while k not in slot:
                assert issue_one()
            need = max(need, max(i for i, x in enumerate(issued) if x == k) + 1)
        if need > done_upto[0]:
            a('s_waitcnt lgkmcnt(%d)' % (len(issued) - need))
            done_upto[0] = need
        a('v_mfma_f32_16x16x32_bf16 %s, %s, %s, %s' % (Q(acc[t]), Q(slot[ka]), Q(slot[kb]), Q(acc[t]) if t in seen else '0'))
        seen.add(t)
        for k in (ka, kb):
            if last[k] == n:
                free.append(slot[k])
        issue_until(int(_m.ceil((n + 1) * R)) + LEAD)
    for n, t in enumerate(sorted(tiles)):
        a('v_cvt_pk_bf16_f32 v%d, v%d, v%d' % (20 + 2 * n, acc[t], acc[t] + 1))
        a('v_cvt_pk_bf16_f32 v%d, v%d, v%d' % (21 + 2 * n, acc[t] + 2, acc[t] + 3))
        a('ds_write_b64 v37, %s offset:%d' % (P(20 + 2 * n), 512 * t))
    bits = sum(1 << (2 * q) for q in set(t // 2 for t in tiles)) << B_Y
    a('s_lshl_b32 s51, %d, s43' % bits)
    set_status('s51', 'v160', 'v28')
    stamp(7)
    finish()


a('s_setprio 1')
a('s_lshl_b32 s51, %d, s43' % (0x5 << B_KC))
a('s_or_b32 s51, s51, %d' % (15 << B_U))
wait_status('s51', 'v160', 'v20')
stamp(6)
a('s_cmp_eq_u32 s50, 0')
a('s_cbranch_scc0 L_conv_y')
conv_role([7, 6, 1, 0])
a.label('L_conv_y')
conv_role([5, 4, 3, 2])

a.label('L_io')
W8 = 20
CH = [22, 24, 26, 28]
T = [40, 42, 44, 46]
cexp_multi([(W8, 8.0, 40), (CH[1], 64.0, 42), (CH[2], 128.0, 44), (CH[3], 192.0, 46)], 10, 11)
a('v_mov_b32 v50, 0x00003f80')
a('ds_write_b32 v62, v50 offset:%d' % (32 * KTS))
kt_write(33, W8, 51, False)
for q in range(1, 4):
    kt_write(32 + 8 * q, CH[q], 51 + q, False)
POLLAT = opt('pollat', 8)


def io_poll_loads():
    a('global_load_dwordx4 v[112:115], v138, s[40:41] sc1')
    a('global_load_dwordx4 v[116:119], v138, s[40:41] offset:128 sc1')
    a('global_load_dwordx4 v[120:123], v138, s[40:41] offset:256 sc1')
    a('global_load_dwordx4 v[124:127], v137, s[40:41] sc1')
    a('global_load_dwordx4 v[128:131], v137, s[40:41] offset:16 sc1')
    a('global_load_dwordx4 v[132:135], v137, s[40:41] offset:32 sc1')


def io_first_poll():
    stamp(4)
    io_poll_loads()
    a('s_mov_b64 exec, 1')
    a('v_mov_b32 v56, 256')
    a('ds_add_u32 v160, v56 offset:%d' % (LNW - STATUS))
    a('s_mov_b64 exec, -1')


for n in range(1, 8):
    jobs = []
    if n >= 2:
        jobs.append((CH[0], W8 if n == 2 else CH[0], W8, T[0]))
    for q in range(1, 4):
        jobs.append((CH[q], CH[q], W8, T[q]))
    cmul_multi(jobs)
    for q in range(4):
        if q == 0 and n < 2:
            continue
        kt_write(32 + 8 * q + n, CH[q], 50 + q, False)
    if n == POLLAT:
        io_first_poll()
a('s_lshl_b32 s51, %d, s4' % (1 << B_KT))
set_status('s51', 'v160', 'v50')
stamp(3)
a('s_sub_u32 s53, s4, 4')
a('s_lshl_b32 s54, s49, 16')
a('s_and_b32 s55, s49, s52')
a('s_lshl_b32 s58, %d, s53' % (1 << B_U))
a('v_mov_b32 v7, s58')
a('s_setprio 2')
if POLLAT > 7:
    if opt('sleepS', 0):
        a('s_sleep %d' % opt('sleepS', 0))
    io_first_poll()
a('s_mov_b32 s59, 0')
a.label('L_io_poll_loop')
a('s_add_u32 s59, s59, 1')
a('s_waitcnt vmcnt(3)')
a('v_cmp_ne_u32 vcc, s5, v115')
a('v_cmp_ne_u32 s[60:61], s5, v119')
a('v_cmp_ne_u32 s[62:63], s5, v123')
XR = [112, 113, 114, 116, 117, 118, 120, 121]
for i in range(8):
    a('v_lshlrev_b32 v%d, 16, v%d' % (40 + 2 * i, XR[i]))
    a('v_and_b32 v%d, s52, v%d' % (41 + 2 * i, XR[i]))
a('s_or_b64 vcc, vcc, s[60:61]')
a('s_or_b64 vcc, vcc, s[62:63]')
a('s_waitcnt vmcnt(0)')
a('v_cmp_ne_u32 s[60:61], s5, v127')
a('v_cmp_ne_u32 s[62:63], s5, v131')
a('s_or_b64 vcc, vcc, s[60:61]')
a('v_cmp_ne_u32 s[60:61], s5, v135')
a('s_or_b64 vcc, vcc, s[62:63]')
a('s_or_b64 vcc, vcc, s[60:61]')
if DEBUG:
    l = L('fs')
    a('s_cmp_eq_u32 s59, 1')
    a('s_cbranch_scc0 %s' % l)
    stamp(10)
    a.label(l)
a('s_and_b64 exec, exec, vcc')
a('s_cbranch_execz L_io_poll_done')
a('s_sleep 2')
io_poll_loads()
a('s_cmp_lt_u32 s59, %d' % POLL_MAX)
a('s_cbranch_scc1 L_io_poll_loop')
a('s_waitcnt vmcnt(0)')
a.label('L_io_poll_done')
if DEBUG:
    a('s_mov_b32 s96, s59')
a('s_mov_b64 exec, -1')
stamp(5)
MS = [124, 125, 126, 128, 129, 130, 132, 133]
for i in range(8):
    a('v_and_b32 v%d, s52, v%d' % (81 + 2 * i, MS[i]))
    a('v_lshlrev_b32 v%d, 16, v%d' % (80 + 2 * i, MS[i]))
for i in range(8):
    a('v_rcp_f32 v%d, v%d' % (81 + 2 * i, 81 + 2 * i))
    a('v_pk_add_f32 %s, %s, %s op_sel_hi:[1,0] neg_lo:[0,1] neg_hi:[0,1]' % (P(96 + 2 * i), P(40 + 2 * i), P(80 + 2 * i)))
if opt('round1', 0):
    for i in range(8):
        a('v_cvt_pk_bf16_f32 v%d, v%d, v%d' % (56 + i, 96 + 2 * i, 97 + 2 * i))
    for i in range(8):
        a('v_lshlrev_b32 v%d, 16, v%d' % (96 + 2 * i, 56 + i))
        a('v_and_b32 v%d, s52, v%d' % (97 + 2 * i, 56 + i))
for i in range(8):
    a('v_pk_mul_f32 %s, %s, %s op_sel:[0,1] op_sel_hi:[1,1]' % (P(96 + 2 * i), P(96 + 2 * i), P(80 + 2 * i)))
for c in range(2):
    for u in range(4):
        a('v_cvt_pk_bf16_f32 v%d, v%d, v%d' % (64 + 4 * c + u, 96 + 2 * (7 - 2 * u) + c, 96 + 2 * (6 - 2 * u) + c))
    a('ds_write_b128 v139, %s offset:%d' % (Q(64 + 4 * c), c * (UB[1] - UB[0])))
a('s_mov_b64 exec, 1')
a('ds_or_b32 v160, v7')
a('s_mov_b64 exec, -1')
stamp(6)
for i in range(8):
    for c in range(2):
        src = 64 + 4 * c + (7 - i) // 2
        if i % 2 == 1:
            a('v_lshlrev_b32 v%d, 16, v%d' % (80 + 2 * i + c, src))
        else:
            a('v_and_b32 v%d, s52, v%d' % (80 + 2 * i + c, src))
for i in range(8):
    a('v_pk_mul_f32 %s, %s, s[54:55]' % (P(96 + 2 * i), P(80 + 2 * i)))
    a('v_pk_add_f32 %s, %s, %s' % (P(40 + 2 * i), P(40 + 2 * i), P(80 + 2 * i)))
for i in range(8):
    a('v_cvt_pk_bf16_f32 v%d, v%d, v%d' % (20 + i, 96 + 2 * i, 97 + 2 * i))
for i in range(8):
    a('v_lshlrev_b32 v%d, 16, v%d' % (96 + 2 * i, 20 + i))
    a('v_and_b32 v%d, s52, v%d' % (97 + 2 * i, 20 + i))
for i in range(8):
    a('v_pk_add_f32 %s, %s, %s' % (P(40 + 2 * i), P(40 + 2 * i), P(96 + 2 * i)))
a('s_not_b32 s7, s5')
for j in range(3):
    a('v_mov_b32 v%d, s7' % (23 + 4 * j))
a('s_lshl_b32 s7, s53, 1')
a('s_lshl_b32 s51, %d, s7' % (3 << B_Y))
a('s_setprio 0')
wait_status('s51', 'v160', 'v7', sleep=opt('sleepY', 0))
a('s_setprio 2')
stamp(7)
a('ds_read_b128 v[64:67], v139 offset:%d' % (YB[0] - UB[0] - 512))
a('ds_read_b128 v[68:71], v139 offset:%d' % (YB[1] - UB[0] - 512))
a('s_waitcnt lgkmcnt(0)')
for j in range(3):
    toks = [i for i in range(3 * j, min(3 * j + 3, 8))]
    for i in toks:
        for c in range(2):
            src = 64 + 4 * c + i // 2
            if i % 2 == 0:
                a('v_lshlrev_b32 v%d, 16, v%d' % (80 + 2 * i + c, src))
            else:
                a('v_and_b32 v%d, s52, v%d' % (80 + 2 * i + c, src))
    for i in toks:
        a('v_pk_add_f32 %s, %s, %s' % (P(80 + 2 * i), P(80 + 2 * i), P(40 + 2 * i)))
    for i in toks:
        a('v_cvt_pk_bf16_f32 v%d, v%d, v%d' % (20 + i + i // 3, 80 + 2 * i, 81 + 2 * i))
    a('global_store_dwordx4 v138, %s, s[40:41] offset:%d sc1' % (Q(20 + 4 * j), 128 * j))
stamp(8)
a('s_setprio 0')
wait_status('%d' % (1 << B_IDX), 'v160', 'v7')
a('ds_read_b32 v7, v160 offset:%d' % (IDXW - STATUS))
a('s_waitcnt lgkmcnt(0)')
a('v_readfirstlane_b32 s60, v7')
a('s_lshr_b32 s7, s60, 9')
a('s_cmp_eq_u32 s7, s53')
a('s_cbranch_scc0 L_io_end')
a('s_lshr_b32 s61, s60, 3')
a('s_and_b32 s60, s60, 7')
a('s_lshl_b64 exec, 1, s61')
a('v_mov_b32 v7, %d' % (1 << B_T1))
for i in range(8):
    l = L('t1')
    a('s_cmp_eq_u32 s60, %d' % i)
    a('s_cbranch_scc0 %s' % l)
    a('ds_write_b64 v160, %s offset:%d' % (P(80 + 2 * i), T1X - STATUS))
    a.label(l)
a('ds_or_b32 v160, v7')
a('s_mov_b64 exec, -1')
a.label('L_io_end')
finish()

a.label('L_special')
a('s_getpc_b64 s[42:43]')
a.label('L_pc')
a('s_sub_u32 s42, s42, L_pc-%s' % NAME)
a('s_subb_u32 s43, s43, 0')
a('s_bfe_u32 s7, s2, 0x30003')
a('s_lshl_b32 s7, s7, 12')
a('v_and_b32 v2, 15, v1')
a('s_sub_u32 s53, s4, 8')
a('s_lshl_b32 s53, s53, 11')
a('s_add_u32 s7, s7, s53')
a('v_lshl_add_u32 v2, v2, 7, s7')
if opt('fullpf', 0):
    a('v_subrev_u32 v2, 512, v0')
    a('v_lshlrev_b32 v2, 7, v2')
a('v_min_u32 v2, L_end-%s-4, v2' % NAME)
a('global_load_dword v3, v2, s[42:43]')
a('v_mov_b32 v160, %d' % STATUS)
a('s_mov_b32 s52, 0xffff0000')
a('s_cmp_eq_u32 s4, 8')
a('s_cbranch_scc1 L_moe')


def have_epoch():
    a('s_waitcnt lgkmcnt(0)')
    a('s_mul_i32 s5, s6, 0x9E3779B1')
    a('s_add_u32 s5, s5, 0x7F4A7C15')
    a('s_mov_b64 exec, 1')
    a('v_mov_b32 v13, 16')
    a('ds_add_u32 v160, v13 offset:%d' % (LNW - STATUS))
    a('s_mov_b64 exec, -1')


a('s_and_b32 s50, s3, 31')
a('s_lshr_b32 s51, s3, 5')
a('s_lshl_b32 s7, s50, 16')
a('s_lshl_b32 s53, s51, 7')
a('s_add_u32 s7, s7, s53')
a('v_and_b32 v6, 7, v1')
a('v_lshrrev_b32 v7, 3, v1')
a('v_lshl_add_u32 v4, v7, 4, s7')
a('v_lshl_add_u32 v4, v6, 13, v4')
a('v_add_u32 v5, 4096, v4')
a('s_waitcnt lgkmcnt(0)')
if opt('tlast', 0):
    a('s_barrier')
RW = lambda i: 64 + 4 * i
GR = lambda rho, i: 16 + 12 * rho + i + i // 3
for i in range(8):
    a('global_load_dwordx4 %s, %s, s[8:9] offset:%d%s' % (Q(RW(i)), 'v4' if i < 4 else 'v5', 1024 * (i % 4), NTT))
a('s_load_dword s6, s[40:41], 0')
if not opt('tlast', 0):
    a('s_barrier')
a('s_mul_i32 s7, s51, %d' % (32 * 12288))
a('s_mul_i32 s53, s50, 384')
a('s_add_u32 s7, s7, s53')
a('s_add_u32 s7, s7, %d' % WS_XT)
a('s_mov_b32 s53, %d' % (4 * 12288))
a('v_lshl_add_u32 v8, v6, 4, s7')
a('v_mad_u32_u24 v8, v7, s53, v8')
for rho in range(1, 4):
    a('v_add_u32 v%d, %d, v8' % (8 + rho, rho * 12288))
have_epoch()
for rho in range(4):
    for j in range(3):
        a('v_mov_b32 v%d, s5' % (16 + 12 * rho + 4 * j + 3))
stamp(1)
a('s_setprio 3')
for j in range(3):
    toks = [i for i in range(3 * j, min(3 * j + 3, 8))]
    if j == 0:
        a('s_waitcnt vmcnt(0)')
        stamp(2)
        if opt('wtrig', 0):
            a('s_mov_b64 exec, 1')
            a('v_mov_b32 v13, 0x10000')
            a('ds_add_u32 v160, v13 offset:%d' % (LNW - STATUS))
            a('s_mov_b64 exec, -1')
    for rho in range(4):
        for i in toks:
            a('v_mov_b32 v%d, v%d' % (GR(rho, i), RW(i) + rho))
        a('global_store_dwordx4 v%d, %s, s[40:41] offset:%d sc1' % (8 + rho, Q(16 + 12 * rho + 4 * j), 128 * j))
stamp(3)
if opt('pull', 0):
    for rho in range(4):
        for j in range(3):
            a('global_load_dword v%d, v%d, s[40:41] offset:%d sc1' % (96 + 3 * rho + j, 8 + rho, 128 * j))
if True:
    a('s_mov_b64 exec, 1')
    a('v_mov_b32 v13, 64')
    a('ds_add_u32 v160, v13 offset:%d' % (LNW - STATUS))
    a('s_mov_b64 exec, -1')
a('s_setprio 0')
a('s_not_b32 s5, s5')
a('s_lshr_b32 s7, s50, 3')
a('s_lshl_b32 s7, s7, 1')
a('s_lshl_b32 s53, %d, s7' % (3 << B_Y))
a('s_or_b32 s53, s53, %d' % (1 << B_IDX))
wait_status('s53', 'v160', 'v13', sleep=2)
a('ds_read_b32 v13, v160 offset:%d' % (IDXW - STATUS))
a('s_waitcnt lgkmcnt(0)')
a('v_readfirstlane_b32 s60, v13')
a('s_lshr_b32 s7, s60, 6')
a('s_bfe_u32 s61, s60, 0x30003')
a('s_and_b32 s60, s60, 7')
a('s_cmp_eq_u32 s7, s50')
a('s_cselect_b32 s60, s60, 8')
a('s_mov_b32 s62, 0x01010101')
a('s_mov_b32 s63, 0x01010101')
a('s_lshl_b64 s[62:63], s[62:63], s61')
a('s_not_b64 s[62:63], s[62:63]')
a('s_setprio 3')
stamp(4)
a('s_sleep %d' % opt('sleepO', 26))
a('s_mov_b32 s59, 0')
a.label('L_ot_loop')
for rho in range(4):
    for j in range(3):
        a('global_load_dwordx4 %s, v%d, s[40:41] offset:%d sc1' % (Q(16 + 12 * rho + 4 * j), 8 + rho, 128 * j))
a('s_add_u32 s59, s59, 1')
a('s_waitcnt vmcnt(0)')
a('v_cmp_ne_u32 vcc, s5, v19')
for n in range(1, 12):
    a('v_cmp_ne_u32 s[56:57], s5, v%d' % (19 + 4 * n))
    a('s_or_b64 vcc, vcc, s[56:57]')
a('s_and_b64 exec, exec, vcc')
a('s_cbranch_execz L_ot_done')
a('s_sleep 2')
a('s_cmp_lt_u32 s59, %d' % POLL_MAX)
a('s_cbranch_scc1 L_ot_loop')
a.label('L_ot_done')
if DEBUG:
    a('s_mov_b32 s96, s59')
a('s_mov_b64 exec, -1')
stamp(5)
for i in range(8):
    for rho in range(4):
        a('v_mov_b32 v%d, v%d' % (RW(i) + rho, GR(rho, i)))
    a('s_cmp_eq_u32 s60, %d' % i)
    a('s_cselect_b64 exec, s[62:63], -1')
    a('global_store_dwordx4 %s, %s, s[36:37] offset:%d%s' % ('v4' if i < 4 else 'v5', Q(RW(i)), 1024 * (i % 4), ['', ' sc1', ' nt', ' sc0 sc1'][opt('ostore', 0)]))
    a('s_mov_b64 exec, -1')
finish()

a.label('L_moe')
a('s_setprio 3')
for k in range(8, 12):
    a('v_mov_b32 v%d, 0' % k)
a('v_and_b32 v6, 31, v1')
a('v_lshlrev_b32 v6, 4, v6')
a('v_lshrrev_b32 v7, 5, v1')
a('s_movk_i32 s51, %d' % (UB[1] - UB[0]))
a('v_mad_u32_u24 v6, v7, s51, v6')
a('ds_write_b128 v6, v[8:11] offset:%d' % UB[0] if UB[0] < 65536 else '')
if UB[0] >= 65536:
    a('v_add_u32 v6, %d, v6' % UB[0])
    a('ds_write_b128 v6, v[8:11]')
a('v_lshrrev_b32 v6, 1, v1')
a('v_and_b32 v7, 1, v1')
a('s_movk_i32 s51, %d' % KCS)
a('v_mul_u32_u24 v6, s51, v6')
a('v_lshl_add_u32 v6, v7, 4, v6')
a('v_add_u32 v6, %d, v6' % KC[0])
a('v_mov_b32 v7, %d' % STATUS)
a('v_cmp_gt_u32 vcc, 16, v1')
a('v_cndmask_b32 v6, v7, v6, vcc')
a('ds_write_b128 v6, v[8:11]')
a('ds_write_b128 v7, v[8:11] offset:16')
a('s_lshr_b32 s50, s3, 3')
a('s_and_b32 s51, s3, 7')
a('v_and_b32 v4, 15, v1')
a('v_lshrrev_b32 v5, 4, v1')
a('s_mul_i32 s7, s51, %d' % (64 * 3584))
a('s_lshl_b32 s53, s50, 7')
a('s_add_u32 s7, s7, s53')
a('v_lshl_add_u32 v6, v4, 3, s7')
a('s_movk_i32 s53, %d' % (8 * 3584))
a('v_mad_u32_u24 v6, v5, s53, v6')
a('s_lshl_b32 s7, s50, 16')
a('s_lshl_b32 s53, s51, 7')
a('s_add_u32 s7, s7, s53')
a('v_lshl_add_u32 v7, v4, 3, s7')
a('v_lshl_add_u32 v7, v5, 13, v7')
a('s_waitcnt lgkmcnt(0)')
if opt('stouch', 0):
    for n, p in enumerate((10, 12, 14, 16, 18, 20, 30, 32, 34, 36)):
        a('s_load_dword s%d, s[%d:%d], 0' % (89 + n % 5, p, p + 1))
    a('s_load_dword s89, s[40:41], 0x3f0000' if False else '')
a('s_load_dword s6, s[40:41], 0')
for base, ptr, size in ((44, 30, 512 * 3584), (56, 32, 512 * 3584), (60, 34, 1792 * 1024)):
    a('s_mov_b32 s%d, s%d' % (base, ptr))
    a('s_mov_b32 s%d, s%d' % (base + 1, ptr + 1))
    a('s_mov_b32 s%d, %d' % (base + 2, size))
    a('s_mov_b32 s%d, 0x00020000' % (base + 3))
a('v_lshlrev_b32 v8, 4, v1')
a('v_add_u32 v8, %d, v8' % WS_KEYS)
a('s_barrier')
RAW = {'g0': 16, 'u0': 32, 'g1': 48, 'u1': 64, 'd0': 80, 'd1': 96}
TRN = {'g0': 112, 'u0': 16, 'g1': 32, 'u1': 48, 'd0': 16, 'd1': 32}


def gate_up_loads(h):
    for m in range(8):
        a('s_mov_b32 s53, %d' % ((32 * h + m) * 3584))
        a('buffer_load_dwordx2 %s, v6, s[44:47], s53 offen%s' % (P(RAW['g%d' % h] + 2 * m), NTW))
        a('buffer_load_dwordx2 %s, v6, s[56:59], s53 offen%s' % (P(RAW['u%d' % h] + 2 * m), NTW))


def down_loads():
    for h in range(2):
        for m in range(8):
            if m % 4 == 0:
                a('s_mov_b32 s53, %d' % ((32 * h + m) * 1024))
            a('buffer_load_dwordx2 %s, v7, s[60:63], s53 offen offset:%d%s' % (P(RAW['d%d' % h] + 2 * m), 1024 * (m % 4), NTW))


def transpose_block(b):
    for u in range(4):
        for dw in range(2):
            hi, lo = RAW[b] + 2 * (2 * u + 1) + dw, RAW[b] + 2 * (2 * u) + dw
            a('v_perm_b32 v%d, v%d, v%d, s92' % (TRN[b] + 4 * (2 * dw) + u, hi, lo))
            a('v_perm_b32 v%d, v%d, v%d, s93' % (TRN[b] + 4 * (2 * dw + 1) + u, hi, lo))


def wait_lnw(val, mask=None):
    l = L('lnw')
    a.label(l)
    a('s_sleep 1')
    a('ds_read_b32 v13, v160 offset:%d' % (LNW - STATUS))
    a('s_sub_u32 s88, s88, 1')
    a('s_cbranch_scc1 L_exit')
    a('s_waitcnt lgkmcnt(0)')
    a('v_readfirstlane_b32 s7, v13')
    a('s_and_b32 s7, s7, %d' % (mask if mask else 255 if val < 256 else 0xffff))
    a('s_cmp_ge_u32 s7, %d' % val)
    a('s_cbranch_scc0 %s' % l)


def key_loads():
    for k in range(4):
        a('global_load_dwordx4 %s, v8, s[40:41] offset:%d sc1' % (Q(128 + 4 * k), 1024 * k))


if opt('sleepW', 4):
    a('s_sleep %d' % opt('sleepW', 4))
if opt('touch', 1):
    a('s_lshl_b32 s7, s3, 13')
    a('v_mov_b32 v9, s7')
    a('global_load_dword v2, v9, s[36:37]')
a('s_lshr_b32 s7, s2, 3')
a('s_lshl_b32 s7, s7, 9')
a('s_add_u32 s7, s7, %d' % WS_STATS)
a('v_and_b32 v9, 3, v1')
a('v_lshl_add_u32 v9, v9, 7, s7')
if opt('touchS', 0):
    a('global_load_dword v2, v9, s[40:41] sc1')
if opt('touch', 1):
    a('v_mov_b32 v9, 0x3f0000')
    a('global_load_dword v2, v9, s[40:41]')
if opt('touchH', 1):
    a('s_lshl_b32 s7, s3, 10')
    a('s_add_u32 s7, s7, %d' % WS_HOPA)
    a('v_and_b32 v9, 7, v1')
    a('v_lshl_add_u32 v9, v9, 7, s7')
    a('s_lshl_b32 s7, s3, 9')
    a('s_add_u32 s7, s7, %d' % WS_HOPB)
    a('v_and_b32 v10, 3, v1')
    a('v_lshl_add_u32 v10, v10, 7, s7')
    a('v_cmp_gt_u32 vcc, 8, v1')
    a('v_cndmask_b32 v9, v10, v9, vcc')
    a('global_load_dword v2, v9, s[40:41] sc1')
have_epoch()
a('s_mov_b32 s92, 0x05040100')
a('s_mov_b32 s93, 0x07060302')
a('s_lshl_b32 s7, s3, 10')
a('s_add_u32 s7, s7, %d' % WS_HOPA)
a('v_lshl_add_u32 v161, v1, 4, s7')
a('s_lshl_b32 s7, s50, 13')
a('s_add_u32 s7, s7, %d' % WS_HOPA)
a('v_lshl_add_u32 v14, v1, 4, s7')
a('v_add_u32 v15, 4096, v14')
a('v_lshlrev_b32 v162, 1, v1')
a('v_add_u32 v162, %d, v162' % XS)
a('v_lshl_add_u32 v163, v4, 2, v5')
a('v_lshlrev_b32 v163, 1, v163')
a('v_add_u32 v163, %d, v163' % HS)
a('v_lshlrev_b32 v164, 4, v5')
a('v_add_u32 v164, %d, v164' % HS)
a('s_lshl_b32 s7, s3, 9')
a('s_add_u32 s7, s7, %d' % WS_HOPB)
a('v_lshl_add_u32 v165, v4, 1, v5')
a('v_lshl_add_u32 v165, v165, 4, s7')
a('s_lshr_b32 s7, s3, 5')
a('s_lshl_b32 s7, s7, 9')
a('s_and_b32 s53, s3, 31')
a('s_lshl_b32 s53, s53, 4')
a('s_add_u32 s7, s7, s53')
a('s_add_u32 s7, s7, %d' % WS_HOPB)
a('v_lshl_add_u32 v166, v1, 12, s7')
a('s_lshl_b32 s7, s51, 7')
a('v_lshl_add_u32 v167, v1, 1, s7')
a('s_mov_b32 s46, s46' if False else '')
a('s_cmp_ge_u32 s3, 224')
a('s_cbranch_scc0 L_moe_has_w')
wait_lnw(168 + 1024)
key_loads()
a('s_waitcnt vmcnt(0)')
a('s_branch L_key_check')
a.label('L_moe_has_w')
TWO = opt('twobatch', 0)
DE = opt('downearly', 0)
if DE:
    a('s_sleep %d' % DE)
    down_loads()
AFTER = opt('wafter', 0)
if AFTER:
    wait_lnw(168 + 1024)
    key_loads()
    gate_up_loads(0)
    gate_up_loads(1)
    stamp(1)
    a('s_waitcnt vmcnt(32)')
else:
    WT = opt('wtrig', 0)
    if WT == 0:
        wait_lnw(168)
        gate_up_loads(0)
    elif WT == 1:
        wait_lnw(0x10000, 0x10000)
        gate_up_loads(0)
    else:
        wait_lnw(1, 15)
        gate_up_loads(0)
        wait_lnw(0x10000, 0x10000)
    if not TWO:
        gate_up_loads(1)
    stamp(1)
    wait_lnw(168 + 1024)
    key_loads()
    if TWO:
        gate_up_loads(1)
    a('s_waitcnt vmcnt(%d)' % (20 if TWO else 4 + 16))
    stamp(2)
    transpose_block('g0')
    transpose_block('u0')
    if not TWO:
        a('s_waitcnt vmcnt(4)')
        transpose_block('g1')
        transpose_block('u1')
    a('s_waitcnt vmcnt(%d)' % (16 if TWO else 0))
a.label('L_key_check')
stamp(3)
a('s_mov_b32 s53, 0')
a.label('L_key_loop')
a('v_cmp_ne_u32 vcc, s5, v131')
a('v_cmp_ne_u32 s[42:43], s5, v135')
a('s_or_b64 vcc, vcc, s[42:43]')
a('v_cmp_ne_u32 s[42:43], s5, v139')
a('s_or_b64 vcc, vcc, s[42:43]')
a('v_cmp_ne_u32 s[42:43], s5, v143')
a('s_or_b64 vcc, vcc, s[42:43]')
a('s_and_b64 exec, exec, vcc')
a('s_cbranch_execz L_key_done')
a('s_sleep 1')
key_loads()
a('s_add_u32 s53, s53, 1')
a('s_cmp_lt_u32 s53, %d' % POLL_MAX)
a('s_waitcnt vmcnt(0)')
a('s_cbranch_scc1 L_key_loop')
a.label('L_key_done')
if DEBUG:
    a('s_mov_b32 s96, s53')
a('s_mov_b64 exec, -1')
a('v_max3_u32 v2, v129, v133, v137')
a('v_max_u32 v2, v2, v141')
reduce64('v_max_u32', ['v2'])
a('v_mov_b32 v9, 0')
a('v_readlane_b32 s54, v2, 63')
a('s_and_b32 s55, s54, 0xffff')
a('s_sub_u32 s55, 2047, s55')
a('s_and_b32 s55, s55, 2047')
a('s_lshl_b32 s7, s55, 10')
a('v_add_u32 v3, s7, v167')
a('global_load_short_d16_hi v9, v3, s[8:9]')
stamp(4)
a('v_mov_b32 v10, s55')
a('v_mov_b32 v11, %d' % (1 << B_IDX))
a('s_mov_b64 exec, 1')
a('ds_write_b32 v160, v10 offset:%d' % (IDXW - STATUS))
a('ds_or_b32 v160, v11')
a('s_mov_b64 exec, -1')
if not DE:
    a('s_cmp_ge_u32 s3, 224')
    a('s_cbranch_scc1 L_no_down')
    down_loads()
    a.label('L_no_down')
a('v_cmp_eq_u32 vcc, s54, v133')
a('v_cmp_eq_u32 s[42:43], s54, v137')
a('v_cmp_eq_u32 s[44:45], s54, v141')
a('v_cmp_eq_u32 s[46:47], s54, v129')
a('v_cndmask_b32 v128, v128, v132, vcc')
a('v_cndmask_b32 v128, v128, v136, s[42:43]')
a('v_cndmask_b32 v128, v128, v140, s[44:45]')
a('s_or_b64 vcc, vcc, s[42:43]')
a('s_or_b64 s[44:45], s[44:45], s[46:47]')
a('s_or_b64 vcc, vcc, s[44:45]')
a('s_ff1_i32_b64 s7, vcc')
a('s_and_b32 s7, s7, 63')
a('v_readlane_b32 s89, v128, s7')
a('s_and_b32 s7, s54, s52')
a('s_not_b32 s42, s7')
a('s_and_b32 s42, s42, s52')
a('s_xor_b32 s43, s7, 0x80000000')
a('s_bitcmp1_b32 s7, 31')
a('s_cselect_b32 s7, s43, s42')
a('v_mov_b32 v12, s7')
a('v_mul_f32 v12, %s, v12' % f32(-LOG2E))
a('v_exp_f32 v12, v12')
a('v_add_f32 v12, 1.0, v12')
a('v_rcp_f32 v12, v12')
a('v_cvt_pk_bf16_f32 v12, v12, v12')
a('v_and_b32 v12, s52, v12')
a('s_and_b32 s90, s89, s52')
a('s_lshl_b32 s89, s89, 16')
a('v_rcp_f32 v13, s90')
a('s_mov_b32 s42, 0xffff0000')
a('s_mov_b32 s43, 0xffff0000')
a('s_mov_b32 s44, 0')
a('s_mov_b32 s45, -1')
a('s_cmp_ge_u32 s3, 224')
a('s_cbranch_scc1 L_moe_idle')
if AFTER:
    a('s_waitcnt vmcnt(%d)' % (16 + (1 if DE else 17)))
    stamp(2)
    transpose_block('g0')
    transpose_block('u0')
if TWO or AFTER:
    a('s_waitcnt vmcnt(%d)' % (1 if DE else 17))
    transpose_block('g1')
    transpose_block('u1')
a('v_mov_b32 v74, 0')
a('v_mov_b32 v75, s5')
a('s_waitcnt vmcnt(%d)' % (0 if DE else 16))
stamp(5)
a('v_subrev_f32 v9, s89, v9')
if opt('round1', 0):
    a('v_cvt_pk_bf16_f32 v9, v9, v9')
    a('v_and_b32 v9, s52, v9')
a('v_mul_f32 v9, v9, v13')
a('v_cvt_pk_bf16_f32 v9, v9, v9')
a('ds_write_b16 v162, v9')
a('ds_read_b128 v[64:67], v164 offset:%d' % (XS - HS))
a('ds_read_b128 v[68:71], v164 offset:%d' % (XS - HS + 64))
a('s_waitcnt lgkmcnt(0)')
for mat in ('g', 'u'):
    for h in range(2):
        for f in range(4):
            d = 128 + (16 if mat == 'u' else 0) + 4 * f
            a('v_mfma_f32_16x16x32_bf16 %s, %s, %s, %s' % (Q(d), Q(64 + 4 * h), Q(TRN[mat + str(h)] + 4 * f), '0' if h == 0 else Q(d)))
for base, dst in ((128, 72), (144, 73)):
    a('v_cndmask_b32 v%d, v%d, v%d, s[42:43]' % (base, base, base + 4))
    a('v_cndmask_b32 v%d, v%d, v%d, s[42:43]' % (base + 8, base + 8, base + 12))
    a('v_cndmask_b32 v%d, v%d, v%d, s[44:45]' % (dst, base, base + 8))
a('global_store_dwordx4 v161, v[72:75], s[40:41] sc1')
stamp(6)
a('s_waitcnt vmcnt(1)')
stamp(10)
transpose_block('d0')
transpose_block('d1')
if opt('sleepA', 8):
    a('s_sleep %d' % opt('sleepA', 8))
a('s_mov_b32 s53, 0')
a.label('L_hopa_loop')
for k in range(8):
    a('global_load_dwordx4 %s, %s, s[40:41] offset:%d sc1' % (Q(128 + 4 * k), 'v14' if k < 4 else 'v15', 1024 * (k % 4)))
a('s_add_u32 s53, s53, 1')
a('s_waitcnt vmcnt(0)')
a('v_cmp_ne_u32 vcc, s5, v131')
for k in range(1, 8):
    a('v_cmp_ne_u32 s[56:57], s5, v%d' % (131 + 4 * k))
    a('s_or_b64 vcc, vcc, s[56:57]')
a('s_and_b64 exec, exec, vcc')
a('s_cbranch_execz L_hopa_done')
a('s_sleep 2')
a('s_cmp_lt_u32 s53, %d' % POLL_MAX)
a('s_cbranch_scc1 L_hopa_loop')
a.label('L_hopa_done')
if DEBUG:
    a('s_mov_b32 s97, s53')
a('s_mov_b64 exec, -1')
stamp(7)
for k in range(4):
    a('v_pk_add_f32 %s, %s, %s' % (P(128 + 8 * k), P(128 + 8 * k), P(132 + 8 * k)))
a('v_pk_add_f32 v[128:129], v[128:129], v[136:137]')
a('v_pk_add_f32 v[144:145], v[144:145], v[152:153]')
a('v_pk_add_f32 v[128:129], v[128:129], v[144:145]')
a('v_cvt_pk_bf16_f32 v2, v128, v129')
a('v_lshlrev_b32 v3, 16, v2')
a('v_and_b32 v2, s52, v2')
a('v_mul_f32 v10, %s, v3' % f32(-LOG2E))
a('v_exp_f32 v10, v10')
a('v_add_f32 v10, 1.0, v10')
a('v_rcp_f32 v10, v10')
a('v_mul_f32 v10, v3, v10')
a('v_cvt_pk_bf16_f32 v10, v10, v10')
a('v_and_b32 v10, s52, v10')
a('v_mul_f32 v10, v10, v2')
a('v_cvt_pk_bf16_f32 v10, v10, v10')
a('ds_write_b16 v163, v10')
a('ds_read_b128 v[64:67], v164')
a('ds_read_b128 v[68:71], v164 offset:64')
a('s_waitcnt lgkmcnt(0)')
for h in range(2):
    for f in range(4):
        d = 128 + 4 * f
        a('v_mfma_f32_16x16x32_bf16 %s, %s, %s, %s' % (Q(d), Q(64 + 4 * h), Q(TRN['d%d' % h] + 4 * f), '0' if h == 0 else Q(d)))
a('v_cndmask_b32 v72, v128, v136, s[42:43]')
a('v_cndmask_b32 v73, v132, v140, s[42:43]')
a('s_mov_b32 exec_hi, 0')
a('global_store_dwordx4 v165, v[72:75], s[40:41] sc1')
a('s_mov_b64 exec, -1')
stamp(8)
a('s_sleep %d' % opt('sleepB', 26))
a('s_branch L_moe_final')
a.label('L_moe_idle')
a('s_sleep %d' % opt('sleepI', 70))
a.label('L_moe_final')
a('v_mov_b32 v128, 0')
a('v_mov_b32 v129, 0')
a('s_mov_b32 s53, 0')
a('s_mov_b64 exec, 0xfffffff')
a.label('L_hopb_loop')
a('global_load_dwordx4 v[128:131], v166, s[40:41] sc1')
a('s_add_u32 s53, s53, 1')
a('s_waitcnt vmcnt(0)')
a('v_cmp_ne_u32 vcc, s5, v131')
a('s_and_b64 exec, exec, vcc')
a('s_cbranch_execz L_hopb_done')
a('s_sleep 2')
a('s_cmp_lt_u32 s53, %d' % POLL_MAX)
a('s_cbranch_scc1 L_hopb_loop')
a.label('L_hopb_done')
if DEBUG:
    a('s_mov_b32 s98, s53')
a('s_mov_b64 exec, -1')
stamp(9)
reduce64('v_add_f32', ['v128', 'v129'])
a('v_readlane_b32 s42, v128, 63')
a('v_readlane_b32 s43, v129, 63')
a('v_mov_b32 v3, s43')
a('v_cvt_pk_bf16_f32 v2, s42, v3')
a('v_and_b32 v3, s52, v2')
a('v_lshlrev_b32 v2, 16, v2')
a('v_pk_mul_f32 v[2:3], v[2:3], v[12:13] op_sel_hi:[1,0]')
a('v_cvt_pk_bf16_f32 v2, v2, v3')
a('v_and_b32 v3, s52, v2')
a('v_lshlrev_b32 v2, 16, v2')
a('s_lshl_b32 s42, s55, 10')
a('s_lshl_b32 s43, s3, 2')
a('s_add_u32 s42, s42, s43')
a('v_mov_b32 v9, s42')
wait_status('%d' % (1 << B_T1), 'v160', 'v10')
a('ds_read_b64 v[4:5], v160 offset:%d' % (T1X - STATUS))
a('s_waitcnt lgkmcnt(0)')
a('v_pk_add_f32 v[2:3], v[2:3], v[4:5]')
a('v_cvt_pk_bf16_f32 v2, v2, v3')
a('s_mov_b64 exec, 1')
a('global_store_dword v9, v2, s[36:37]')
a('s_cmp_eq_u32 s2, 0')
a('s_cbranch_scc0 L_no_epoch')
a('s_add_u32 s7, s6, 1')
a('v_mov_b32 v10, 0')
a('v_mov_b32 v11, s7')
a('global_store_dword v10, v11, s[40:41] sc1')
a.label('L_no_epoch')
a('s_mov_b64 exec, -1')
finish()
a.label('L_exit')
a('s_endpgm')
a.label('L_end')

body = a.finalize()
hdr = open('parallel_sum__ssm_conv_s4__moe_arch_mod__prompt.s.ref').read().split('; Override launch')[0]
src = hdr
src += '; Generated by work/gen.py (hand-written instruction streams, scripted unrolling and wait-state padding).\n'
src += '; @launch grid=(256,1,1) block=(640,1,1) lds=%d\n' % LDS_BYTES
src += '.amdgcn_target "amdgcn-amd-amdhsa--gfx950"\n.text\n.globl %s\n.p2align 8\n.type %s,@function\n' % (NAME, NAME)
src += body
src += '''.section .rodata,"a"
.p2align 6
.amdhsa_kernel %s
  .amdhsa_next_free_vgpr 168
  .amdhsa_next_free_sgpr 100
  .amdhsa_accum_offset 168
  .amdhsa_group_segment_fixed_size 0
  .amdhsa_kernarg_size 136
  .amdhsa_user_sgpr_count 2
  .amdhsa_user_sgpr_kernarg_segment_ptr 1
  .amdhsa_system_sgpr_workgroup_id_x 1
.end_amdhsa_kernel
''' % NAME
open(OUT, 'w').write(src)
print('wrote', OUT, 'lds', LDS_BYTES)
```

```python
import sys, struct, math
from asmlib import Asm

NAME = 'parallel_sum__ssm_conv_s4__moe_arch_mod__prompt_kernel'
DEBUG = '--debug' in sys.argv
SPAN = '--span' in sys.argv
OUT = [a for a in sys.argv[1:] if not a.startswith('--')]
OUT = OUT[0] if OUT else 'parallel_sum__ssm_conv_s4__moe_arch_mod__prompt.s'


def opt(name, default):
    for a in sys.argv:
        if a.startswith('--' + name + '='):
            return int(a.split('=')[1], 0)
    return default


def f32(x):
    return '0x%08x' % struct.unpack('<I', struct.pack('<f', x))[0]


WS_STATS = 4096
WS_KEYS = 16384
WS_HOPA = 32768
WS_HOPB = 262144
WS_XT = 0x80000
WS_OT = 4 << 20
WS_DBG = 8 << 20
KTS = 528
KT = [0, 64 * KTS]
KCS = 4160
KC = [2 * 64 * KTS, 2 * 64 * KTS + 4 * KCS]
UB = [KC[1] + 4 * KCS, KC[1] + 4 * KCS + 4608]
YB = [UB[1] + 4608, UB[1] + 4608 + 4096]
MISC = YB[1] + 4096
STG = MISC
STATUS = MISC + 64
IDXW = MISC + 68
T1X = MISC + 72
HS = MISC + 128
XS = MISC + 256
LDS_BYTES = MISC + 384
B_U, B_KC, B_Y, B_IDX, B_T1, B_KT = 0, 4, 8, 16, 17, 18
LNW = MISC + 80
BEST = MISC + 88

POLL_MAX = 1 << 16
FOFF = 64 * 19
LOG2E = 1.4426950408889634
LOG2E_HI = struct.unpack('<f', struct.pack('<f', LOG2E))[0]
LOG2E_LO = LOG2E - LOG2E_HI

a = Asm()
uid = [0]
NTW = ' nt' if opt('ntw', 1) else ''
NTX = ' nt' if opt('ntx', 1) else ''
NTT = ' nt' if opt('ntt', 1) else ''
NTP = ' nt' if opt('ntp', 1) else ''


def L(p):
    uid[0] += 1
    return 'L_%s_%d' % (p, uid[0])


ECHO = opt('echow', -1) >= 0


def stamp(n):
    if ECHO and (n == 0 or n == opt('echos', 1)):
        a('s_memrealtime s[%d:%d]' % ((64, 65) if n == 0 else (66, 67)))
    if DEBUG:
        a('%s s[%d:%d]' % ('s_memtime' if '--cyc' in sys.argv else 's_memrealtime', 64 + 2 * n, 65 + 2 * n))


NSTAMP = 12


def finish():
    if DEBUG:
        stamp(NSTAMP - 1)
        a('s_waitcnt lgkmcnt(0)')
        a('s_mov_b64 exec, 1')
        a('s_mul_i32 s7, s2, 10')
        a('s_add_u32 s7, s7, s4')
        a('s_lshl_b32 s7, s7, 6')
        a('s_add_u32 s7, s7, %d' % WS_DBG)
        a('v_mov_b32 v2, s7')
        for n in range(NSTAMP):
            a('v_mov_b32 v3, s%d' % (64 + 2 * n))
            a('global_store_dword v2, v3, s[40:41] offset:%d' % (4 * n))
        for n, r in enumerate((96, 97, 98)):
            a('v_mov_b32 v3, s%d' % r)
            a('global_store_dword v2, v3, s[40:41] offset:%d' % (48 + 4 * n))
    if ECHO:
        l = L('echo')
        if opt('echos', 1) == NSTAMP - 1:
            a('s_waitcnt vmcnt(0)')
            stamp(NSTAMP - 1)
        a('s_cmp_eq_u32 s2, %d' % opt('echob', 0))
        a('s_cbranch_scc0 %s' % l)
        a('s_cmp_eq_u32 s4, %d' % opt('echow', 0))
        a('s_cbranch_scc0 %s' % l)
        a('s_waitcnt lgkmcnt(0)')
        a('s_sub_u32 s66, s66, s64')
        a('s_mul_i32 s66, s66, %d' % opt('echok', 8))
        a('s_add_u32 s66, s66, 1500')
        a('s_min_u32 s66, s66, 20000')
        l2 = L('spin')
        a.label(l2)
        a('s_memrealtime s[68:69]')
        a('s_waitcnt lgkmcnt(0)')
        a('s_sub_u32 s68, s68, s64')
        a('s_cmp_lt_u32 s68, s66')
        a('s_cbranch_scc1 %s' % l2)
        a.label(l)
    if SPAN:
        l = L('spanlbl')
        a('s_waitcnt vmcnt(0)')
        a('s_memrealtime s[66:67]')
        a('s_cmp_ge_u32 s2, 8')
        a('s_cbranch_scc1 %s' % l)
        a('s_sub_u32 s7, s4, 7')
        a('s_cmp_ge_u32 s7, 2')
        a('s_cbranch_scc1 %s' % l)
        a('s_waitcnt lgkmcnt(0)')
        a('s_mov_b64 exec, 1')
        a('s_lshl_b32 s7, s7, 3')
        a('s_add_u32 s7, s7, s2')
        a('s_lshl_b32 s7, s7, 2')
        a('v_mov_b32 v2, s7')
        a('s_sub_u32 s64, s66, s64')
        a('v_mov_b32 v3, s64')
        a('global_store_dword v2, v3, s[38:39]')
        K = opt('echo', 0)
        if K:
            a('s_cmp_eq_u32 s2, 0')
            a('s_cbranch_scc0 %s' % l)
            a('s_cmp_eq_u32 s4, 8')
            a('s_cbranch_scc0 %s' % l)
            a('s_mul_i32 s64, s64, %d' % K)
            l2 = L('spin')
            a.label(l2)
            a('s_memrealtime s[68:69]')
            a('s_waitcnt lgkmcnt(0)')
            a('s_sub_u32 s68, s68, s66')
            a('s_cmp_lt_u32 s68, s64')
            a('s_cbranch_scc1 %s' % l2)
        a.label(l)
    a('s_endpgm')


def wait_status(need, vaddr, vtmp, sleep=0):
    l = L('ws')
    a.label(l)
    if sleep:
        a('s_sleep %d' % sleep)
    a('ds_read_b32 %s, %s' % (vtmp, vaddr))
    a('s_sub_u32 s88, s88, 1')
    a('s_cbranch_scc1 L_exit')
    a('s_waitcnt lgkmcnt(0)')
    a('v_readfirstlane_b32 s7, %s' % vtmp)
    a('s_and_b32 s7, s7, %s' % need)
    a('s_cmp_eq_u32 s7, %s' % need)
    a('s_cbranch_scc0 %s' % l)


def set_status(bits, vaddr, vtmp):
    a('s_mov_b64 exec, 1')
    a('v_mov_b32 %s, %s' % (vtmp, bits))
    a('ds_or_b32 %s, %s' % (vaddr, vtmp))
    a('s_mov_b64 exec, -1')


def reduce64(op, regs):
    for step in ('row_shr:1 row_mask:0xf', 'row_shr:2 row_mask:0xf', 'row_shr:4 row_mask:0xf', 'row_shr:8 row_mask:0xf',
                 'row_bcast:15 row_mask:0xa', 'row_bcast:31 row_mask:0xc'):
        for r in regs:
            a('%s_dpp %s, %s, %s %s bank_mask:0xf' % (op, r, r, r, step))


def P(n):
    return 'v[%d:%d]' % (n, n + 1)


def Q(n):
    return 'v[%d:%d]' % (n, n + 3)


def cmul(d, z, w, t):
    a('v_pk_mul_f32 %s, %s, %s op_sel:[0,0] op_sel_hi:[0,1]' % (P(t), P(z), P(w)))
    a('v_pk_fma_f32 %s, %s, %s, %s op_sel:[1,1,0] op_sel_hi:[1,0,1] neg_lo:[1,0,0]' % (P(d), P(z), P(w), P(t)))


def cmul_multi(jobs):
    for d, z, w, t in jobs:
        a('v_pk_mul_f32 %s, %s, %s op_sel:[0,0] op_sel_hi:[0,1]' % (P(t), P(z), P(w)))
    for d, z, w, t in jobs:
        a('v_pk_fma_f32 %s, %s, %s, %s op_sel:[1,1,0] op_sel_hi:[1,0,1] neg_lo:[1,0,0]' % (P(d), P(z), P(w), P(t)))


def cexp_multi(jobs, al, be):
    for d, l, t in jobs:
        a('v_mul_f32 v%d, %s, v%d' % (t, f32(l), al))
        a('v_mul_f32 v%d, %s, v%d' % (t + 1, f32(l), be))
    for d, l, t in jobs:
        a('v_exp_f32 v%d, v%d' % (t, t))
        a('v_fract_f32 v%d, v%d' % (t + 1, t + 1))
    for d, l, t in jobs:
        a('v_cos_f32 v%d, v%d' % (d, t + 1))
        a('v_sin_f32 v%d, v%d' % (d + 1, t + 1))
    for d, l, t in jobs:
        a('v_pk_mul_f32 %s, %s, %s op_sel:[0,0] op_sel_hi:[1,0]' % (P(d), P(d), P(t)))


a.label(NAME)
a('s_cmp_ge_u32 s2, 256')
a('s_cbranch_scc1 L_exit')
a('s_load_dwordx16 s[8:23], s[0:1], 0')
a('s_load_dwordx16 s[24:39], s[0:1], 64')
a('s_load_dwordx2 s[40:41], s[0:1], 128')
stamp(0)
if SPAN:
    a('s_memrealtime s[64:65]')
a('v_lshrrev_b32 v2, 6, v0')
a('v_and_b32 v1, 63, v0')
a('s_mov_b32 s88, 0x400000')
a('v_readfirstlane_b32 s4, v2')
a('s_and_b32 s3, s2, 7')
a('s_lshl_b32 s3, s3, 5')
a('s_lshr_b32 s7, s2, 3')
a('s_add_u32 s3, s3, s7')
a('s_cmp_ge_u32 s4, 8')
a('s_cbranch_scc1 L_special')

a('s_lshl_b32 s42, s3, 3')
a('s_add_u32 s42, s42, s4')
a('s_lshl_b32 s7, s42, 10')
a('v_lshlrev_b32 v17, 4, v1')
a('v_add_u32 v18, s7, v17')
a('s_and_b32 s43, s4, 1')
a('s_lshl_b32 s7, s3, 1')
a('s_add_u32 s7, s7, s43')
a('s_lshl_b32 s7, s7, 8')
a('s_bfe_u32 s50, s4, 0x10001')
a('s_lshl_b32 s51, s50, 7')
a('s_add_u32 s7, s7, s51')
a('v_lshl_add_u32 v19, v1, 1, s7')
for r in range(10, 16):
    a('v_mov_b32 v%d, 0' % r)
a('s_lshl_b32 s7, s3, 2')
if opt('st8', 0) == 1:
    stamp(8)
a('s_waitcnt lgkmcnt(0)')
if opt('st8', 0) == 2:
    stamp(8)
a('global_load_dwordx4 v[2:5], v18, s[8:9]' + NTX)
a('s_load_dword s6, s[40:41], 0')
a('s_load_dword s48, s[22:23], s7')
a('s_load_dword s49, s[24:25], s7')
if opt('wfirst', 1):
    a('global_load_dwordx4 v[6:9], v17, s[28:29]')
if not opt('pfirst', 0):
    a('s_barrier')
if not opt('wfirst', 1):
    a('global_load_dwordx4 v[6:9], v17, s[28:29]')
a('global_load_short_d16_hi v10, v19, s[10:11]' + NTP)
a('global_load_short_d16_hi v11, v19, s[12:13]' + NTP)
a('s_cmp_ge_u32 s4, 4')
a('s_cbranch_scc1 L_skip_bc')
a('global_load_short_d16_hi v12, v19, s[14:15]' + NTP)
a('global_load_short_d16_hi v13, v19, s[16:17]' + NTP)
a('global_load_short_d16_hi v14, v19, s[18:19]' + NTP)
a('global_load_short_d16_hi v15, v19, s[20:21]' + NTP)
a.label('L_skip_bc')
if opt('pfirst', 0):
    a('s_barrier')
a('s_mov_b32 s52, 0xffff0000')
a('v_mov_b32 v160, %d' % STATUS)
a('s_mul_i32 s7, s43, %d' % KT[1])
a('s_lshl_b32 s51, s50, 8')
a('s_add_u32 s7, s7, s51')
a('v_lshl_add_u32 v62, v1, 2, s7')
a('s_waitcnt lgkmcnt(0)')
a('s_mul_i32 s5, s6, 0x9E3779B1')
a('s_add_u32 s5, s5, 0x7F4A7C15')
a('s_lshl_b32 s7, s48, 16')
a('s_and_b32 s51, s48, s52')
a('s_cmp_eq_u32 s43, 0')
a('s_cselect_b32 s7, s7, s51')
a('v_mov_b32 v20, s7')
a('v_mul_f32 v21, %s, v20' % f32(LOG2E_HI))
a('v_mov_b32 v22, %s' % f32(LOG2E_HI))
a('v_fma_f32 v22, v20, v22, -v21')
a('v_fmac_f32 v22, %s, v20' % f32(LOG2E_LO))
a('v_exp_f32 v21, v21')
a('v_mul_f32 v22, %s, v22' % f32(math.log(2.0)))
a('v_fmac_f32 v21, v21, v22')
a('v_cvt_pk_bf16_f32 v21, v21, v21')
a('v_and_b32 v16, s52, v21')
a('v_mov_b32 v44, 0')
a('v_mov_b32 v45, 0')
a('v_mov_b32 v46, 0x3f803f80')
a('v_mov_b32 v47, %s' % f32(1.0 / 512))
a('s_sub_u32 s47, 2047, s42')
a('v_mov_b32 v43, s47')
a('s_lshl_b32 s7, s4, 2')
a('s_add_u32 s7, s7, %d' % STG)
a('v_mov_b32 v48, s7')
a('v_mov_b32 v49, 1')
a('s_mul_i32 s7, s3, 48')
a('s_add_u32 s7, s7, %d' % WS_STATS)
a('v_lshl_add_u32 v50, v1, 4, s7')
a('s_lshl_b32 s7, s3, 4')
a('s_add_u32 s7, s7, %d' % WS_KEYS)
a('v_mov_b32 v51, s7')
a('s_mov_b64 s[54:55], 8')
a('v_cndmask_b32 v50, v50, v51, s[54:55]')
a('v_mul_u32_u24 v51, 12, v1')
a('v_min_u32 v51, 24, v51')
a('v_add_u32 v51, %d, v51' % STG)
a('v_mov_b32 v52, %d' % BEST)
a('v_cndmask_b32 v51, v51, v52, s[54:55]')
a('v_and_b32 v136, 255, v0')
a('v_mul_u32_u24 v137, 48, v136')
a('v_add_u32 v137, %d, v137' % WS_STATS)
a('s_mul_i32 s7, s3, 12288')
a('s_add_u32 s7, s7, %d' % WS_XT)
a('v_lshrrev_b32 v138, 3, v136')
a('v_mul_u32_u24 v138, 384, v138')
a('v_and_b32 v139, 7, v136')
a('v_lshl_add_u32 v138, v139, 4, v138')
a('v_add_u32 v138, s7, v138')
a('v_lshlrev_b32 v139, 4, v136')
a('v_add_u32 v139, %d, v139' % (UB[0] + 512))
a('v_mov_b32 v55, s5')
a('s_setprio 2')
a('s_cmp_ge_u32 s4, 4')
a('s_cbranch_scc1 L_wait_io')
a('s_waitcnt vmcnt(6)')
a.label('L_wait_io')
a('s_waitcnt vmcnt(%d)' % 6 if False else '')
a('s_cbranch_scc0 L_wait_done')
a('s_waitcnt vmcnt(2)')
a.label('L_wait_done')
stamp(1)
a('v_lshlrev_b32 v20, 16, v2')
a('v_and_b32 v21, s52, v2')
a('v_readfirstlane_b32 s44, v20')
for k in range(1, 4):
    a('v_lshlrev_b32 v%d, 16, v%d' % (20 + 2 * k, 2 + k))
    a('v_and_b32 v%d, s52, v%d' % (21 + 2 * k, 2 + k))
for k in range(4):
    a('v_pk_add_f32 %s, %s, s[44:45] op_sel_hi:[1,0] neg_lo:[0,1] neg_hi:[0,1]' % (P(28 + 2 * k), P(20 + 2 * k)))
    a('v_dot2_f32_bf16 v44, v%d, v%d, v44' % (2 + k, 6 + k))
    a('v_dot2_f32_bf16 v45, v46, v%d, v45' % (6 + k))
a('v_pk_add_f32 v[36:37], v[28:29], v[30:31]')
a('v_pk_mul_f32 v[40:41], v[28:29], v[28:29]')
a('v_pk_add_f32 v[38:39], v[32:33], v[34:35]')
a('v_pk_fma_f32 v[40:41], v[30:31], v[30:31], v[40:41]')
a('v_pk_add_f32 v[36:37], v[36:37], v[38:39]')
a('v_pk_fma_f32 v[40:41], v[32:33], v[32:33], v[40:41]')
a('v_add_f32 v36, v36, v37')
a('v_pk_fma_f32 v[40:41], v[34:35], v[34:35], v[40:41]')
a('v_add_f32 v40, v40, v41')
reduce64('v_add_f32', ['v44', 'v45', 'v36', 'v40'])
a('v_mul_f32 v36, v36, v47')
a('v_mul_f32 v40, v40, v47')
a('v_fma_f32 v40, -v36, v36, v40')
a('v_add_f32 v36, s44, v36')
a('v_max_f32 v40, 0, v40')
a('v_cvt_pk_bf16_f32 v41, v36, v40')
a('v_and_b32 v40, s52, v41')
a('v_lshlrev_b32 v36, 16, v41')
a('v_add_f32 v40, %s, v40' % f32(1e-5))
a('v_fma_f32 v44, -v36, v45, v44')
a('v_cvt_pk_bf16_f32 v40, v40, v40')
a('v_and_b32 v40, s52, v40')
a('v_sqrt_f32 v40, v40')
a('v_cvt_pk_bf16_f32 v40, v40, v40')
a('v_and_b32 v40, s52, v40')
a('v_rcp_f32 v38, v40')
a('v_bfi_b32 v42, s52, v40, v41')
a('v_mul_f32 v36, v44, v38')
a('v_cvt_pk_bf16_f32 v36, v36, v36')
a('v_ashrrev_i32 v37, 31, v36')
a('v_or_b32 v37, 0x80000000, v37')
a('v_xor_b32 v36, v36, v37')
a('v_bfi_b32 v43, s52, v36, v43')
a('s_mov_b32 exec_lo, 0')
a('s_mov_b32 exec_hi, 0x80000000')
a('ds_write_b32 v48, v42')
a('ds_max_u64 v160, v[42:43] offset:%d' % (BEST - STATUS))
a('ds_add_rtn_u32 v49, v160, v49 offset:%d' % (LNW - STATUS))
a('s_mov_b64 exec, -1')
a('s_waitcnt lgkmcnt(0)')
a('v_readlane_b32 s7, v49, 63')
stamp(2)
a('s_and_b32 s51, s7, 15')
a('s_cmp_eq_u32 s51, 7')
a('s_cbranch_scc0 L_no_publish')
a.label('L_pub_wait')
a('s_and_b32 s7, s7, 63')
a('s_cmp_ge_u32 s7, 32')
a('s_cbranch_scc1 L_pub_go')
a('ds_read_b32 v49, v160 offset:%d' % (LNW - STATUS))
a('s_sub_u32 s88, s88, 1')
a('s_cbranch_scc1 L_exit')
a('s_waitcnt lgkmcnt(0)')
a('v_readfirstlane_b32 s7, v49')
a('s_branch L_pub_wait')
a.label('L_pub_go')
a('ds_read2_b32 v[52:53], v51 offset0:0 offset1:1')
a('ds_read_b32 v54, v51 offset:8')
a('s_waitcnt lgkmcnt(0)')
a('s_mov_b64 exec, 15')
a('global_store_dwordx4 v50, v[52:55], s[40:41] sc1')
if True:
    a('s_mov_b64 exec, 1')
    a('v_mov_b32 v49, 64')
    a('ds_add_u32 v160, v49 offset:%d' % (LNW - STATUS))
a('s_mov_b64 exec, -1')
a('s_setprio 0')
stamp(10)
a('s_waitcnt vmcnt(1)')
a('s_branch L_params_ok')
a.label('L_no_publish')
a('s_setprio 0')
a('s_waitcnt vmcnt(0)')
a.label('L_params_ok')
stamp(9)
a('v_mul_f32 v10, v16, v10')
a('v_mul_f32 v11, v16, v11')
a('v_mul_f32 v10, %s, v10' % f32(LOG2E))
a('v_mul_f32 v11, %s, v11' % f32(1.0 / (2 * math.pi)))
a('s_cmp_ge_u32 s4, 4')
a('s_cbranch_scc1 L_io')


def kt_write(row, pair, tmp, neg):
    a('v_cvt_pk_bf16_f32 v%d, v%d, %sv%d' % (tmp, pair, '-' if neg else '', pair + 1))
    a('ds_write_b32 v62, v%d offset:%d' % (tmp, row * KTS))


W1, W2, W4, W8, G, C0 = 20, 22, 24, 26, 28, 30
cexp_multi([(W1, 1.0, 40), (G, 256.0, 42), (W8, 8.0, 44)], 10, 11)
a('v_pk_mul_f32 v[12:13], v[12:13], v[16:17] op_sel_hi:[1,0]')
cmul_multi([(C0, 14, 12, 40), (W2, W1, W1, 42)])
E0, O0, H = 32, 34, 36
T = [40, 42, 44, 46, 48]
cmul_multi([(O0, C0, W1, T[0]), (H, C0, G, T[1]), (W4, W2, W2, T[2])])
kt_write(0, C0, 50, True)
kt_write(1, O0, 51, True)
kt_write(13, H, 52, True)
Z1 = 38
Hs = {1: H}
Hn = [54, 56, 58, 60, 52 + 12, 66]
cur_e, cur_o, cur_b = C0, O0, H
step_regs = [(E0, O0, Z1)]
hprev = H
for n in range(5):
    jobs = [(E0, cur_e, W2, T[0]), (Z1, cur_b, W2, T[2]), (Hn[n], hprev, G, T[3])]
    if n < 4:
        jobs.insert(1, (O0, cur_o, W2, T[1]))
    cmul_multi(jobs)
    cur_e, cur_b, hprev = E0, Z1, Hn[n]
    kt_write(2 * n + 2, E0, 50, True)
    if n < 4:
        kt_write(2 * n + 3, O0, 51, True)
    kt_write(14 + n, Z1, 52, True)
    kt_write({0: 21, 1: 26, 2: 11, 3: 19, 4: 24}[n], Hn[n], 53, True)
H2, H3, H4, H5, H6, H7 = Hn
cmul_multi([(H7, H6, G, T[0]), (E0, H2, W4, T[1]), (O0, H3, W4, T[2]), (H2, H2, W8, T[3]), (H3, H3, W8, T[4])])
kt_write(29, H7, 50, True)
kt_write(22, E0, 51, True)
kt_write(27, O0, 52, True)
kt_write(23, H2, 53, True)
kt_write(28, H3, 50, True)
cmul_multi([(H4, H4, W8, T[0]), (H5, H5, W8, T[1]), (H6, H6, W8, T[2]), (H7, H7, W8, T[3])])
kt_write(12, H4, 50, True)
kt_write(20, H5, 51, True)
kt_write(25, H6, 52, True)
kt_write(30, H7, 53, True)
a('s_lshl_b32 s51, %d, s4' % (1 << B_KT))
set_status('s51', 'v160', 'v50')
stamp(3)
tabA0 = [min(r, 12) for r in range(16)]
tabA1 = [0, 0, 1, 2, 2, 2, 3, 4, 4, 4, 5, 6, 7, 7, 7, 7]
tabB = [min(r, 4) for r in range(16)]


def nib64(t):
    v = sum(x << (4 * i) for i, x in enumerate(t))
    return v & 0xffffffff, v >> 32


a('s_cmp_eq_u32 s50, 0')
for (sreg, ta, tb) in ((54, tabA0, tabB), (56, tabA1, tabB)):
    la, ha = nib64(ta)
    lb, hb = nib64(tb)
    a('s_mov_b32 s%d, 0x%x' % (sreg, lb))
    a('s_mov_b32 s%d, 0x%x' % (sreg + 1, hb))
    a('s_cmov_b32 s%d, 0x%x' % (sreg, la))
    a('s_cmov_b32 s%d, 0x%x' % (sreg + 1, ha))
a('s_cselect_b32 s58, 0, 21')
a('s_cselect_b32 s59, 13, 26')
a('v_and_b32 v20, 31, v1')
a('v_and_b32 v21, 4, v20')
a('v_cmp_ne_u32 vcc, 0, v21')
a('v_and_b32 v21, 3, v20')
a('v_lshrrev_b32 v22, 3, v20')
a('v_lshl_add_u32 v21, v22, 2, v21')
a('v_lshlrev_b32 v21, 2, v21')
a('v_mov_b32 v22, s54')
a('v_mov_b32 v23, s55')
a('v_mov_b32 v24, s56')
a('v_mov_b32 v25, s57')
a('v_mov_b32 v26, s58')
a('v_mov_b32 v27, s59')
a('v_cndmask_b32 v22, v22, v24, vcc')
a('v_cndmask_b32 v23, v23, v25, vcc')
a('v_cndmask_b32 v26, v26, v27, vcc')
a('v_lshrrev_b64 v[22:23], v21, v[22:23]')
a('v_and_b32 v22, 15, v22')
a('v_add_u32 v22, v22, v26')
a('s_mul_i32 s7, s43, %d' % KT[1])
a('v_lshrrev_b32 v23, 5, v1')
a('v_lshl_add_u32 v23, v23, 4, s7')
a('s_movk_i32 s51, %d' % KTS)
a('v_mad_u32_u24 v30, v22, s51, v23')
a('v_mad_u32_u24 v31, v20, s51, v23')
a('v_and_b32 v20, 15, v1')
a('v_lshrrev_b32 v21, 4, v1')
a('v_add_u32 v22, 1, v20')
a('v_and_b32 v23, 3, v22')
a('v_lshrrev_b32 v22, 2, v22')
a('s_mul_i32 s7, s43, %d' % (KC[1] - KC[0]))
a('s_add_u32 s7, s7, %d' % KC[0])
a('s_movk_i32 s51, %d' % KCS)
a('v_mov_b32 v35, s7')
a('v_mad_u32_u24 v35, v23, s51, v35')
a('v_lshl_add_u32 v35, v22, 3, v35')
a('v_lshl_add_u32 v35, v21, 4, v35')
a('s_mul_i32 s51, s43, %d' % (UB[1] - UB[0]))
a('s_add_u32 s51, s51, %d' % (UB[0] + 16 * 33 - 448))
a('v_lshlrev_b32 v22, 1, v20')
a('v_sub_u32 v22, v22, v21')
a('v_lshl_add_u32 v36, v22, 4, s51')
a('s_mul_i32 s51, s43, %d' % (YB[1] - YB[0]))
a('s_add_u32 s51, s51, %d' % YB[0])
a('v_lshl_add_u32 v37, v20, 5, s51')
a('v_lshl_add_u32 v37, v21, 3, v37')
a('s_lshl_b32 s51, s50, 10')
a('s_add_u32 s7, s7, s51')
a('s_add_u32 s7, s7, 32')
a('v_lshl_add_u32 v38, v1, 4, s7')
a('s_lshl_b32 s51, %d, s43' % (0x55 << B_KT))
wait_status('s51', 'v160', 'v20')
stamp(4)
KA = [80, 84, 88, 92]
KB = [96, 100, 104, 108]
for s in range(4):
    a('ds_read_b128 %s, v30 offset:%d' % (Q(KA[s]), 32 * s))
    a('ds_read_b128 %s, v31 offset:%d' % (Q(KB[s]), 32 * KTS + 32 * s))
for s in range(16):
    a('s_waitcnt lgkmcnt(%d)' % min(6, 2 * (15 - s)))
    a('v_mfma_f32_32x32x16_bf16 v[64:79], %s, %s, %s' % (Q(KA[s % 4]), Q(KB[s % 4]), '0' if s == 0 else 'v[64:79]'))
    if s + 4 < 16:
        a('ds_read_b128 %s, v30 offset:%d' % (Q(KA[s % 4]), 32 * (s + 4)))
        a('ds_read_b128 %s, v31 offset:%d' % (Q(KB[s % 4]), 32 * KTS + 32 * (s + 4)))
a('s_mov_b32 s54, 0x80000000')
a('s_mov_b32 s55, 0x80000000')
a('s_mov_b32 s56, 0')
a('s_mov_b32 s57, 0x80000000')
a('s_mov_b32 s58, 0xaaaaaaaa')
a('s_mov_b32 s59, 0xaaaaaaaa')
a('s_cmp_eq_u32 s50, 0')
a('s_cbranch_scc0 L_kwin_b')


def write_window(seq, off):
    for s in range(4):
        base = 80 + 4 * s
        for k in range(4):
            a('v_cvt_pk_bf16_f32 v%d, v%d, v%d' % (base + k, seq[s + 2 * k], seq[s + 2 * k + 1]))
        a('ds_write_b128 v38, %s offset:%d' % (Q(base), off + s * KCS))


def seg3_window(y0, y1, z, off):
    a('v_cndmask_b32 v%d, v%d, v%d, s[58:59]' % (z, y0, y1))
    write_window([y0, y0, y0, y0, z] + [y1] * 6, off)


a('v_cndmask_b32 v73, v73, v72, s[54:55]')
a('v_cndmask_b32 v74, v74, v72, s[56:57]')
write_window(list(range(64, 75)), 0)
seg3_window(75, 76, 77, 4 * 512)
a('v_cvt_pk_bf16_f32 v96, 0, v64')
a('v_cvt_pk_bf16_f32 v97, v65, v66')
a('v_cvt_pk_bf16_f32 v98, v64, v65')
a('v_subrev_u32 v99, 16, v38')
a('s_mov_b64 exec, 1')
a('ds_write_b32 v99, v96 offset:%d' % (1 * KCS + 12))
a('ds_write_b32 v99, v98 offset:%d' % (2 * KCS + 12))
a('ds_write_b64 v99, v[96:97] offset:%d' % (3 * KCS + 8))
a('s_mov_b64 exec, -1')
a('s_branch L_kwin_done')
a.label('L_kwin_b')
write_window([64, 64, 64, 65, 65, 65, 66, 66, 66, 66, 66], 0)
seg3_window(67, 68, 77, 4 * 512)
a.label('L_kwin_done')
a('s_lshl_b32 s51, %d, s4' % (1 << B_KC))
set_status('s51', 'v160', 'v20')
stamp(5)
import math as _m
FBASE = 448


def conv_role(tiles):
    acc = {t: 40 + 4 * n for n, t in enumerate(tiles)}
    top = max(tiles)
    loads = []
    mf = []
    for e0 in range(8):
        for g in range(top, -1, -1):
            loads.append(('A', e0, g))
            loads.append(('B', e0, top - g))
            for t in sorted(tiles, reverse=True):
                if 0 <= t - g:
                    mf.append((t, ('A', e0, g), ('B', e0, t - g)))
    last = {}
    for n, (t, ka, kb) in enumerate(mf):
        last[ka] = n
        last[kb] = n
    free = [64 + 4 * n for n in range(16)]
    slot = {}
    issued = []
    done_upto = [0]
    nxt = [0]
    ninstr = lambda k: 2 if k[0] == 'A' else 1
    total = sum(ninstr(k) for k in loads)
    R = total / float(len(mf))
    LEAD = opt('lead', 15)

    def issue_one():
        k = loads[nxt[0]]
        if not free:
            return False
        r = free.pop(0)
        slot[k] = r
        if k[0] == 'A':
            off = 64 * k[1] + 512 * k[2]
            a('ds_read_b64 %s, v35 offset:%d' % (P(r), off))
            a('ds_read_b64 %s, v35 offset:%d' % (P(r + 2), off + 8))
            issued.extend([k, k])
        else:
            a('ds_read_b128 %s, v36 offset:%d' % (Q(r), FBASE + 512 * k[2] - 64 * k[1]))
            issued.append(k)
        nxt[0] += 1
        return True

    def issue_until(target):
        while nxt[0] < len(loads) and len(issued) + ninstr(loads[nxt[0]]) <= target and \
                len(issued) + ninstr(loads[nxt[0]]) - done_upto[0] <= 15:
            if not issue_one():
                break

    issue_until(LEAD)
    seen = set()
    for n, (t, ka, kb) in enumerate(mf):
        need = 0
        for k in (ka, kb):
            while k not in slot:
                assert issue_one()
            need = max(need, max(i for i, x in enumerate(issued) if x == k) + 1)
        if need > done_upto[0]:
            a('s_waitcnt lgkmcnt(%d)' % (len(issued) - need))
            done_upto[0] = need
        a('v_mfma_f32_16x16x32_bf16 %s, %s, %s, %s' % (Q(acc[t]), Q(slot[ka]), Q(slot[kb]), Q(acc[t]) if t in seen else '0'))
        seen.add(t)
        for k in (ka, kb):
            if last[k] == n:
                free.append(slot[k])
        issue_until(int(_m.ceil((n + 1) * R)) + LEAD)
    for n, t in enumerate(sorted(tiles)):
        a('v_cvt_pk_bf16_f32 v%d, v%d, v%d' % (20 + 2 * n, acc[t], acc[t] + 1))
        a('v_cvt_pk_bf16_f32 v%d, v%d, v%d' % (21 + 2 * n, acc[t] + 2, acc[t] + 3))
        a('ds_write_b64 v37, %s offset:%d' % (P(20 + 2 * n), 512 * t))
    bits = sum(1 << (2 * q) for q in set(t // 2 for t in tiles)) << B_Y
    a('s_lshl_b32 s51, %d, s43' % bits)
    set_status('s51', 'v160', 'v28')
    stamp(7)
    finish()


a('s_setprio 1')
a('s_lshl_b32 s51, %d, s43' % (0x5 << B_KC))
a('s_or_b32 s51, s51, %d' % (15 << B_U))
wait_status('s51', 'v160', 'v20')
stamp(6)
a('s_cmp_eq_u32 s50, 0')
a('s_cbranch_scc0 L_conv_y')
conv_role([7, 6, 1, 0])
a.label('L_conv_y')
conv_role([5, 4, 3, 2])

a.label('L_io')
W8 = 20
CH = [22, 24, 26, 28]
T = [40, 42, 44, 46]
cexp_multi([(W8, 8.0, 40), (CH[1], 64.0, 42), (CH[2], 128.0, 44), (CH[3], 192.0, 46)], 10, 11)
a('v_mov_b32 v50, 0x00003f80')
a('ds_write_b32 v62, v50 offset:%d' % (32 * KTS))
kt_write(33, W8, 51, False)
for q in range(1, 4):
    kt_write(32 + 8 * q, CH[q], 51 + q, False)
POLLAT = opt('pollat', 8)


def io_poll_loads():
    a('global_load_dwordx4 v[112:115], v138, s[40:41] sc1')
    a('global_load_dwordx4 v[116:119], v138, s[40:41] offset:128 sc1')
    a('global_load_dwordx4 v[120:123], v138, s[40:41] offset:256 sc1')
    a('global_load_dwordx4 v[124:127], v137, s[40:41] sc1')
    a('global_load_dwordx4 v[128:131], v137, s[40:41] offset:16 sc1')
    a('global_load_dwordx4 v[132:135], v137, s[40:41] offset:32 sc1')


def io_first_poll():
    stamp(4)
    io_poll_loads()
    a('s_mov_b64 exec, 1')
    a('v_mov_b32 v56, 256')
    a('ds_add_u32 v160, v56 offset:%d' % (LNW - STATUS))
    a('s_mov_b64 exec, -1')


for n in range(1, 8):
    jobs = []
    if n >= 2:
        jobs.append((CH[0], W8 if n == 2 else CH[0], W8, T[0]))
    for q in range(1, 4):
        jobs.append((CH[q], CH[q], W8, T[q]))
    cmul_multi(jobs)
    for q in range(4):
        if q == 0 and n < 2:
            continue
        kt_write(32 + 8 * q + n, CH[q], 50 + q, False)
    if n == POLLAT:
        io_first_poll()
a('s_lshl_b32 s51, %d, s4' % (1 << B_KT))
set_status('s51', 'v160', 'v50')
stamp(3)
a('s_sub_u32 s53, s4, 4')
a('s_lshl_b32 s54, s49, 16')
a('s_and_b32 s55, s49, s52')
a('s_lshl_b32 s58, %d, s53' % (1 << B_U))
a('v_mov_b32 v7, s58')
a('s_setprio 2')
if POLLAT > 7:
    if opt('sleepS', 0):
        a('s_sleep %d' % opt('sleepS', 0))
    io_first_poll()
a('s_mov_b32 s59, 0')
a.label('L_io_poll_loop')
a('s_add_u32 s59, s59, 1')
a('s_waitcnt vmcnt(3)')
a('v_cmp_ne_u32 vcc, s5, v115')
a('v_cmp_ne_u32 s[60:61], s5, v119')
a('v_cmp_ne_u32 s[62:63], s5, v123')
XR = [112, 113, 114, 116, 117, 118, 120, 121]
for i in range(8):
    a('v_lshlrev_b32 v%d, 16, v%d' % (40 + 2 * i, XR[i]))
    a('v_and_b32 v%d, s52, v%d' % (41 + 2 * i, XR[i]))
a('s_or_b64 vcc, vcc, s[60:61]')
a('s_or_b64 vcc, vcc, s[62:63]')
a('s_waitcnt vmcnt(0)')
a('v_cmp_ne_u32 s[60:61], s5, v127')
a('v_cmp_ne_u32 s[62:63], s5, v131')
a('s_or_b64 vcc, vcc, s[60:61]')
a('v_cmp_ne_u32 s[60:61], s5, v135')
a('s_or_b64 vcc, vcc, s[62:63]')
a('s_or_b64 vcc, vcc, s[60:61]')
if DEBUG:
    l = L('fs')
    a('s_cmp_eq_u32 s59, 1')
    a('s_cbranch_scc0 %s' % l)
    stamp(10)
    a.label(l)
a('s_and_b64 exec, exec, vcc')
a('s_cbranch_execz L_io_poll_done')
a('s_sleep 2')
io_poll_loads()
a('s_cmp_lt_u32 s59, %d' % POLL_MAX)
a('s_cbranch_scc1 L_io_poll_loop')
a('s_waitcnt vmcnt(0)')
a.label('L_io_poll_done')
if DEBUG:
    a('s_mov_b32 s96, s59')
a('s_mov_b64 exec, -1')
stamp(5)
MS = [124, 125, 126, 128, 129, 130, 132, 133]
for i in range(8):
    a('v_and_b32 v%d, s52, v%d' % (81 + 2 * i, MS[i]))
    a('v_lshlrev_b32 v%d, 16, v%d' % (80 + 2 * i, MS[i]))
for i in range(8):
    a('v_rcp_f32 v%d, v%d' % (81 + 2 * i, 81 + 2 * i))
    a('v_pk_add_f32 %s, %s, %s op_sel_hi:[1,0] neg_lo:[0,1] neg_hi:[0,1]' % (P(96 + 2 * i), P(40 + 2 * i), P(80 + 2 * i)))
if opt('round1', 0):
    for i in range(8):
        a('v_cvt_pk_bf16_f32 v%d, v%d, v%d' % (56 + i, 96 + 2 * i, 97 + 2 * i))
    for i in range(8):
        a('v_lshlrev_b32 v%d, 16, v%d' % (96 + 2 * i, 56 + i))
        a('v_and_b32 v%d, s52, v%d' % (97 + 2 * i, 56 + i))
for i in range(8):
    a('v_pk_mul_f32 %s, %s, %s op_sel:[0,1] op_sel_hi:[1,1]' % (P(96 + 2 * i), P(96 + 2 * i), P(80 + 2 * i)))
for c in range(2):
    for u in range(4):
        a('v_cvt_pk_bf16_f32 v%d, v%d, v%d' % (64 + 4 * c + u, 96 + 2 * (7 - 2 * u) + c, 96 + 2 * (6 - 2 * u) + c))
    a('ds_write_b128 v139, %s offset:%d' % (Q(64 + 4 * c), c * (UB[1] - UB[0])))
a('s_mov_b64 exec, 1')
a('ds_or_b32 v160, v7')
a('s_mov_b64 exec, -1')
stamp(6)
for i in range(8):
    for c in range(2):
        src = 64 + 4 * c + (7 - i) // 2
        if i % 2 == 1:
            a('v_lshlrev_b32 v%d, 16, v%d' % (80 + 2 * i + c, src))
        else:
            a('v_and_b32 v%d, s52, v%d' % (80 + 2 * i + c, src))
for i in range(8):
    a('v_pk_mul_f32 %s, %s, s[54:55]' % (P(96 + 2 * i), P(80 + 2 * i)))
    a('v_pk_add_f32 %s, %s, %s' % (P(40 + 2 * i), P(40 + 2 * i), P(80 + 2 * i)))
for i in range(8):
    a('v_cvt_pk_bf16_f32 v%d, v%d, v%d' % (20 + i, 96 + 2 * i, 97 + 2 * i))
for i in range(8):
    a('v_lshlrev_b32 v%d, 16, v%d' % (96 + 2 * i, 20 + i))
    a('v_and_b32 v%d, s52, v%d' % (97 + 2 * i, 20 + i))
for i in range(8):
    a('v_pk_add_f32 %s, %s, %s' % (P(40 + 2 * i), P(40 + 2 * i), P(96 + 2 * i)))
a('s_not_b32 s7, s5')
for j in range(3):
    a('v_mov_b32 v%d, s7' % (23 + 4 * j))
a('s_lshl_b32 s7, s53, 1')
a('s_lshl_b32 s51, %d, s7' % (3 << B_Y))
a('s_setprio 0')
wait_status('s51', 'v160', 'v7', sleep=opt('sleepY', 0))
a('s_setprio 2')
stamp(7)
a('ds_read_b128 v[64:67], v139 offset:%d' % (YB[0] - UB[0] - 512))
a('ds_read_b128 v[68:71], v139 offset:%d' % (YB[1] - UB[0] - 512))
a('s_waitcnt lgkmcnt(0)')
for j in range(3):
    toks = [i for i in range(3 * j, min(3 * j + 3, 8))]
    for i in toks:
        for c in range(2):
            src = 64 + 4 * c + i // 2
            if i % 2 == 0:
                a('v_lshlrev_b32 v%d, 16, v%d' % (80 + 2 * i + c, src))
            else:
                a('v_and_b32 v%d, s52, v%d' % (80 + 2 * i + c, src))
    for i in toks:
        a('v_pk_add_f32 %s, %s, %s' % (P(80 + 2 * i), P(80 + 2 * i), P(40 + 2 * i)))
    for i in toks:
        a('v_cvt_pk_bf16_f32 v%d, v%d, v%d' % (20 + i + i // 3, 80 + 2 * i, 81 + 2 * i))
    a('global_store_dwordx4 v138, %s, s[40:41] offset:%d sc1' % (Q(20 + 4 * j), 128 * j))
stamp(8)
a('s_setprio 0')
wait_status('%d' % (1 << B_IDX), 'v160', 'v7')
a('ds_read_b32 v7, v160 offset:%d' % (IDXW - STATUS))
a('s_waitcnt lgkmcnt(0)')
a('v_readfirstlane_b32 s60, v7')
a('s_lshr_b32 s7, s60, 9')
a('s_cmp_eq_u32 s7, s53')
a('s_cbranch_scc0 L_io_end')
a('s_lshr_b32 s61, s60, 3')
a('s_and_b32 s60, s60, 7')
a('s_lshl_b64 exec, 1, s61')
a('v_mov_b32 v7, %d' % (1 << B_T1))
for i in range(8):
    l = L('t1')
    a('s_cmp_eq_u32 s60, %d' % i)
    a('s_cbranch_scc0 %s' % l)
    a('ds_write_b64 v160, %s offset:%d' % (P(80 + 2 * i), T1X - STATUS))
    a.label(l)
a('ds_or_b32 v160, v7')
a('s_mov_b64 exec, -1')
a.label('L_io_end')
finish()

a.label('L_special')
a('s_getpc_b64 s[42:43]')
a.label('L_pc')
a('s_sub_u32 s42, s42, L_pc-%s' % NAME)
a('s_subb_u32 s43, s43, 0')
a('s_bfe_u32 s7, s2, 0x30003')
a('s_lshl_b32 s7, s7, 12')
a('v_and_b32 v2, 15, v1')
a('s_sub_u32 s53, s4, 8')
a('s_lshl_b32 s53, s53, 11')
a('s_add_u32 s7, s7, s53')
a('v_lshl_add_u32 v2, v2, 7, s7')
if opt('fullpf', 0):
    a('v_subrev_u32 v2, 512, v0')
    a('v_lshlrev_b32 v2, 7, v2')
a('v_min_u32 v2, L_end-%s-4, v2' % NAME)
a('global_load_dword v3, v2, s[42:43]')
a('v_mov_b32 v160, %d' % STATUS)
a('s_mov_b32 s52, 0xffff0000')
a('s_cmp_eq_u32 s4, 8')
a('s_cbranch_scc1 L_moe')


def have_epoch():
    a('s_waitcnt lgkmcnt(0)')
    a('s_mul_i32 s5, s6, 0x9E3779B1')
    a('s_add_u32 s5, s5, 0x7F4A7C15')
    a('s_mov_b64 exec, 1')
    a('v_mov_b32 v13, 16')
    a('ds_add_u32 v160, v13 offset:%d' % (LNW - STATUS))
    a('s_mov_b64 exec, -1')


a('s_and_b32 s50, s3, 31')
a('s_lshr_b32 s51, s3, 5')
a('s_lshl_b32 s7, s50, 16')
a('s_lshl_b32 s53, s51, 7')
a('s_add_u32 s7, s7, s53')
a('v_and_b32 v6, 7, v1')
a('v_lshrrev_b32 v7, 3, v1')
a('v_lshl_add_u32 v4, v7, 4, s7')
a('v_lshl_add_u32 v4, v6, 13, v4')
a('v_add_u32 v5, 4096, v4')
a('s_waitcnt lgkmcnt(0)')
if opt('tlast', 0):
    a('s_barrier')
RW = lambda i: 64 + 4 * i
GR = lambda rho, i: 16 + 12 * rho + i + i // 3
for i in range(8):
    a('global_load_dwordx4 %s, %s, s[8:9] offset:%d%s' % (Q(RW(i)), 'v4' if i < 4 else 'v5', 1024 * (i % 4), NTT))
a('s_load_dword s6, s[40:41], 0')
if not opt('tlast', 0):
    a('s_barrier')
a('s_mul_i32 s7, s51, %d' % (32 * 12288))
a('s_mul_i32 s53, s50, 384')
a('s_add_u32 s7, s7, s53')
a('s_add_u32 s7, s7, %d' % WS_XT)
a('s_mov_b32 s53, %d' % (4 * 12288))
a('v_lshl_add_u32 v8, v6, 4, s7')
a('v_mad_u32_u24 v8, v7, s53, v8')
for rho in range(1, 4):
    a('v_add_u32 v%d, %d, v8' % (8 + rho, rho * 12288))
have_epoch()
for rho in range(4):
    for j in range(3):
        a('v_mov_b32 v%d, s5' % (16 + 12 * rho + 4 * j + 3))
stamp(1)
a('s_setprio 3')
for j in range(3):
    toks = [i for i in range(3 * j, min(3 * j + 3, 8))]
    if j == 0:
        a('s_waitcnt vmcnt(0)')
        stamp(2)
        if opt('wtrig', 0):
            a('s_mov_b64 exec, 1')
            a('v_mov_b32 v13, 0x10000')
            a('ds_add_u32 v160, v13 offset:%d' % (LNW - STATUS))
            a('s_mov_b64 exec, -1')
    for rho in range(4):
        for i in toks:
            a('v_mov_b32 v%d, v%d' % (GR(rho, i), RW(i) + rho))
        a('global_store_dwordx4 v%d, %s, s[40:41] offset:%d sc1' % (8 + rho, Q(16 + 12 * rho + 4 * j), 128 * j))
stamp(3)
if opt('pull', 0):
    for rho in range(4):
        for j in range(3):
            a('global_load_dword v%d, v%d, s[40:41] offset:%d sc1' % (96 + 3 * rho + j, 8 + rho, 128 * j))
if True:
    a('s_mov_b64 exec, 1')
    a('v_mov_b32 v13, 64')
    a('ds_add_u32 v160, v13 offset:%d' % (LNW - STATUS))
    a('s_mov_b64 exec, -1')
a('s_setprio 0')
a('s_not_b32 s5, s5')
a('s_lshr_b32 s7, s50, 3')
a('s_lshl_b32 s7, s7, 1')
a('s_lshl_b32 s53, %d, s7' % (3 << B_Y))
a('s_or_b32 s53, s53, %d' % (1 << B_IDX))
wait_status('s53', 'v160', 'v13', sleep=2)
a('ds_read_b32 v13, v160 offset:%d' % (IDXW - STATUS))
a('s_waitcnt lgkmcnt(0)')
a('v_readfirstlane_b32 s60, v13')
a('s_lshr_b32 s7, s60, 6')
a('s_bfe_u32 s61, s60, 0x30003')
a('s_and_b32 s60, s60, 7')
a('s_cmp_eq_u32 s7, s50')
a('s_cselect_b32 s60, s60, 8')
a('s_mov_b32 s62, 0x01010101')
a('s_mov_b32 s63, 0x01010101')
a('s_lshl_b64 s[62:63], s[62:63], s61')
a('s_not_b64 s[62:63], s[62:63]')
a('s_setprio 3')
stamp(4)
a('s_sleep %d' % opt('sleepO', 26))
a('s_mov_b32 s59, 0')
a.label('L_ot_loop')
for rho in range(4):
    for j in range(3):
        a('global_load_dwordx4 %s, v%d, s[40:41] offset:%d sc1' % (Q(16 + 12 * rho + 4 * j), 8 + rho, 128 * j))
a('s_add_u32 s59, s59, 1')
a('s_waitcnt vmcnt(0)')
a('v_cmp_ne_u32 vcc, s5, v19')
for n in range(1, 12):
    a('v_cmp_ne_u32 s[56:57], s5, v%d' % (19 + 4 * n))
    a('s_or_b64 vcc, vcc, s[56:57]')
a('s_and_b64 exec, exec, vcc')
a('s_cbranch_execz L_ot_done')
a('s_sleep 2')
a('s_cmp_lt_u32 s59, %d' % POLL_MAX)
a('s_cbranch_scc1 L_ot_loop')
a.label('L_ot_done')
if DEBUG:
    a('s_mov_b32 s96, s59')
a('s_mov_b64 exec, -1')
stamp(5)
for i in range(8):
    for rho in range(4):
        a('v_mov_b32 v%d, v%d' % (RW(i) + rho, GR(rho, i)))
    a('s_cmp_eq_u32 s60, %d' % i)
    a('s_cselect_b64 exec, s[62:63], -1')
    a('global_store_dwordx4 %s, %s, s[36:37] offset:%d%s' % ('v4' if i < 4 else 'v5', Q(RW(i)), 1024 * (i % 4), ['', ' sc1', ' nt', ' sc0 sc1'][opt('ostore', 0)]))
    a('s_mov_b64 exec, -1')
finish()

a.label('L_moe')
a('s_setprio 3')
for k in range(8, 12):
    a('v_mov_b32 v%d, 0' % k)
a('v_and_b32 v6, 31, v1')
a('v_lshlrev_b32 v6, 4, v6')
a('v_lshrrev_b32 v7, 5, v1')
a('s_movk_i32 s51, %d' % (UB[1] - UB[0]))
a('v_mad_u32_u24 v6, v7, s51, v6')
a('ds_write_b128 v6, v[8:11] offset:%d' % UB[0] if UB[0] < 65536 else '')
if UB[0] >= 65536:
    a('v_add_u32 v6, %d, v6' % UB[0])
    a('ds_write_b128 v6, v[8:11]')
a('v_lshrrev_b32 v6, 1, v1')
a('v_and_b32 v7, 1, v1')
a('s_movk_i32 s51, %d' % KCS)
a('v_mul_u32_u24 v6, s51, v6')
a('v_lshl_add_u32 v6, v7, 4, v6')
a('v_add_u32 v6, %d, v6' % KC[0])
a('v_mov_b32 v7, %d' % STATUS)
a('v_cmp_gt_u32 vcc, 16, v1')
a('v_cndmask_b32 v6, v7, v6, vcc')
a('ds_write_b128 v6, v[8:11]')
a('ds_write_b128 v7, v[8:11] offset:16')
a('s_lshr_b32 s50, s3, 3')
a('s_and_b32 s51, s3, 7')
a('v_and_b32 v4, 15, v1')
a('v_lshrrev_b32 v5, 4, v1')
a('s_mul_i32 s7, s51, %d' % (64 * 3584))
a('s_lshl_b32 s53, s50, 7')
a('s_add_u32 s7, s7, s53')
a('v_lshl_add_u32 v6, v4, 3, s7')
a('s_movk_i32 s53, %d' % (8 * 3584))
a('v_mad_u32_u24 v6, v5, s53, v6')
a('s_lshl_b32 s7, s50, 16')
a('s_lshl_b32 s53, s51, 7')
a('s_add_u32 s7, s7, s53')
a('v_lshl_add_u32 v7, v4, 3, s7')
a('v_lshl_add_u32 v7, v5, 13, v7')
a('s_waitcnt lgkmcnt(0)')
if opt('stouch', 0):
    for n, p in enumerate((10, 12, 14, 16, 18, 20, 30, 32, 34, 36)):
        a('s_load_dword s%d, s[%d:%d], 0' % (89 + n % 5, p, p + 1))
    a('s_load_dword s89, s[40:41], 0x3f0000' if False else '')
a('s_load_dword s6, s[40:41], 0')
for base, ptr, size in ((44, 30, 512 * 3584), (56, 32, 512 * 3584), (60, 34, 1792 * 1024)):
    a('s_mov_b32 s%d, s%d' % (base, ptr))
    a('s_mov_b32 s%d, s%d' % (base + 1, ptr + 1))
    a('s_mov_b32 s%d, %d' % (base + 2, size))
    a('s_mov_b32 s%d, 0x00020000' % (base + 3))
a('v_lshlrev_b32 v8, 4, v1')
a('v_add_u32 v8, %d, v8' % WS_KEYS)
a('s_barrier')
RAW = {'g0': 16, 'u0': 32, 'g1': 48, 'u1': 64, 'd0': 80, 'd1': 96}
TRN = {'g0': 112, 'u0': 16, 'g1': 32, 'u1': 48, 'd0': 16, 'd1': 32}


def gate_up_loads(h):
    for m in range(8):
        a('s_mov_b32 s53, %d' % ((32 * h + m) * 3584))
        a('buffer_load_dwordx2 %s, v6, s[44:47], s53 offen%s' % (P(RAW['g%d' % h] + 2 * m), NTW))
        a('buffer_load_dwordx2 %s, v6, s[56:59], s53 offen%s' % (P(RAW['u%d' % h] + 2 * m), NTW))


def down_loads():
    for h in range(2):
        for m in range(8):
            if m % 4 == 0:
                a('s_mov_b32 s53, %d' % ((32 * h + m) * 1024))
            a('buffer_load_dwordx2 %s, v7, s[60:63], s53 offen offset:%d%s' % (P(RAW['d%d' % h] + 2 * m), 1024 * (m % 4), NTW))


def transpose_block(b):
    for u in range(4):
        for dw in range(2):
            hi, lo = RAW[b] + 2 * (2 * u + 1) + dw, RAW[b] + 2 * (2 * u) + dw
            a('v_perm_b32 v%d, v%d, v%d, s92' % (TRN[b] + 4 * (2 * dw) + u, hi, lo))
            a('v_perm_b32 v%d, v%d, v%d, s93' % (TRN[b] + 4 * (2 * dw + 1) + u, hi, lo))


def wait_lnw(val, mask=None):
    l = L('lnw')
    a.label(l)
    a('s_sleep 1')
    a('ds_read_b32 v13, v160 offset:%d' % (LNW - STATUS))
    a('s_sub_u32 s88, s88, 1')
    a('s_cbranch_scc1 L_exit')
    a('s_waitcnt lgkmcnt(0)')
    a('v_readfirstlane_b32 s7, v13')
    a('s_and_b32 s7, s7, %d' % (mask if mask else 255 if val < 256 else 0xffff))
    a('s_cmp_ge_u32 s7, %d' % val)
    a('s_cbranch_scc0 %s' % l)


def key_loads():
    for k in range(4):
        a('global_load_dwordx4 %s, v8, s[40:41] offset:%d sc1' % (Q(128 + 4 * k), 1024 * k))


if opt('sleepW', 4):
    a('s_sleep %d' % opt('sleepW', 4))
if opt('touch', 1):
    a('s_lshl_b32 s7, s3, 13')
    a('v_mov_b32 v9, s7')
    a('global_load_dword v2, v9, s[36:37]')
a('s_lshr_b32 s7, s2, 3')
a('s_lshl_b32 s7, s7, 9')
a('s_add_u32 s7, s7, %d' % WS_STATS)
a('v_and_b32 v9, 3, v1')
a('v_lshl_add_u32 v9, v9, 7, s7')
if opt('touchS', 0):
    a('global_load_dword v2, v9, s[40:41] sc1')
if opt('touch', 1):
    a('v_mov_b32 v9, 0x3f0000')
    a('global_load_dword v2, v9, s[40:41]')
if opt('touchH', 1):
    a('s_lshl_b32 s7, s3, 10')
    a('s_add_u32 s7, s7, %d' % WS_HOPA)
    a('v_and_b32 v9, 7, v1')
    a('v_lshl_add_u32 v9, v9, 7, s7')
    a('s_lshl_b32 s7, s3, 9')
    a('s_add_u32 s7, s7, %d' % WS_HOPB)
    a('v_and_b32 v10, 3, v1')
    a('v_lshl_add_u32 v10, v10, 7, s7')
    a('v_cmp_gt_u32 vcc, 8, v1')
    a('v_cndmask_b32 v9, v10, v9, vcc')
    a('global_load_dword v2, v9, s[40:41] sc1')
have_epoch()
a('s_mov_b32 s92, 0x05040100')
a('s_mov_b32 s93, 0x07060302')
a('s_lshl_b32 s7, s3, 10')
a('s_add_u32 s7, s7, %d' % WS_HOPA)
a('v_lshl_add_u32 v161, v1, 4, s7')
a('s_lshl_b32 s7, s50, 13')
a('s_add_u32 s7, s7, %d' % WS_HOPA)
a('v_lshl_add_u32 v14, v1, 4, s7')
a('v_add_u32 v15, 4096, v14')
a('v_lshlrev_b32 v162, 1, v1')
a('v_add_u32 v162, %d, v162' % XS)
a('v_lshl_add_u32 v163, v4, 2, v5')
a('v_lshlrev_b32 v163, 1, v163')
a('v_add_u32 v163, %d, v163' % HS)
a('v_lshlrev_b32 v164, 4, v5')
a('v_add_u32 v164, %d, v164' % HS)
a('s_lshl_b32 s7, s3, 9')
a('s_add_u32 s7, s7, %d' % WS_HOPB)
a('v_lshl_add_u32 v165, v4, 1, v5')
a('v_lshl_add_u32 v165, v165, 4, s7')
a('s_lshr_b32 s7, s3, 5')
a('s_lshl_b32 s7, s7, 9')
a('s_and_b32 s53, s3, 31')
a('s_lshl_b32 s53, s53, 4')
a('s_add_u32 s7, s7, s53')
a('s_add_u32 s7, s7, %d' % WS_HOPB)
a('v_lshl_add_u32 v166, v1, 12, s7')
a('s_lshl_b32 s7, s51, 7')
a('v_lshl_add_u32 v167, v1, 1, s7')
a('s_mov_b32 s46, s46' if False else '')
a('s_cmp_ge_u32 s3, 224')
a('s_cbranch_scc0 L_moe_has_w')
wait_lnw(168 + 1024)
key_loads()
a('s_waitcnt vmcnt(0)')
a('s_branch L_key_check')
a.label('L_moe_has_w')
TWO = opt('twobatch', 0)
DE = opt('downearly', 0)
if DE:
    a('s_sleep %d' % DE)
    down_loads()
AFTER = opt('wafter', 0)
if AFTER:
    wait_lnw(168 + 1024)
    key_loads()
    gate_up_loads(0)
    gate_up_loads(1)
    stamp(1)
    a('s_waitcnt vmcnt(32)')
else:
    WT = opt('wtrig', 0)
    if WT == 0:
        wait_lnw(168)
        gate_up_loads(0)
    elif WT == 1:
        wait_lnw(0x10000, 0x10000)
        gate_up_loads(0)
    else:
        wait_lnw(1, 15)
        gate_up_loads(0)
        wait_lnw(0x10000, 0x10000)
    if not TWO:
        gate_up_loads(1)
    stamp(1)
    wait_lnw(168 + 1024)
    key_loads()
    if TWO:
        gate_up_loads(1)
    a('s_waitcnt vmcnt(%d)' % (20 if TWO else 4 + 16))
    stamp(2)
    transpose_block('g0')
    transpose_block('u0')
    if not TWO:
        a('s_waitcnt vmcnt(4)')
        transpose_block('g1')
        transpose_block('u1')
    a('s_waitcnt vmcnt(%d)' % (16 if TWO else 0))
a.label('L_key_check')
stamp(3)
a('s_mov_b32 s53, 0')
a.label('L_key_loop')
a('v_cmp_ne_u32 vcc, s5, v131')
a('v_cmp_ne_u32 s[42:43], s5, v135')
a('s_or_b64 vcc, vcc, s[42:43]')
a('v_cmp_ne_u32 s[42:43], s5, v139')
a('s_or_b64 vcc, vcc, s[42:43]')
a('v_cmp_ne_u32 s[42:43], s5, v143')
a('s_or_b64 vcc, vcc, s[42:43]')
a('s_and_b64 exec, exec, vcc')
a('s_cbranch_execz L_key_done')
a('s_sleep 1')
key_loads()
a('s_add_u32 s53, s53, 1')
a('s_cmp_lt_u32 s53, %d' % POLL_MAX)
a('s_waitcnt vmcnt(0)')
a('s_cbranch_scc1 L_key_loop')
a.label('L_key_done')
if DEBUG:
    a('s_mov_b32 s96, s53')
a('s_mov_b64 exec, -1')
a('v_max3_u32 v2, v129, v133, v137')
a('v_max_u32 v2, v2, v141')
reduce64('v_max_u32', ['v2'])
a('v_mov_b32 v9, 0')
a('v_readlane_b32 s54, v2, 63')
a('s_and_b32 s55, s54, 0xffff')
a('s_sub_u32 s55, 2047, s55')
a('s_and_b32 s55, s55, 2047')
a('s_lshl_b32 s7, s55, 10')
a('v_add_u32 v3, s7, v167')
a('global_load_short_d16_hi v9, v3, s[8:9]')
stamp(4)
a('v_mov_b32 v10, s55')
a('v_mov_b32 v11, %d' % (1 << B_IDX))
a('s_mov_b64 exec, 1')
a('ds_write_b32 v160, v10 offset:%d' % (IDXW - STATUS))
a('ds_or_b32 v160, v11')
a('s_mov_b64 exec, -1')
if not DE:
    a('s_cmp_ge_u32 s3, 224')
    a('s_cbranch_scc1 L_no_down')
    down_loads()
    a.label('L_no_down')
a('v_cmp_eq_u32 vcc, s54, v133')
a('v_cmp_eq_u32 s[42:43], s54, v137')
a('v_cmp_eq_u32 s[44:45], s54, v141')
a('v_cmp_eq_u32 s[46:47], s54, v129')
a('v_cndmask_b32 v128, v128, v132, vcc')
a('v_cndmask_b32 v128, v128, v136, s[42:43]')
a('v_cndmask_b32 v128, v128, v140, s[44:45]')
a('s_or_b64 vcc, vcc, s[42:43]')
a('s_or_b64 s[44:45], s[44:45], s[46:47]')
a('s_or_b64 vcc, vcc, s[44:45]')
a('s_ff1_i32_b64 s7, vcc')
a('s_and_b32 s7, s7, 63')
a('v_readlane_b32 s89, v128, s7')
a('s_and_b32 s7, s54, s52')
a('s_not_b32 s42, s7')
a('s_and_b32 s42, s42, s52')
a('s_xor_b32 s43, s7, 0x80000000')
a('s_bitcmp1_b32 s7, 31')
a('s_cselect_b32 s7, s43, s42')
a('v_mov_b32 v12, s7')
a('v_mul_f32 v12, %s, v12' % f32(-LOG2E))
a('v_exp_f32 v12, v12')
a('v_add_f32 v12, 1.0, v12')
a('v_rcp_f32 v12, v12')
a('v_cvt_pk_bf16_f32 v12, v12, v12')
a('v_and_b32 v12, s52, v12')
a('s_and_b32 s90, s89, s52')
a('s_lshl_b32 s89, s89, 16')
a('v_rcp_f32 v13, s90')
a('s_mov_b32 s42, 0xffff0000')
a('s_mov_b32 s43, 0xffff0000')
a('s_mov_b32 s44, 0')
a('s_mov_b32 s45, -1')
a('s_cmp_ge_u32 s3, 224')
a('s_cbranch_scc1 L_moe_idle')
if AFTER:
    a('s_waitcnt vmcnt(%d)' % (16 + (1 if DE else 17)))
    stamp(2)
    transpose_block('g0')
    transpose_block('u0')
if TWO or AFTER:
    a('s_waitcnt vmcnt(%d)' % (1 if DE else 17))
    transpose_block('g1')
    transpose_block('u1')
a('v_mov_b32 v74, 0')
a('v_mov_b32 v75, s5')
a('s_waitcnt vmcnt(%d)' % (0 if DE else 16))
stamp(5)
a('v_subrev_f32 v9, s89, v9')
if opt('round1', 0):
    a('v_cvt_pk_bf16_f32 v9, v9, v9')
    a('v_and_b32 v9, s52, v9')
a('v_mul_f32 v9, v9, v13')
a('v_cvt_pk_bf16_f32 v9, v9, v9')
a('ds_write_b16 v162, v9')
a('ds_read_b128 v[64:67], v164 offset:%d' % (XS - HS))
a('ds_read_b128 v[68:71], v164 offset:%d' % (XS - HS + 64))
a('s_waitcnt lgkmcnt(0)')
for mat in ('g', 'u'):
    for h in range(2):
        for f in range(4):
            d = 128 + (16 if mat == 'u' else 0) + 4 * f
            a('v_mfma_f32_16x16x32_bf16 %s, %s, %s, %s' % (Q(d), Q(64 + 4 * h), Q(TRN[mat + str(h)] + 4 * f), '0' if h == 0 else Q(d)))
for base, dst in ((128, 72), (144, 73)):
    a('v_cndmask_b32 v%d, v%d, v%d, s[42:43]' % (base, base, base + 4))
    a('v_cndmask_b32 v%d, v%d, v%d, s[42:43]' % (base + 8, base + 8, base + 12))
    a('v_cndmask_b32 v%d, v%d, v%d, s[44:45]' % (dst, base, base + 8))
a('global_store_dwordx4 v161, v[72:75], s[40:41] sc1')
stamp(6)
a('s_waitcnt vmcnt(1)')
stamp(10)
transpose_block('d0')
transpose_block('d1')
if opt('sleepA', 8):
    a('s_sleep %d' % opt('sleepA', 8))
a('s_mov_b32 s53, 0')
a.label('L_hopa_loop')
for k in range(8):
    a('global_load_dwordx4 %s, %s, s[40:41] offset:%d sc1' % (Q(128 + 4 * k), 'v14' if k < 4 else 'v15', 1024 * (k % 4)))
a('s_add_u32 s53, s53, 1')
a('s_waitcnt vmcnt(0)')
a('v_cmp_ne_u32 vcc, s5, v131')
for k in range(1, 8):
    a('v_cmp_ne_u32 s[56:57], s5, v%d' % (131 + 4 * k))
    a('s_or_b64 vcc, vcc, s[56:57]')
a('s_and_b64 exec, exec, vcc')
a('s_cbranch_execz L_hopa_done')
a('s_sleep 2')
a('s_cmp_lt_u32 s53, %d' % POLL_MAX)
a('s_cbranch_scc1 L_hopa_loop')
a.label('L_hopa_done')
if DEBUG:
    a('s_mov_b32 s97, s53')
a('s_mov_b64 exec, -1')
stamp(7)
for k in range(4):
    a('v_pk_add_f32 %s, %s, %s' % (P(128 + 8 * k), P(128 + 8 * k), P(132 + 8 * k)))
a('v_pk_add_f32 v[128:129], v[128:129], v[136:137]')
a('v_pk_add_f32 v[144:145], v[144:145], v[152:153]')
a('v_pk_add_f32 v[128:129], v[128:129], v[144:145]')
a('v_cvt_pk_bf16_f32 v2, v128, v129')
a('v_lshlrev_b32 v3, 16, v2')
a('v_and_b32 v2, s52, v2')
a('v_mul_f32 v10, %s, v3' % f32(-LOG2E))
a('v_exp_f32 v10, v10')
a('v_add_f32 v10, 1.0, v10')
a('v_rcp_f32 v10, v10')
a('v_mul_f32 v10, v3, v10')
a('v_cvt_pk_bf16_f32 v10, v10, v10')
a('v_and_b32 v10, s52, v10')
a('v_mul_f32 v10, v10, v2')
a('v_cvt_pk_bf16_f32 v10, v10, v10')
a('ds_write_b16 v163, v10')
a('ds_read_b128 v[64:67], v164')
a('ds_read_b128 v[68:71], v164 offset:64')
a('s_waitcnt lgkmcnt(0)')
for h in range(2):
    for f in range(4):
        d = 128 + 4 * f
        a('v_mfma_f32_16x16x32_bf16 %s, %s, %s, %s' % (Q(d), Q(64 + 4 * h), Q(TRN['d%d' % h] + 4 * f), '0' if h == 0 else Q(d)))
a('v_cndmask_b32 v72, v128, v136, s[42:43]')
a('v_cndmask_b32 v73, v132, v140, s[42:43]')
a('s_mov_b32 exec_hi, 0')
a('global_store_dwordx4 v165, v[72:75], s[40:41] sc1')
a('s_mov_b64 exec, -1')
stamp(8)
a('s_sleep %d' % opt('sleepB', 26))
a('s_branch L_moe_final')
a.label('L_moe_idle')
a('s_sleep %d' % opt('sleepI', 70))
a.label('L_moe_final')
a('v_mov_b32 v128, 0')
a('v_mov_b32 v129, 0')
a('s_mov_b32 s53, 0')
a('s_mov_b64 exec, 0xfffffff')
a.label('L_hopb_loop')
a('global_load_dwordx4 v[128:131], v166, s[40:41] sc1')
a('s_add_u32 s53, s53, 1')
a('s_waitcnt vmcnt(0)')
a('v_cmp_ne_u32 vcc, s5, v131')
a('s_and_b64 exec, exec, vcc')
a('s_cbranch_execz L_hopb_done')
a('s_sleep 2')
a('s_cmp_lt_u32 s53, %d' % POLL_MAX)
a('s_cbranch_scc1 L_hopb_loop')
a.label('L_hopb_done')
if DEBUG:
    a('s_mov_b32 s98, s53')
a('s_mov_b64 exec, -1')
stamp(9)
reduce64('v_add_f32', ['v128', 'v129'])
a('v_readlane_b32 s42, v128, 63')
a('v_readlane_b32 s43, v129, 63')
a('v_mov_b32 v3, s43')
a('v_cvt_pk_bf16_f32 v2, s42, v3')
a('v_and_b32 v3, s52, v2')
a('v_lshlrev_b32 v2, 16, v2')
a('v_pk_mul_f32 v[2:3], v[2:3], v[12:13] op_sel_hi:[1,0]')
a('v_cvt_pk_bf16_f32 v2, v2, v3')
a('v_and_b32 v3, s52, v2')
a('v_lshlrev_b32 v2, 16, v2')
a('s_lshl_b32 s42, s55, 10')
a('s_lshl_b32 s43, s3, 2')
a('s_add_u32 s42, s42, s43')
a('v_mov_b32 v9, s42')
wait_status('%d' % (1 << B_T1), 'v160', 'v10')
a('ds_read_b64 v[4:5], v160 offset:%d' % (T1X - STATUS))
a('s_waitcnt lgkmcnt(0)')
a('v_pk_add_f32 v[2:3], v[2:3], v[4:5]')
a('v_cvt_pk_bf16_f32 v2, v2, v3')
a('s_mov_b64 exec, 1')
a('global_store_dword v9, v2, s[36:37]')
a('s_cmp_eq_u32 s2, 0')
a('s_cbranch_scc0 L_no_epoch')
a('s_add_u32 s7, s6, 1')
a('v_mov_b32 v10, 0')
a('v_mov_b32 v11, s7')
a('global_store_dword v10, v11, s[40:41] sc1')
a.label('L_no_epoch')
a('s_mov_b64 exec, -1')
finish()
a.label('L_exit')
a('s_endpgm')
a.label('L_end')

body = a.finalize()
hdr = open('parallel_sum__ssm_conv_s4__moe_arch_mod__prompt.s.ref').read().split('; Override launch')[0]
src = hdr
src += '; Generated by work/gen.py (hand-written instruction streams, scripted unrolling and wait-state padding).\n'
src += '; @launch grid=(256,1,1) block=(640,1,1) lds=%d\n' % LDS_BYTES
src += '.amdgcn_target "amdgcn-amd-amdhsa--gfx950"\n.text\n.globl %s\n.p2align 8\n.type %s,@function\n' % (NAME, NAME)
src += body
src += '''.section .rodata,"a"
.p2align 6
.amdhsa_kernel %s
  .amdhsa_next_free_vgpr 168
  .amdhsa_next_free_sgpr 100
  .amdhsa_accum_offset 168
  .amdhsa_group_segment_fixed_size 0
  .amdhsa_kernarg_size 136
  .amdhsa_user_sgpr_count 2
  .amdhsa_user_sgpr_kernarg_segment_ptr 1
  .amdhsa_system_sgpr_workgroup_id_x 1
.end_amdhsa_kernel
''' % NAME
open(OUT, 'w').write(src)
print('wrote', OUT, 'lds', LDS_BYTES)
```

```python
import sys, struct, math
from asmlib import Asm

NAME = 'parallel_sum__ssm_conv_s4__moe_arch_mod__prompt_kernel'
DEBUG = '--debug' in sys.argv
SPAN = '--span' in sys.argv
OUT = [a for a in sys.argv[1:] if not a.startswith('--')]
OUT = OUT[0] if OUT else 'parallel_sum__ssm_conv_s4__moe_arch_mod__prompt.s'


def opt(name, default):
    for a in sys.argv:
        if a.startswith('--' + name + '='):
            return int(a.split('=')[1], 0)
    return default


def f32(x):
    return '0x%08x' % struct.unpack('<I', struct.pack('<f', x))[0]


WS_STATS = 4096
WS_KEYS = 16384
WS_HOPA = 32768
WS_HOPB = 262144
WS_XT = 0x80000
WS_OT = 4 << 20
WS_DBG = 8 << 20
KTS = 528
KT = [0, 64 * KTS]
KCS = 4160
KC = [2 * 64 * KTS, 2 * 64 * KTS + 4 * KCS]
UB = [KC[1] + 4 * KCS, KC[1] + 4 * KCS + 4608]
YB = [UB[1] + 4608, UB[1] + 4608 + 4096]
MISC = YB[1] + 4096
STG = MISC
STATUS = MISC + 64
IDXW = MISC + 68
T1X = MISC + 72
HS = MISC + 128
XS = MISC + 256
LDS_BYTES = MISC + 384
B_U, B_KC, B_Y, B_IDX, B_T1, B_KT = 0, 4, 8, 16, 17, 18
LNW = MISC + 80
BEST = MISC + 88

POLL_MAX = 1 << 16
FOFF = 64 * 19
LOG2E = 1.4426950408889634
LOG2E_HI = struct.unpack('<f', struct.pack('<f', LOG2E))[0]
LOG2E_LO = LOG2E - LOG2E_HI

a = Asm()
uid = [0]
NTW = ' nt' if opt('ntw', 1) else ''
NTX = ' nt' if opt('ntx', 1) else ''
NTT = ' nt' if opt('ntt', 1) else ''
NTP = ' nt' if opt('ntp', 1) else ''


def L(p):
    uid[0] += 1
    return 'L_%s_%d' % (p, uid[0])


ECHO = opt('echow', -1) >= 0


def stamp(n):
    if ECHO and (n == 0 or n == opt('echos', 1)):
        a('s_memrealtime s[%d:%d]' % ((64, 65) if n == 0 else (66, 67)))
    if DEBUG:
        a('%s s[%d:%d]' % ('s_memtime' if '--cyc' in sys.argv else 's_memrealtime', 64 + 2 * n, 65 + 2 * n))


NSTAMP = 12


def finish():
    if DEBUG:
        stamp(NSTAMP - 1)
        a('s_waitcnt lgkmcnt(0)')
        a('s_mov_b64 exec, 1')
        a('s_mul_i32 s7, s2, 10')
        a('s_add_u32 s7, s7, s4')
        a('s_lshl_b32 s7, s7, 6')
        a('s_add_u32 s7, s7, %d' % WS_DBG)
        a('v_mov_b32 v2, s7')
        for n in range(NSTAMP):
            a('v_mov_b32 v3, s%d' % (64 + 2 * n))
            a('global_store_dword v2, v3, s[40:41] offset:%d' % (4 * n))
        for n, r in enumerate((96, 97, 98)):
            a('v_mov_b32 v3, s%d' % r)
            a('global_store_dword v2, v3, s[40:41] offset:%d' % (48 + 4 * n))
    if ECHO:
        l = L('echo')
        if opt('echos', 1) == NSTAMP - 1:
            a('s_waitcnt vmcnt(0)')
            stamp(NSTAMP - 1)
        a('s_cmp_eq_u32 s2, %d' % opt('echob', 0))
        a('s_cbranch_scc0 %s' % l)
        a('s_cmp_eq_u32 s4, %d' % opt('echow', 0))
        a('s_cbranch_scc0 %s' % l)
        a('s_waitcnt lgkmcnt(0)')
        a('s_sub_u32 s66, s66, s64')
        a('s_mul_i32 s66, s66, %d' % opt('echok', 8))
        a('s_add_u32 s66, s66, 1500')
        a('s_min_u32 s66, s66, 20000')
        l2 = L('spin')
        a.label(l2)
        a('s_memrealtime s[68:69]')
        a('s_waitcnt lgkmcnt(0)')
        a('s_sub_u32 s68, s68, s64')
        a('s_cmp_lt_u32 s68, s66')
        a('s_cbranch_scc1 %s' % l2)
        a.label(l)
    if SPAN:
        l = L('spanlbl')
        a('s_waitcnt vmcnt(0)')
        a('s_memrealtime s[66:67]')
        a('s_cmp_ge_u32 s2, 8')
        a('s_cbranch_scc1 %s' % l)
        a('s_sub_u32 s7, s4, 7')
        a('s_cmp_ge_u32 s7, 2')
        a('s_cbranch_scc1 %s' % l)
        a('s_waitcnt lgkmcnt(0)')
        a('s_mov_b64 exec, 1')
        a('s_lshl_b32 s7, s7, 3')
        a('s_add_u32 s7, s7, s2')
        a('s_lshl_b32 s7, s7, 2')
        a('v_mov_b32 v2, s7')
        a('s_sub_u32 s64, s66, s64')
        a('v_mov_b32 v3, s64')
        a('global_store_dword v2, v3, s[38:39]')
        K = opt('echo', 0)
        if K:
            a('s_cmp_eq_u32 s2, 0')
            a('s_cbranch_scc0 %s' % l)
            a('s_cmp_eq_u32 s4, 8')
            a('s_cbranch_scc0 %s' % l)
            a('s_mul_i32 s64, s64, %d' % K)
            l2 = L('spin')
            a.label(l2)
            a('s_memrealtime s[68:69]')
            a('s_waitcnt lgkmcnt(0)')
            a('s_sub_u32 s68, s68, s66')
            a('s_cmp_lt_u32 s68, s64')
            a('s_cbranch_scc1 %s' % l2)
        a.label(l)
    a('s_endpgm')


def wait_status(need, vaddr, vtmp, sleep=0):
    l = L('ws')
    a.label(l)
    if sleep:
        a('s_sleep %d' % sleep)
    a('ds_read_b32 %s, %s' % (vtmp, vaddr))
    a('s_sub_u32 s88, s88, 1')
    a('s_cbranch_scc1 L_exit')
    a('s_waitcnt lgkmcnt(0)')
    a('v_readfirstlane_b32 s7, %s' % vtmp)
    a('s_and_b32 s7, s7, %s' % need)
    a('s_cmp_eq_u32 s7, %s' % need)
    a('s_cbranch_scc0 %s' % l)


def set_status(bits, vaddr, vtmp):
    a('s_mov_b64 exec, 1')
    a('v_mov_b32 %s, %s' % (vtmp, bits))
    a('ds_or_b32 %s, %s' % (vaddr, vtmp))
    a('s_mov_b64 exec, -1')


def reduce64(op, regs):
    for step in ('row_shr:1 row_mask:0xf', 'row_shr:2 row_mask:0xf', 'row_shr:4 row_mask:0xf', 'row_shr:8 row_mask:0xf',
                 'row_bcast:15 row_mask:0xa', 'row_bcast:31 row_mask:0xc'):
        for r in regs:
            a('%s_dpp %s, %s, %s %s bank_mask:0xf' % (op, r, r, r, step))


def P(n):
    return 'v[%d:%d]' % (n, n + 1)


def Q(n):
    return 'v[%d:%d]' % (n, n + 3)


def cmul(d, z, w, t):
    a('v_pk_mul_f32 %s, %s, %s op_sel:[0,0] op_sel_hi:[0,1]' % (P(t), P(z), P(w)))
    a('v_pk_fma_f32 %s, %s, %s, %s op_sel:[1,1,0] op_sel_hi:[1,0,1] neg_lo:[1,0,0]' % (P(d), P(z), P(w), P(t)))


def cmul_multi(jobs):
    for d, z, w, t in jobs:
        a('v_pk_mul_f32 %s, %s, %s op_sel:[0,0] op_sel_hi:[0,1]' % (P(t), P(z), P(w)))
    for d, z, w, t in jobs:
        a('v_pk_fma_f32 %s, %s, %s, %s op_sel:[1,1,0] op_sel_hi:[1,0,1] neg_lo:[1,0,0]' % (P(d), P(z), P(w), P(t)))


def cexp_multi(jobs, al, be):
    for d, l, t in jobs:
        a('v_mul_f32 v%d, %s, v%d' % (t, f32(l), al))
        a('v_mul_f32 v%d, %s, v%d' % (t + 1, f32(l), be))
    for d, l, t in jobs:
        a('v_exp_f32 v%d, v%d' % (t, t))
        a('v_fract_f32 v%d, v%d' % (t + 1, t + 1))
    for d, l, t in jobs:
        a('v_cos_f32 v%d, v%d' % (d, t + 1))
        a('v_sin_f32 v%d, v%d' % (d + 1, t + 1))
    for d, l, t in jobs:
        a('v_pk_mul_f32 %s, %s, %s op_sel:[0,0] op_sel_hi:[1,0]' % (P(d), P(d), P(t)))


a.label(NAME)
a('s_getpc_b64 s[42:43]')
a('s_load_dwordx16 s[8:23], s[0:1], 0')
a('s_load_dwordx16 s[24:39], s[0:1], 64')
a('s_load_dwordx2 s[40:41], s[0:1], 128')
stamp(0)
if SPAN:
    a('s_memrealtime s[64:65]')
a('s_cmpk_gt_u32 s2, 255')
a('s_cbranch_scc1 L_exit')
a('v_lshrrev_b32 v2, 6, v0')
a('v_and_b32 v1, 63, v0')
a('s_lshr_b32 s50, s2, 3')
a('v_readfirstlane_b32 s4, v2')
a('s_and_b32 s51, s2, 7')
a('s_and_b32 s7, s50, 7')
a('s_lshl_b32 s7, s7, 3')
a('s_add_u32 s7, s7, s4')
a('s_mulk_i32 s7, 384')
a('v_min_u32 v2, 2, v1')
a('v_lshl_add_u32 v2, v2, 7, s7')
a('v_min_u32 v2, L_end-%s-8, v2' % NAME)
a('global_load_dword v159, v2, s[42:43]')
a('s_lshl_b32 s3, s51, 5')
a('s_add_u32 s3, s3, s50')
a('v_mov_b32 v160, %d' % STATUS)
a('s_cmp_ge_u32 s4, 8')
a('s_cbranch_scc1 L_special')
a('s_lshl_b32 s7, s2, 13')
a('v_lshl_add_u32 v18, v0, 4, s7')
a('v_lshlrev_b32 v17, 4, v1')
a('s_and_b32 s43, s4, 1')
a('s_lshl_b32 s7, s3, 9')
a('s_lshl_b32 s51, s43, 8')
a('s_bfe_u32 s50, s4, 0x10001')
a('s_add_u32 s7, s7, s51')
a('s_lshl_b32 s51, s50, 7')
a('s_add_u32 s7, s7, s51')
a('v_lshl_add_u32 v19, v1, 1, s7')
for r in range(10, 16):
    a('v_mov_b32 v%d, 0' % r)
a('s_lshl_b32 s7, s3, 2')
a('s_waitcnt lgkmcnt(0)')
if opt('st8', 0) == 2:
    stamp(8)
a('global_load_dwordx4 v[2:5], v18, s[8:9]' + NTX)
a('global_load_dwordx4 v[6:9], v17, s[28:29]')
a('s_load_dword s6, s[40:41], 0')
a('s_load_dword s48, s[22:23], s7')
a('s_load_dword s49, s[24:25], s7')
a('s_barrier')
a('global_load_short_d16_hi v10, v19, s[10:11]' + NTP)
a('global_load_short_d16_hi v11, v19, s[12:13]' + NTP)
a('s_cmp_ge_u32 s4, 4')
a('s_cbranch_scc1 L_ln')
a('global_load_short_d16_hi v12, v19, s[14:15]' + NTP)
a('global_load_short_d16_hi v13, v19, s[16:17]' + NTP)
a('global_load_short_d16_hi v14, v19, s[18:19]' + NTP)
a('global_load_short_d16_hi v15, v19, s[20:21]' + NTP)
a('s_branch L_ln')
a.label('L_special')
a('s_cmp_eq_u32 s4, 8')
a('s_cbranch_scc1 L_moe0')
a('s_lshl_b32 s7, s50, 16')
a('s_lshl_b32 s53, s51, 7')
a('s_add_u32 s7, s7, s53')
a('v_and_b32 v6, 7, v1')
a('v_lshrrev_b32 v7, 3, v1')
a('v_lshl_add_u32 v4, v7, 4, s7')
a('v_lshl_add_u32 v4, v6, 13, v4')
a('v_add_u32 v5, 4096, v4')
a('s_waitcnt lgkmcnt(0)')
RW = lambda i: 64 + 4 * i
for i in range(8):
    a('global_load_dwordx4 %s, %s, s[8:9] offset:%d%s' % (Q(RW(i)), 'v4' if i < 4 else 'v5', 1024 * (i % 4), NTT))
a('s_load_dword s6, s[40:41], 0')
a('s_barrier')
a('s_branch L_tr')
a.label('L_moe0')
a('v_mov_b32 v8, 0')
a('v_lshl_add_u32 v6, v1, 2, v160')
a('ds_write_b32 v6, v8')
a('s_waitcnt lgkmcnt(0)')
a('s_load_dword s6, s[40:41], 0')
a('s_barrier')
a('s_branch L_moe')
a.label('L_ln')
a('s_mov_b32 s88, 0x400000')
a('s_lshl_b32 s42, s2, 3')
a('s_add_u32 s42, s42, s4')
a('s_mov_b32 s52, 0xffff0000')
a('s_mul_i32 s7, s43, %d' % KT[1])
a('s_lshl_b32 s51, s50, 8')
a('s_add_u32 s7, s7, s51')
a('v_lshl_add_u32 v62, v1, 2, s7')
a('s_waitcnt lgkmcnt(0)')
a('s_mul_i32 s5, s6, 0x9E3779B1')
a('s_add_u32 s5, s5, 0x7F4A7C15')
a('s_lshl_b32 s7, s48, 16')
a('s_and_b32 s51, s48, s52')
a('s_cmp_eq_u32 s43, 0')
a('s_cselect_b32 s7, s7, s51')
a('v_mov_b32 v20, s7')
a('v_mul_f32 v21, %s, v20' % f32(LOG2E_HI))
a('v_mov_b32 v22, %s' % f32(LOG2E_HI))
a('v_fma_f32 v22, v20, v22, -v21')
a('v_fmac_f32 v22, %s, v20' % f32(LOG2E_LO))
a('v_exp_f32 v21, v21')
a('v_mul_f32 v22, %s, v22' % f32(math.log(2.0)))
a('v_fmac_f32 v21, v21, v22')
a('v_cvt_pk_bf16_f32 v21, v21, v21')
a('v_and_b32 v16, s52, v21')
a('v_mov_b32 v44, 0')
a('v_mov_b32 v45, 0')
a('v_mov_b32 v46, 0x3f803f80')
a('v_mov_b32 v47, %s' % f32(1.0 / 512))
a('s_sub_u32 s47, 2047, s42')
a('v_mov_b32 v43, s47')
a('s_lshl_b32 s7, s4, 2')
a('s_add_u32 s7, s7, %d' % STG)
a('v_mov_b32 v48, s7')
a('v_mov_b32 v49, 1')
a('v_and_b32 v136, 255, v0')
a('v_mul_u32_u24 v137, 48, v136')
a('v_add_u32 v137, %d, v137' % WS_STATS)
a('s_mul_i32 s7, s3, 12288')
a('s_add_u32 s7, s7, %d' % WS_XT)
a('v_lshrrev_b32 v138, 3, v136')
a('v_mul_u32_u24 v138, 384, v138')
a('v_and_b32 v139, 7, v136')
a('v_lshl_add_u32 v138, v139, 4, v138')
a('v_add_u32 v138, s7, v138')
a('v_lshlrev_b32 v139, 4, v136')
a('v_add_u32 v139, %d, v139' % (UB[0] + 512))
a('s_setprio 2')
a('s_cmp_ge_u32 s4, 4')
a('s_cbranch_scc1 L_wait_io')
a('s_waitcnt vmcnt(6)')
a.label('L_wait_io')
a('s_waitcnt vmcnt(%d)' % 6 if False else '')
a('s_cbranch_scc0 L_wait_done')
a('s_waitcnt vmcnt(2)')
a.label('L_wait_done')
stamp(1)
a('v_lshlrev_b32 v20, 16, v2')
a('v_and_b32 v21, s52, v2')
a('v_readfirstlane_b32 s44, v20')
for k in range(1, 4):
    a('v_lshlrev_b32 v%d, 16, v%d' % (20 + 2 * k, 2 + k))
    a('v_and_b32 v%d, s52, v%d' % (21 + 2 * k, 2 + k))
for k in range(4):
    a('v_pk_add_f32 %s, %s, s[44:45] op_sel_hi:[1,0] neg_lo:[0,1] neg_hi:[0,1]' % (P(28 + 2 * k), P(20 + 2 * k)))
    a('v_dot2_f32_bf16 v44, v%d, v%d, v44' % (2 + k, 6 + k))
    a('v_dot2_f32_bf16 v45, v46, v%d, v45' % (6 + k))
a('v_pk_add_f32 v[36:37], v[28:29], v[30:31]')
a('v_pk_mul_f32 v[40:41], v[28:29], v[28:29]')
a('v_pk_add_f32 v[38:39], v[32:33], v[34:35]')
a('v_pk_fma_f32 v[40:41], v[30:31], v[30:31], v[40:41]')
a('v_pk_add_f32 v[36:37], v[36:37], v[38:39]')
a('v_pk_fma_f32 v[40:41], v[32:33], v[32:33], v[40:41]')
a('v_add_f32 v36, v36, v37')
a('v_pk_fma_f32 v[40:41], v[34:35], v[34:35], v[40:41]')
a('v_add_f32 v40, v40, v41')
reduce64('v_add_f32', ['v44', 'v45', 'v36', 'v40'])
a('v_mul_f32 v36, v36, v47')
a('v_mul_f32 v40, v40, v47')
a('v_fma_f32 v40, -v36, v36, v40')
a('v_add_f32 v36, s44, v36')
a('v_max_f32 v40, 0, v40')
a('v_cvt_pk_bf16_f32 v41, v36, v40')
a('v_and_b32 v40, s52, v41')
a('v_lshlrev_b32 v36, 16, v41')
a('v_add_f32 v40, %s, v40' % f32(1e-5))
a('v_fma_f32 v44, -v36, v45, v44')
a('v_cvt_pk_bf16_f32 v40, v40, v40')
a('v_and_b32 v40, s52, v40')
a('v_sqrt_f32 v40, v40')
a('v_cvt_pk_bf16_f32 v40, v40, v40')
a('v_and_b32 v40, s52, v40')
a('v_rcp_f32 v38, v40')
a('v_bfi_b32 v42, s52, v40, v41')
a('v_mul_f32 v36, v44, v38')
a('v_cvt_pk_bf16_f32 v36, v36, v36')
a('v_ashrrev_i32 v37, 31, v36')
a('v_or_b32 v37, 0x80000000, v37')
a('v_xor_b32 v36, v36, v37')
a('v_bfi_b32 v43, s52, v36, v43')
a('s_mov_b32 exec_lo, 0')
a('s_mov_b32 exec_hi, 0x80000000')
a('ds_write_b32 v48, v42')
a('ds_max_u64 v160, v[42:43] offset:%d' % (BEST - STATUS))
a('ds_add_u32 v160, v49 offset:%d' % (LNW - STATUS))
a('s_mov_b64 exec, -1')
a('s_setprio 0')
stamp(2)
a('s_waitcnt vmcnt(0)')
stamp(9)
a('v_mul_f32 v10, v16, v10')
a('v_mul_f32 v11, v16, v11')
a('v_mul_f32 v10, %s, v10' % f32(LOG2E))
a('v_mul_f32 v11, %s, v11' % f32(1.0 / (2 * math.pi)))
a('s_cmp_ge_u32 s4, 4')
a('s_cbranch_scc1 L_io')


def kt_write(row, pair, tmp, neg):
    a('v_cvt_pk_bf16_f32 v%d, v%d, %sv%d' % (tmp, pair, '-' if neg else '', pair + 1))
    a('ds_write_b32 v62, v%d offset:%d' % (tmp, row * KTS))


W1, W2, W4, W8, G, C0 = 20, 22, 24, 26, 28, 30
cexp_multi([(W1, 1.0, 40), (G, 256.0, 42), (W8, 8.0, 44)], 10, 11)
a('v_pk_mul_f32 v[12:13], v[12:13], v[16:17] op_sel_hi:[1,0]')
cmul_multi([(C0, 14, 12, 40), (W2, W1, W1, 42)])
E0, O0, H = 32, 34, 36
T = [40, 42, 44, 46, 48]
cmul_multi([(O0, C0, W1, T[0]), (H, C0, G, T[1]), (W4, W2, W2, T[2])])
kt_write(0, C0, 50, True)
kt_write(1, O0, 51, True)
kt_write(13, H, 52, True)
Z1 = 38
Hs = {1: H}
Hn = [54, 56, 58, 60, 52 + 12, 66]
cur_e, cur_o, cur_b = C0, O0, H
step_regs = [(E0, O0, Z1)]
hprev = H
for n in range(5):
    jobs = [(E0, cur_e, W2, T[0]), (Z1, cur_b, W2, T[2]), (Hn[n], hprev, G, T[3])]
    if n < 4:
        jobs.insert(1, (O0, cur_o, W2, T[1]))
    cmul_multi(jobs)
    cur_e, cur_b, hprev = E0, Z1, Hn[n]
    kt_write(2 * n + 2, E0, 50, True)
    if n < 4:
        kt_write(2 * n + 3, O0, 51, True)
    kt_write(14 + n, Z1, 52, True)
    kt_write({0: 21, 1: 26, 2: 11, 3: 19, 4: 24}[n], Hn[n], 53, True)
H2, H3, H4, H5, H6, H7 = Hn
cmul_multi([(H7, H6, G, T[0]), (E0, H2, W4, T[1]), (O0, H3, W4, T[2]), (H2, H2, W8, T[3]), (H3, H3, W8, T[4])])
kt_write(29, H7, 50, True)
kt_write(22, E0, 51, True)
kt_write(27, O0, 52, True)
kt_write(23, H2, 53, True)
kt_write(28, H3, 50, True)
cmul_multi([(H4, H4, W8, T[0]), (H5, H5, W8, T[1]), (H6, H6, W8, T[2]), (H7, H7, W8, T[3])])
kt_write(12, H4, 50, True)
kt_write(20, H5, 51, True)
kt_write(25, H6, 52, True)
kt_write(30, H7, 53, True)
a('s_lshl_b32 s51, %d, s4' % (1 << B_KT))
set_status('s51', 'v160', 'v50')
stamp(3)
tabA0 = [min(r, 12) for r in range(16)]
tabA1 = [0, 0, 1, 2, 2, 2, 3, 4, 4, 4, 5, 6, 7, 7, 7, 7]
tabB = [min(r, 4) for r in range(16)]


def nib64(t):
    v = sum(x << (4 * i) for i, x in enumerate(t))
    return v & 0xffffffff, v >> 32


a('s_cmp_eq_u32 s50, 0')
for (sreg, ta, tb) in ((54, tabA0, tabB), (56, tabA1, tabB)):
    la, ha = nib64(ta)
    lb, hb = nib64(tb)
    a('s_mov_b32 s%d, 0x%x' % (sreg, lb))
    a('s_mov_b32 s%d, 0x%x' % (sreg + 1, hb))
    a('s_cmov_b32 s%d, 0x%x' % (sreg, la))
    a('s_cmov_b32 s%d, 0x%x' % (sreg + 1, ha))
a('s_cselect_b32 s58, 0, 21')
a('s_cselect_b32 s59, 13, 26')
a('v_and_b32 v20, 31, v1')
a('v_and_b32 v21, 4, v20')
a('v_cmp_ne_u32 vcc, 0, v21')
a('v_and_b32 v21, 3, v20')
a('v_lshrrev_b32 v22, 3, v20')
a('v_lshl_add_u32 v21, v22, 2, v21')
a('v_lshlrev_b32 v21, 2, v21')
a('v_mov_b32 v22, s54')
a('v_mov_b32 v23, s55')
a('v_mov_b32 v24, s56')
a('v_mov_b32 v25, s57')
a('v_mov_b32 v26, s58')
a('v_mov_b32 v27, s59')
a('v_cndmask_b32 v22, v22, v24, vcc')
a('v_cndmask_b32 v23, v23, v25, vcc')
a('v_cndmask_b32 v26, v26, v27, vcc')
a('v_lshrrev_b64 v[22:23], v21, v[22:23]')
a('v_and_b32 v22, 15, v22')
a('v_add_u32 v22, v22, v26')
a('s_mul_i32 s7, s43, %d' % KT[1])
a('v_lshrrev_b32 v23, 5, v1')
a('v_lshl_add_u32 v23, v23, 4, s7')
a('s_movk_i32 s51, %d' % KTS)
a('v_mad_u32_u24 v30, v22, s51, v23')
a('v_mad_u32_u24 v31, v20, s51, v23')
a('v_and_b32 v20, 15, v1')
a('v_lshrrev_b32 v21, 4, v1')
a('v_add_u32 v22, 1, v20')
a('v_and_b32 v23, 3, v22')
a('v_lshrrev_b32 v22, 2, v22')
a('s_mul_i32 s7, s43, %d' % (KC[1] - KC[0]))
a('s_add_u32 s7, s7, %d' % KC[0])
a('s_movk_i32 s51, %d' % KCS)
a('v_mov_b32 v35, s7')
a('v_mad_u32_u24 v35, v23, s51, v35')
a('v_lshl_add_u32 v35, v22, 3, v35')
a('v_lshl_add_u32 v35, v21, 4, v35')
a('s_mul_i32 s51, s43, %d' % (UB[1] - UB[0]))
a('s_add_u32 s51, s51, %d' % (UB[0] + 16 * 33 - 448))
a('v_lshlrev_b32 v22, 1, v20')
a('v_sub_u32 v22, v22, v21')
a('v_lshl_add_u32 v36, v22, 4, s51')
a('s_mul_i32 s51, s43, %d' % (YB[1] - YB[0]))
a('s_add_u32 s51, s51, %d' % YB[0])
a('v_lshl_add_u32 v37, v20, 5, s51')
a('v_lshl_add_u32 v37, v21, 3, v37')
a('s_lshl_b32 s51, s50, 10')
a('s_add_u32 s7, s7, s51')
a('s_add_u32 s7, s7, 32')
a('v_lshl_add_u32 v38, v1, 4, s7')
for k in range(4):
    a('v_mov_b32 v%d, 0' % (24 + k))
a('v_min_u32 v22, 7, v1')
a('v_lshrrev_b32 v23, 1, v22')
a('v_and_b32 v22, 1, v22')
a('v_mul_u32_u24 v23, %d, v23' % KCS)
a('v_lshl_add_u32 v22, v22, 4, v23')
a('s_mul_i32 s7, s43, %d' % (KC[1] - KC[0]))
a('s_add_u32 s7, s7, %d' % KC[0])
a('v_add_u32 v22, s7, v22')
a('s_cmp_eq_u32 s50, 0')
a('s_cbranch_scc0 L_no_head')
a('ds_write_b128 v22, v[24:27]')
a.label('L_no_head')
wait_status('%d' % (0xff << B_KT), 'v160', 'v20')
stamp(4)
KA = [80, 84, 88, 92]
KB = [96, 100, 104, 108]
for s in range(4):
    a('ds_read_b128 %s, v30 offset:%d' % (Q(KA[s]), 32 * s))
    a('ds_read_b128 %s, v31 offset:%d' % (Q(KB[s]), 32 * KTS + 32 * s))
for s in range(16):
    a('s_waitcnt lgkmcnt(%d)' % min(6, 2 * (15 - s)))
    a('v_mfma_f32_32x32x16_bf16 v[64:79], %s, %s, %s' % (Q(KA[s % 4]), Q(KB[s % 4]), '0' if s == 0 else 'v[64:79]'))
    if s + 4 < 16:
        a('ds_read_b128 %s, v30 offset:%d' % (Q(KA[s % 4]), 32 * (s + 4)))
        a('ds_read_b128 %s, v31 offset:%d' % (Q(KB[s % 4]), 32 * KTS + 32 * (s + 4)))
a('s_mov_b32 s54, 0x80000000')
a('s_mov_b32 s55, 0x80000000')
a('s_mov_b32 s56, 0')
a('s_mov_b32 s57, 0x80000000')
a('s_mov_b32 s58, 0xaaaaaaaa')
a('s_mov_b32 s59, 0xaaaaaaaa')
a('s_cmp_eq_u32 s50, 0')
a('s_cbranch_scc0 L_kwin_b')


def write_window(seq, off):
    for s in range(4):
        base = 80 + 4 * s
        for k in range(4):
            a('v_cvt_pk_bf16_f32 v%d, v%d, v%d' % (base + k, seq[s + 2 * k], seq[s + 2 * k + 1]))
        a('ds_write_b128 v38, %s offset:%d' % (Q(base), off + s * KCS))


def seg3_window(y0, y1, z, off):
    a('v_cndmask_b32 v%d, v%d, v%d, s[58:59]' % (z, y0, y1))
    write_window([y0, y0, y0, y0, z] + [y1] * 6, off)


a('v_cndmask_b32 v73, v73, v72, s[54:55]')
a('v_cndmask_b32 v74, v74, v72, s[56:57]')
write_window(list(range(64, 75)), 0)
seg3_window(75, 76, 77, 4 * 512)
a('v_cvt_pk_bf16_f32 v96, 0, v64')
a('v_cvt_pk_bf16_f32 v97, v65, v66')
a('v_cvt_pk_bf16_f32 v98, v64, v65')
a('v_subrev_u32 v99, 16, v38')
a('s_mov_b64 exec, 1')
a('ds_write_b32 v99, v96 offset:%d' % (1 * KCS + 12))
a('ds_write_b32 v99, v98 offset:%d' % (2 * KCS + 12))
a('ds_write_b64 v99, v[96:97] offset:%d' % (3 * KCS + 8))
a('s_mov_b64 exec, -1')
a('s_branch L_kwin_done')
a.label('L_kwin_b')
write_window([64, 64, 64, 65, 65, 65, 66, 66, 66, 66, 66], 0)
seg3_window(67, 68, 77, 4 * 512)
a.label('L_kwin_done')
a('s_lshl_b32 s51, %d, s4' % (1 << B_KC))
set_status('s51', 'v160', 'v20')
stamp(5)
import math as _m
FBASE = 448


def conv_role(tiles):
    acc = {t: 40 + 4 * n for n, t in enumerate(tiles)}
    top = max(tiles)
    loads = []
    mf = []
    for e0 in range(8):
        for g in range(top, -1, -1):
            loads.append(('A', e0, g))
            loads.append(('B', e0, top - g))
            for t in sorted(tiles, reverse=True):
                if 0 <= t - g:
                    mf.append((t, ('A', e0, g), ('B', e0, t - g)))
    last = {}
    for n, (t, ka, kb) in enumerate(mf):
        last[ka] = n
        last[kb] = n
    free = [64 + 4 * n for n in range(16)]
    slot = {}
    issued = []
    done_upto = [0]
    nxt = [0]
    ninstr = lambda k: 2 if k[0] == 'A' else 1
    total = sum(ninstr(k) for k in loads)
    R = total / float(len(mf))
    LEAD = opt('lead', 15)

    def issue_one():
        k = loads[nxt[0]]
        if not free:
            return False
        r = free.pop(0)
        slot[k] = r
        if k[0] == 'A':
            off = 64 * k[1] + 512 * k[2]
            a('ds_read_b64 %s, v35 offset:%d' % (P(r), off))
            a('ds_read_b64 %s, v35 offset:%d' % (P(r + 2), off + 8))
            issued.extend([k, k])
        else:
            a('ds_read_b128 %s, v36 offset:%d' % (Q(r), FBASE + 512 * k[2] - 64 * k[1]))
            issued.append(k)
        nxt[0] += 1
        return True

    def issue_until(target):
        while nxt[0] < len(loads) and len(issued) + ninstr(loads[nxt[0]]) <= target and \
                len(issued) + ninstr(loads[nxt[0]]) - done_upto[0] <= 15:
            if not issue_one():
                break

    issue_until(LEAD)
    seen = set()
    for n, (t, ka, kb) in enumerate(mf):
        need = 0
        for k in (ka, kb):
            while k not in slot:
                assert issue_one()
            need = max(need, max(i for i, x in enumerate(issued) if x == k) + 1)
        if need > done_upto[0]:
            a('s_waitcnt lgkmcnt(%d)' % (len(issued) - need))
            done_upto[0] = need
        a('v_mfma_f32_16x16x32_bf16 %s, %s, %s, %s' % (Q(acc[t]), Q(slot[ka]), Q(slot[kb]), Q(acc[t]) if t in seen else '0'))
        seen.add(t)
        for k in (ka, kb):
            if last[k] == n:
                free.append(slot[k])
        issue_until(int(_m.ceil((n + 1) * R)) + LEAD)
    for n, t in enumerate(sorted(tiles)):
        a('v_cvt_pk_bf16_f32 v%d, v%d, v%d' % (20 + 2 * n, acc[t], acc[t] + 1))
        a('v_cvt_pk_bf16_f32 v%d, v%d, v%d' % (21 + 2 * n, acc[t] + 2, acc[t] + 3))
        a('ds_write_b64 v37, %s offset:%d' % (P(20 + 2 * n), 512 * t))
    bits = sum(1 << (2 * q) for q in set(t // 2 for t in tiles)) << B_Y
    a('s_lshl_b32 s51, %d, s43' % bits)
    set_status('s51', 'v160', 'v28')
    stamp(7)
    finish()


a('s_setprio 1')
a('s_lshl_b32 s51, %d, s43' % (0x5 << B_KC))
a('s_or_b32 s51, s51, %d' % (15 << B_U))
wait_status('s51', 'v160', 'v20')
stamp(6)
a('s_cmp_eq_u32 s50, 0')
a('s_cbranch_scc0 L_conv_y')
conv_role([7, 6, 1, 0])
a.label('L_conv_y')
conv_role([5, 4, 3, 2])

a.label('L_io')
W8 = 20
CH = [22, 24, 26, 28]
T = [40, 42, 44, 46]
cexp_multi([(W8, 8.0, 40), (CH[1], 64.0, 42), (CH[2], 128.0, 44), (CH[3], 192.0, 46)], 10, 11)
a('v_mov_b32 v50, 0x00003f80')
a('ds_write_b32 v62, v50 offset:%d' % (32 * KTS))
kt_write(33, W8, 51, False)
for q in range(1, 4):
    kt_write(32 + 8 * q, CH[q], 51 + q, False)
POLLAT = opt('pollat', 8)


def io_poll_loads():
    a('global_load_dwordx4 v[112:115], v138, s[40:41] sc1')
    a('global_load_dwordx4 v[116:119], v138, s[40:41] offset:128 sc1')
    a('global_load_dwordx4 v[120:123], v138, s[40:41] offset:256 sc1')
    a('global_load_dwordx4 v[124:127], v137, s[40:41] sc1')
    a('global_load_dwordx4 v[128:131], v137, s[40:41] offset:16 sc1')
    a('global_load_dwordx4 v[132:135], v137, s[40:41] offset:32 sc1')


def io_first_poll():
    stamp(4)
    io_poll_loads()
    a('s_mov_b64 exec, 1')
    a('v_mov_b32 v56, 256')
    a('ds_add_u32 v160, v56 offset:%d' % (LNW - STATUS))
    a('s_mov_b64 exec, -1')


for n in range(1, 8):
    jobs = []
    if n >= 2:
        jobs.append((CH[0], W8 if n == 2 else CH[0], W8, T[0]))
    for q in range(1, 4):
        jobs.append((CH[q], CH[q], W8, T[q]))
    cmul_multi(jobs)
    for q in range(4):
        if q == 0 and n < 2:
            continue
        kt_write(32 + 8 * q + n, CH[q], 50 + q, False)
    if n == POLLAT:
        io_first_poll()
a('s_lshl_b32 s51, %d, s4' % (1 << B_KT))
set_status('s51', 'v160', 'v50')
stamp(3)
a('s_sub_u32 s53, s4, 4')
for k in range(4):
    a('v_mov_b32 v%d, 0' % (64 + k))
a('v_and_b32 v68, 31, v1')
a('v_lshrrev_b32 v69, 5, v1')
a('v_mul_u32_u24 v69, %d, v69' % (UB[1] - UB[0]))
a('v_lshl_add_u32 v68, v68, 4, v69')
a('v_add_u32 v68, %d, v68' % UB[0])
a('ds_write_b128 v68, v[64:67]')
a('s_lshl_b32 s54, s49, 16')
a('s_and_b32 s55, s49, s52')
a('s_lshl_b32 s58, %d, s53' % (1 << B_U))
a('v_mov_b32 v7, s58')
a('s_setprio 2')
if POLLAT > 7:
    if opt('sleepS', 0):
        a('s_sleep %d' % opt('sleepS', 0))
    io_first_poll()
a('s_mov_b32 s59, 0')
a.label('L_io_poll_loop')
a('s_add_u32 s59, s59, 1')
a('s_waitcnt vmcnt(3)')
a('v_cmp_ne_u32 vcc, s5, v115')
a('v_cmp_ne_u32 s[60:61], s5, v119')
a('v_cmp_ne_u32 s[62:63], s5, v123')
XR = [112, 113, 114, 116, 117, 118, 120, 121]
for i in range(8):
    a('v_lshlrev_b32 v%d, 16, v%d' % (40 + 2 * i, XR[i]))
    a('v_and_b32 v%d, s52, v%d' % (41 + 2 * i, XR[i]))
a('s_or_b64 vcc, vcc, s[60:61]')
a('s_or_b64 vcc, vcc, s[62:63]')
a('s_waitcnt vmcnt(0)')
a('v_cmp_ne_u32 s[60:61], s5, v127')
a('v_cmp_ne_u32 s[62:63], s5, v131')
a('s_or_b64 vcc, vcc, s[60:61]')
a('v_cmp_ne_u32 s[60:61], s5, v135')
a('s_or_b64 vcc, vcc, s[62:63]')
a('s_or_b64 vcc, vcc, s[60:61]')
if DEBUG:
    l = L('fs')
    a('s_cmp_eq_u32 s59, 1')
    a('s_cbranch_scc0 %s' % l)
    stamp(10)
    a.label(l)
a('s_and_b64 exec, exec, vcc')
a('s_cbranch_execz L_io_poll_done')
a('s_sleep 2')
io_poll_loads()
a('s_cmp_lt_u32 s59, %d' % POLL_MAX)
a('s_cbranch_scc1 L_io_poll_loop')
a('s_waitcnt vmcnt(0)')
a.label('L_io_poll_done')
if DEBUG:
    a('s_mov_b32 s96, s59')
a('s_mov_b64 exec, -1')
stamp(5)
MS = [124, 125, 126, 128, 129, 130, 132, 133]
for i in range(8):
    a('v_and_b32 v%d, s52, v%d' % (144 + 2 * i, MS[i]))
    a('v_lshlrev_b32 v%d, 16, v%d' % (80 + 2 * i, MS[i]))
for i in range(8):
    a('v_rcp_f32 v%d, v%d' % (144 + 2 * i, 144 + 2 * i))
    a('v_pk_add_f32 %s, %s, %s op_sel_hi:[1,0] neg_lo:[0,1] neg_hi:[0,1]' % (P(96 + 2 * i), P(40 + 2 * i), P(80 + 2 * i)))
if opt('round1', 0):
    for i in range(8):
        a('v_cvt_pk_bf16_f32 v%d, v%d, v%d' % (56 + i, 96 + 2 * i, 97 + 2 * i))
    for i in range(8):
        a('v_lshlrev_b32 v%d, 16, v%d' % (96 + 2 * i, 56 + i))
        a('v_and_b32 v%d, s52, v%d' % (97 + 2 * i, 56 + i))
for i in range(8):
    a('v_pk_mul_f32 %s, %s, %s op_sel_hi:[1,0]' % (P(96 + 2 * i), P(96 + 2 * i), P(144 + 2 * i)))
for c in range(2):
    for u in range(4):
        a('v_cvt_pk_bf16_f32 v%d, v%d, v%d' % (64 + 4 * c + u, 96 + 2 * (7 - 2 * u) + c, 96 + 2 * (6 - 2 * u) + c))
    a('ds_write_b128 v139, %s offset:%d' % (Q(64 + 4 * c), c * (UB[1] - UB[0])))
a('s_mov_b64 exec, 1')
a('ds_or_b32 v160, v7')
a('s_mov_b64 exec, -1')
stamp(6)
for i in range(8):
    for c in range(2):
        src = 64 + 4 * c + (7 - i) // 2
        if i % 2 == 1:
            a('v_lshlrev_b32 v%d, 16, v%d' % (80 + 2 * i + c, src))
        else:
            a('v_and_b32 v%d, s52, v%d' % (80 + 2 * i + c, src))
for i in range(8):
    a('v_pk_mul_f32 %s, %s, s[54:55]' % (P(96 + 2 * i), P(80 + 2 * i)))
    a('v_pk_add_f32 %s, %s, %s' % (P(40 + 2 * i), P(40 + 2 * i), P(80 + 2 * i)))
for i in range(8):
    a('v_cvt_pk_bf16_f32 v%d, v%d, v%d' % (20 + i, 96 + 2 * i, 97 + 2 * i))
for i in range(8):
    a('v_lshlrev_b32 v%d, 16, v%d' % (96 + 2 * i, 20 + i))
    a('v_and_b32 v%d, s52, v%d' % (97 + 2 * i, 20 + i))
for i in range(8):
    a('v_pk_add_f32 %s, %s, %s' % (P(40 + 2 * i), P(40 + 2 * i), P(96 + 2 * i)))
a('s_not_b32 s7, s5')
for j in range(3):
    a('v_mov_b32 v%d, s7' % (23 + 4 * j))
a('s_lshl_b32 s7, s53, 1')
a('s_lshl_b32 s51, %d, s7' % (3 << B_Y))
a('s_setprio 0')
wait_status('s51', 'v160', 'v7', sleep=opt('sleepY', 0))
a('s_setprio 2')
stamp(7)
a('ds_read_b128 v[64:67], v139 offset:%d' % (YB[0] - UB[0] - 512))
a('ds_read_b128 v[68:71], v139 offset:%d' % (YB[1] - UB[0] - 512))
a('s_waitcnt lgkmcnt(0)')
for j in range(3):
    toks = [i for i in range(3 * j, min(3 * j + 3, 8))]
    for i in toks:
        for c in range(2):
            src = 64 + 4 * c + i // 2
            if i % 2 == 0:
                a('v_lshlrev_b32 v%d, 16, v%d' % (80 + 2 * i + c, src))
            else:
                a('v_and_b32 v%d, s52, v%d' % (80 + 2 * i + c, src))
    for i in toks:
        a('v_pk_add_f32 %s, %s, %s' % (P(80 + 2 * i), P(80 + 2 * i), P(40 + 2 * i)))
    for i in toks:
        a('v_cvt_pk_bf16_f32 v%d, v%d, v%d' % (20 + i + i // 3, 80 + 2 * i, 81 + 2 * i))
    a('global_store_dwordx4 v138, %s, s[40:41] offset:%d sc1' % (Q(20 + 4 * j), 128 * j))
stamp(8)
a('s_setprio 0')
wait_status('%d' % (1 << B_IDX), 'v160', 'v7')
a('ds_read_b32 v7, v160 offset:%d' % (IDXW - STATUS))
a('s_waitcnt lgkmcnt(0)')
a('v_readfirstlane_b32 s60, v7')
a('s_lshr_b32 s7, s60, 9')
a('s_cmp_eq_u32 s7, s53')
a('s_cbranch_scc0 L_io_end')
a('s_lshr_b32 s61, s60, 3')
a('s_and_b32 s60, s60, 7')
a('s_lshl_b64 exec, 1, s61')
a('v_mov_b32 v7, %d' % (1 << B_T1))
for i in range(8):
    l = L('t1')
    a('s_cmp_eq_u32 s60, %d' % i)
    a('s_cbranch_scc0 %s' % l)
    a('ds_write_b64 v160, %s offset:%d' % (P(80 + 2 * i), T1X - STATUS))
    a.label(l)
a('ds_or_b32 v160, v7')
a('s_mov_b64 exec, -1')
a.label('L_io_end')
finish()


def have_epoch():
    a('s_waitcnt lgkmcnt(0)')
    a('s_mul_i32 s5, s6, 0x9E3779B1')
    a('s_add_u32 s5, s5, 0x7F4A7C15')
    a('s_mov_b64 exec, 1')
    a('v_mov_b32 v13, 16')
    a('ds_add_u32 v160, v13 offset:%d' % (LNW - STATUS))
    a('s_mov_b64 exec, -1')


a.label('L_tr')
a('s_mov_b32 s88, 0x400000')
GR = lambda rho, i: 16 + 12 * rho + i + i // 3
a('s_mul_i32 s7, s51, %d' % (32 * 12288))
a('s_mul_i32 s53, s50, 384')
a('s_add_u32 s7, s7, s53')
a('s_add_u32 s7, s7, %d' % WS_XT)
a('s_mov_b32 s53, %d' % (4 * 12288))
a('v_lshl_add_u32 v8, v6, 4, s7')
a('v_mad_u32_u24 v8, v7, s53, v8')
for rho in range(1, 4):
    a('v_add_u32 v%d, %d, v8' % (8 + rho, rho * 12288))
have_epoch()
for rho in range(4):
    for j in range(3):
        a('v_mov_b32 v%d, s5' % (16 + 12 * rho + 4 * j + 3))
stamp(1)
a('s_setprio 3')
for j in range(3):
    toks = [i for i in range(3 * j, min(3 * j + 3, 8))]
    if j == 0:
        a('s_waitcnt vmcnt(0)')
        stamp(2)
        if opt('wtrig', 0):
            a('s_mov_b64 exec, 1')
            a('v_mov_b32 v13, 0x10000')
            a('ds_add_u32 v160, v13 offset:%d' % (LNW - STATUS))
            a('s_mov_b64 exec, -1')
    for rho in range(4):
        for i in toks:
            a('v_mov_b32 v%d, v%d' % (GR(rho, i), RW(i) + rho))
        a('global_store_dwordx4 v%d, %s, s[40:41] offset:%d sc1' % (8 + rho, Q(16 + 12 * rho + 4 * j), 128 * j))
stamp(3)
if opt('pull', 0):
    for rho in range(4):
        for j in range(3):
            a('global_load_dword v%d, v%d, s[40:41] offset:%d sc1' % (96 + 3 * rho + j, 8 + rho, 128 * j))
if True:
    a('s_mov_b64 exec, 1')
    a('v_mov_b32 v13, 64')
    a('ds_add_u32 v160, v13 offset:%d' % (LNW - STATUS))
    a('s_mov_b64 exec, -1')
a('s_setprio 0')
a('s_not_b32 s5, s5')
a('s_lshr_b32 s7, s50, 3')
a('s_lshl_b32 s7, s7, 1')
a('s_lshl_b32 s53, %d, s7' % (3 << B_Y))
a('s_or_b32 s53, s53, %d' % (1 << B_IDX))
wait_status('s53', 'v160', 'v13', sleep=2)
a('ds_read_b32 v13, v160 offset:%d' % (IDXW - STATUS))
a('s_waitcnt lgkmcnt(0)')
a('v_readfirstlane_b32 s60, v13')
a('s_lshr_b32 s7, s60, 6')
a('s_bfe_u32 s61, s60, 0x30003')
a('s_and_b32 s60, s60, 7')
a('s_cmp_eq_u32 s7, s50')
a('s_cselect_b32 s60, s60, 8')
a('s_mov_b32 s62, 0x01010101')
a('s_mov_b32 s63, 0x01010101')
a('s_lshl_b64 s[62:63], s[62:63], s61')
a('s_not_b64 s[62:63], s[62:63]')
a('s_setprio 3')
stamp(4)
a('s_sleep %d' % opt('sleepO', 21))
a('s_mov_b32 s59, 0')
a.label('L_ot_loop')
for rho in range(4):
    for j in range(3):
        a('global_load_dwordx4 %s, v%d, s[40:41] offset:%d sc1' % (Q(16 + 12 * rho + 4 * j), 8 + rho, 128 * j))
a('s_add_u32 s59, s59, 1')
a('s_waitcnt vmcnt(0)')
a('v_cmp_ne_u32 vcc, s5, v19')
for n in range(1, 12):
    a('v_cmp_ne_u32 s[56:57], s5, v%d' % (19 + 4 * n))
    a('s_or_b64 vcc, vcc, s[56:57]')
a('s_and_b64 exec, exec, vcc')
a('s_cbranch_execz L_ot_done')
a('s_sleep 2')
a('s_cmp_lt_u32 s59, %d' % POLL_MAX)
a('s_cbranch_scc1 L_ot_loop')
a.label('L_ot_done')
if DEBUG:
    a('s_mov_b32 s96, s59')
a('s_mov_b64 exec, -1')
stamp(5)
for i in range(8):
    for rho in range(4):
        a('v_mov_b32 v%d, v%d' % (RW(i) + rho, GR(rho, i)))
    a('s_cmp_eq_u32 s60, %d' % i)
    a('s_cselect_b64 exec, s[62:63], -1')
    a('global_store_dwordx4 %s, %s, s[36:37] offset:%d%s' % ('v4' if i < 4 else 'v5', Q(RW(i)), 1024 * (i % 4), ['', ' sc1', ' nt', ' sc0 sc1'][opt('ostore', 0)]))
    a('s_mov_b64 exec, -1')
finish()

a.label('L_moe')
a('s_setprio 3')
a('s_mov_b32 s88, 0x400000')
a('s_mov_b32 s52, 0xffff0000')
a('s_lshr_b32 s50, s3, 3')
a('s_and_b32 s51, s3, 7')
a('v_and_b32 v4, 15, v1')
a('v_lshrrev_b32 v5, 4, v1')
a('s_mul_i32 s7, s51, %d' % (64 * 3584))
a('s_lshl_b32 s53, s50, 7')
a('s_add_u32 s7, s7, s53')
a('v_lshl_add_u32 v6, v4, 3, s7')
a('s_movk_i32 s53, %d' % (8 * 3584))
a('v_mad_u32_u24 v6, v5, s53, v6')
a('s_lshl_b32 s7, s50, 16')
a('s_lshl_b32 s53, s51, 7')
a('s_add_u32 s7, s7, s53')
a('v_lshl_add_u32 v7, v4, 3, s7')
a('v_lshl_add_u32 v7, v5, 13, v7')
if opt('stouch', 0):
    for n, p in enumerate((10, 12, 14, 16, 18, 20, 30, 32, 34, 36)):
        a('s_load_dword s%d, s[%d:%d], 0' % (89 + n % 5, p, p + 1))
    a('s_load_dword s89, s[40:41], 0x3f0000' if False else '')
for base, ptr, size in ((44, 30, 512 * 3584), (56, 32, 512 * 3584), (60, 34, 1792 * 1024)):
    a('s_mov_b32 s%d, s%d' % (base, ptr))
    a('s_mov_b32 s%d, s%d' % (base + 1, ptr + 1))
    a('s_mov_b32 s%d, %d' % (base + 2, size))
    a('s_mov_b32 s%d, 0x00020000' % (base + 3))
a('v_lshlrev_b32 v8, 4, v1')
a('v_add_u32 v8, %d, v8' % WS_KEYS)
RAW = {'g0': 16, 'u0': 32, 'g1': 48, 'u1': 64, 'd0': 80, 'd1': 96}
TRN = {'g0': 112, 'u0': 16, 'g1': 32, 'u1': 48, 'd0': 16, 'd1': 32}


def gate_up_loads(h):
    for m in range(8):
        a('s_mov_b32 s53, %d' % ((32 * h + m) * 3584))
        a('buffer_load_dwordx2 %s, v6, s[44:47], s53 offen%s' % (P(RAW['g%d' % h] + 2 * m), NTW))
        a('buffer_load_dwordx2 %s, v6, s[56:59], s53 offen%s' % (P(RAW['u%d' % h] + 2 * m), NTW))


def down_loads():
    for h in range(2):
        for m in range(8):
            if m % 4 == 0:
                a('s_mov_b32 s53, %d' % ((32 * h + m) * 1024))
            a('buffer_load_dwordx2 %s, v7, s[60:63], s53 offen offset:%d%s' % (P(RAW['d%d' % h] + 2 * m), 1024 * (m % 4), NTW))


def transpose_block(b):
    for u in range(4):
        for dw in range(2):
            hi, lo = RAW[b] + 2 * (2 * u + 1) + dw, RAW[b] + 2 * (2 * u) + dw
            a('v_perm_b32 v%d, v%d, v%d, s92' % (TRN[b] + 4 * (2 * dw) + u, hi, lo))
            a('v_perm_b32 v%d, v%d, v%d, s93' % (TRN[b] + 4 * (2 * dw + 1) + u, hi, lo))


def wait_lnw(val, mask=None):
    l = L('lnw')
    a.label(l)
    a('s_sleep 1')
    a('ds_read_b32 v13, v160 offset:%d' % (LNW - STATUS))
    a('s_sub_u32 s88, s88, 1')
    a('s_cbranch_scc1 L_exit')
    a('s_waitcnt lgkmcnt(0)')
    a('v_readfirstlane_b32 s7, v13')
    a('s_and_b32 s7, s7, %d' % (mask if mask else 255 if val < 256 else 0xffff))
    a('s_cmp_ge_u32 s7, %d' % val)
    a('s_cbranch_scc0 %s' % l)


def key_loads():
    for k in range(4):
        a('global_load_dwordx4 %s, v8, s[40:41] offset:%d sc1' % (Q(128 + 4 * k), 1024 * k))


if opt('sleepW', 0):
    a('s_sleep %d' % opt('sleepW', 0))
if opt('touch', 0):
    a('s_lshl_b32 s7, s3, 13')
    a('v_mov_b32 v9, s7')
    a('global_load_dword v2, v9, s[36:37]')
a('s_lshr_b32 s7, s2, 3')
a('s_lshl_b32 s7, s7, 9')
a('s_add_u32 s7, s7, %d' % WS_STATS)
a('v_and_b32 v9, 3, v1')
a('v_lshl_add_u32 v9, v9, 7, s7')
if opt('touchS', 0):
    a('global_load_dword v2, v9, s[40:41] sc1')
if opt('touch', 0):
    a('v_mov_b32 v9, 0x3f0000')
    a('global_load_dword v2, v9, s[40:41]')
if opt('touchH', 0):
    a('s_lshl_b32 s7, s3, 10')
    a('s_add_u32 s7, s7, %d' % WS_HOPA)
    a('v_and_b32 v9, 7, v1')
    a('v_lshl_add_u32 v9, v9, 7, s7')
    a('s_lshl_b32 s7, s3, 9')
    a('s_add_u32 s7, s7, %d' % WS_HOPB)
    a('v_and_b32 v10, 3, v1')
    a('v_lshl_add_u32 v10, v10, 7, s7')
    a('v_cmp_gt_u32 vcc, 8, v1')
    a('v_cndmask_b32 v9, v10, v9, vcc')
    a('global_load_dword v2, v9, s[40:41] sc1')
have_epoch()
a('s_mov_b32 s92, 0x05040100')
a('s_mov_b32 s93, 0x07060302')
a('s_lshl_b32 s7, s3, 10')
a('s_add_u32 s7, s7, %d' % WS_HOPA)
a('v_lshl_add_u32 v161, v1, 4, s7')
a('s_lshl_b32 s7, s50, 13')
a('s_add_u32 s7, s7, %d' % WS_HOPA)
a('v_lshl_add_u32 v14, v1, 4, s7')
a('v_add_u32 v15, 4096, v14')
a('v_lshlrev_b32 v162, 1, v1')
a('v_add_u32 v162, %d, v162' % XS)
a('v_lshl_add_u32 v163, v4, 2, v5')
a('v_lshlrev_b32 v163, 1, v163')
a('v_add_u32 v163, %d, v163' % HS)
a('v_lshlrev_b32 v164, 4, v5')
a('v_add_u32 v164, %d, v164' % HS)
a('s_lshl_b32 s7, s3, 9')
a('s_add_u32 s7, s7, %d' % WS_HOPB)
a('v_lshl_add_u32 v165, v4, 1, v5')
a('v_lshl_add_u32 v165, v165, 4, s7')
a('s_lshr_b32 s7, s3, 5')
a('s_lshl_b32 s7, s7, 9')
a('s_and_b32 s53, s3, 31')
a('s_lshl_b32 s53, s53, 4')
a('s_add_u32 s7, s7, s53')
a('s_add_u32 s7, s7, %d' % WS_HOPB)
a('v_lshl_add_u32 v166, v1, 12, s7')
a('s_lshl_b32 s7, s51, 7')
a('v_lshl_add_u32 v167, v1, 1, s7')
a('s_mul_i32 s7, s2, 48')
a('s_add_u32 s7, s7, %d' % WS_STATS)
a('v_lshl_add_u32 v144, v1, 4, s7')
a('s_lshl_b32 s7, s2, 4')
a('s_add_u32 s7, s7, %d' % WS_KEYS)
a('v_mov_b32 v145, s7')
a('s_mov_b64 s[42:43], 8')
a('v_cndmask_b32 v144, v144, v145, s[42:43]')
a('v_mul_u32_u24 v145, 12, v1')
a('v_min_u32 v145, 24, v145')
a('v_add_u32 v145, %d, v145' % STG)
a('v_mov_b32 v146, %d' % BEST)
a('v_cndmask_b32 v145, v145, v146, s[42:43]')
a('v_mov_b32 v151, s5')
a.label('L_pub_wait')
a('ds_read_b32 v13, v160 offset:%d' % (LNW - STATUS))
a('s_sub_u32 s88, s88, 1')
a('s_cbranch_scc1 L_exit')
a('s_waitcnt lgkmcnt(0)')
a('v_readfirstlane_b32 s7, v13')
a('s_and_b32 s7, s7, 63')
a('s_cmp_eq_u32 s7, 40')
a('s_cbranch_scc0 L_pub_wait')
a('ds_read2_b32 v[148:149], v145 offset0:0 offset1:1')
a('ds_read_b32 v150, v145 offset:8')
a('s_waitcnt lgkmcnt(0)')
a('s_mov_b64 exec, 15')
a('global_store_dwordx4 v144, v[148:151], s[40:41] sc1')
a('s_mov_b64 exec, -1')
if opt('st8', 0) == 3:
    stamp(10)
a('s_cmp_ge_u32 s3, 224')
a('s_cbranch_scc0 L_moe_has_w')
wait_lnw(104 + 1024)
key_loads()
a('s_waitcnt vmcnt(0)')
a('s_branch L_key_check')
a.label('L_moe_has_w')
TWO = opt('twobatch', 0)
DE = opt('downearly', 0)
if DE:
    a('s_sleep %d' % DE)
    down_loads()
AFTER = opt('wafter', 0)
if AFTER:
    wait_lnw(104 + 1024)
    key_loads()
    gate_up_loads(0)
    gate_up_loads(1)
    stamp(1)
    a('s_waitcnt vmcnt(32)')
else:
    WT = opt('wtrig', 0)
    if WT == 0:
        wait_lnw(104)
        gate_up_loads(0)
    elif WT == 1:
        wait_lnw(0x10000, 0x10000)
        gate_up_loads(0)
    else:
        wait_lnw(1, 15)
        gate_up_loads(0)
        wait_lnw(0x10000, 0x10000)
    if not TWO:
        gate_up_loads(1)
    stamp(1)
    wait_lnw(104 + 1024)
    key_loads()
    if TWO:
        gate_up_loads(1)
    a('s_waitcnt vmcnt(%d)' % (20 if TWO else 4 + 16))
    stamp(2)
    transpose_block('g0')
    transpose_block('u0')
    if not TWO:
        a('s_waitcnt vmcnt(4)')
        transpose_block('g1')
        transpose_block('u1')
    a('s_waitcnt vmcnt(%d)' % (16 if TWO else 0))
a.label('L_key_check')
wait_status('%d' % (0xff << B_KT), 'v160', 'v13')
stamp(3)
a('s_mov_b32 s53, 0')
a.label('L_key_loop')
a('v_cmp_ne_u32 vcc, s5, v131')
a('v_cmp_ne_u32 s[42:43], s5, v135')
a('s_or_b64 vcc, vcc, s[42:43]')
a('v_cmp_ne_u32 s[42:43], s5, v139')
a('s_or_b64 vcc, vcc, s[42:43]')
a('v_cmp_ne_u32 s[42:43], s5, v143')
a('s_or_b64 vcc, vcc, s[42:43]')
a('s_and_b64 exec, exec, vcc')
a('s_cbranch_execz L_key_done')
a('s_sleep 1')
key_loads()
a('s_add_u32 s53, s53, 1')
a('s_cmp_lt_u32 s53, %d' % POLL_MAX)
a('s_waitcnt vmcnt(0)')
a('s_cbranch_scc1 L_key_loop')
a.label('L_key_done')
if DEBUG:
    a('s_mov_b32 s96, s53')
a('s_mov_b64 exec, -1')
a('v_max3_u32 v2, v129, v133, v137')
a('v_max_u32 v2, v2, v141')
reduce64('v_max_u32', ['v2'])
a('v_mov_b32 v9, 0')
a('v_readlane_b32 s54, v2, 63')
a('s_and_b32 s55, s54, 0xffff')
a('s_sub_u32 s55, 2047, s55')
a('s_and_b32 s55, s55, 2047')
a('s_lshl_b32 s7, s55, 10')
a('v_add_u32 v3, s7, v167')
a('global_load_short_d16_hi v9, v3, s[8:9]')
stamp(4)
a('v_mov_b32 v10, s55')
a('v_mov_b32 v11, %d' % (1 << B_IDX))
a('s_mov_b64 exec, 1')
a('ds_write_b32 v160, v10 offset:%d' % (IDXW - STATUS))
a('ds_or_b32 v160, v11')
a('s_mov_b64 exec, -1')
if not DE:
    a('s_cmp_ge_u32 s3, 224')
    a('s_cbranch_scc1 L_no_down')
    down_loads()
    a.label('L_no_down')
a('v_cmp_eq_u32 vcc, s54, v133')
a('v_cmp_eq_u32 s[42:43], s54, v137')
a('v_cmp_eq_u32 s[44:45], s54, v141')
a('v_cmp_eq_u32 s[46:47], s54, v129')
a('v_cndmask_b32 v128, v128, v132, vcc')
a('v_cndmask_b32 v128, v128, v136, s[42:43]')
a('v_cndmask_b32 v128, v128, v140, s[44:45]')
a('s_or_b64 vcc, vcc, s[42:43]')
a('s_or_b64 s[44:45], s[44:45], s[46:47]')
a('s_or_b64 vcc, vcc, s[44:45]')
a('s_ff1_i32_b64 s7, vcc')
a('s_and_b32 s7, s7, 63')
a('v_readlane_b32 s89, v128, s7')
a('s_and_b32 s7, s54, s52')
a('s_not_b32 s42, s7')
a('s_and_b32 s42, s42, s52')
a('s_xor_b32 s43, s7, 0x80000000')
a('s_bitcmp1_b32 s7, 31')
a('s_cselect_b32 s7, s43, s42')
a('v_mov_b32 v12, s7')
a('v_mul_f32 v12, %s, v12' % f32(-LOG2E))
a('v_exp_f32 v12, v12')
a('v_add_f32 v12, 1.0, v12')
a('v_rcp_f32 v12, v12')
a('v_cvt_pk_bf16_f32 v12, v12, v12')
a('v_and_b32 v12, s52, v12')
a('s_and_b32 s90, s89, s52')
a('s_lshl_b32 s89, s89, 16')
a('v_rcp_f32 v13, s90')
a('s_mov_b32 s42, 0xffff0000')
a('s_mov_b32 s43, 0xffff0000')
a('s_mov_b32 s44, 0')
a('s_mov_b32 s45, -1')
a('s_cmp_ge_u32 s3, 224')
a('s_cbranch_scc1 L_moe_idle')
if AFTER:
    a('s_waitcnt vmcnt(%d)' % (16 + (1 if DE else 17)))
    stamp(2)
    transpose_block('g0')
    transpose_block('u0')
if TWO or AFTER:
    a('s_waitcnt vmcnt(%d)' % (1 if DE else 17))
    transpose_block('g1')
    transpose_block('u1')
a('v_mov_b32 v74, 0')
a('v_mov_b32 v75, s5')
a('s_waitcnt vmcnt(%d)' % (0 if DE else 16))
stamp(5)
a('v_subrev_f32 v9, s89, v9')
if opt('round1', 0):
    a('v_cvt_pk_bf16_f32 v9, v9, v9')
    a('v_and_b32 v9, s52, v9')
a('v_mul_f32 v9, v9, v13')
a('v_cvt_pk_bf16_f32 v9, v9, v9')
a('ds_write_b16 v162, v9')
a('ds_read_b128 v[64:67], v164 offset:%d' % (XS - HS))
a('ds_read_b128 v[68:71], v164 offset:%d' % (XS - HS + 64))
a('s_waitcnt lgkmcnt(0)')
for mat in ('g', 'u'):
    for h in range(2):
        for f in range(4):
            d = 128 + (16 if mat == 'u' else 0) + 4 * f
            a('v_mfma_f32_16x16x32_bf16 %s, %s, %s, %s' % (Q(d), Q(64 + 4 * h), Q(TRN[mat + str(h)] + 4 * f), '0' if h == 0 else Q(d)))
for base, dst in ((128, 72), (144, 73)):
    a('v_cndmask_b32 v%d, v%d, v%d, s[42:43]' % (base, base, base + 4))
    a('v_cndmask_b32 v%d, v%d, v%d, s[42:43]' % (base + 8, base + 8, base + 12))
    a('v_cndmask_b32 v%d, v%d, v%d, s[44:45]' % (dst, base, base + 8))
a('global_store_dwordx4 v161, v[72:75], s[40:41] sc1')
stamp(6)
a('s_waitcnt vmcnt(0)')
if opt('st8', 0) != 3:
    stamp(10)
transpose_block('d0')
transpose_block('d1')
if opt('sleepA', 2):
    a('s_sleep %d' % opt('sleepA', 2))
a('s_mov_b32 s53, 0')
a.label('L_hopa_loop')
for k in range(8):
    a('global_load_dwordx4 %s, %s, s[40:41] offset:%d sc1' % (Q(128 + 4 * k), 'v14' if k < 4 else 'v15', 1024 * (k % 4)))
a('s_add_u32 s53, s53, 1')
a('s_waitcnt vmcnt(0)')
a('v_cmp_ne_u32 vcc, s5, v131')
for k in range(1, 8):
    a('v_cmp_ne_u32 s[56:57], s5, v%d' % (131 + 4 * k))
    a('s_or_b64 vcc, vcc, s[56:57]')
a('s_and_b64 exec, exec, vcc')
a('s_cbranch_execz L_hopa_done')
a('s_sleep 2')
a('s_cmp_lt_u32 s53, %d' % POLL_MAX)
a('s_cbranch_scc1 L_hopa_loop')
a.label('L_hopa_done')
if DEBUG:
    a('s_mov_b32 s97, s53')
a('s_mov_b64 exec, -1')
stamp(7)
for k in range(4):
    a('v_pk_add_f32 %s, %s, %s' % (P(128 + 8 * k), P(128 + 8 * k), P(132 + 8 * k)))
a('v_pk_add_f32 v[128:129], v[128:129], v[136:137]')
a('v_pk_add_f32 v[144:145], v[144:145], v[152:153]')
a('v_pk_add_f32 v[128:129], v[128:129], v[144:145]')
a('v_cvt_pk_bf16_f32 v2, v128, v129')
a('v_lshlrev_b32 v3, 16, v2')
a('v_and_b32 v2, s52, v2')
a('v_mul_f32 v10, %s, v3' % f32(-LOG2E))
a('v_exp_f32 v10, v10')
a('v_add_f32 v10, 1.0, v10')
a('v_rcp_f32 v10, v10')
a('v_mul_f32 v10, v3, v10')
a('v_cvt_pk_bf16_f32 v10, v10, v10')
a('v_and_b32 v10, s52, v10')
a('v_mul_f32 v10, v10, v2')
a('v_cvt_pk_bf16_f32 v10, v10, v10')
a('ds_write_b16 v163, v10')
a('ds_read_b128 v[64:67], v164')
a('ds_read_b128 v[68:71], v164 offset:64')
a('s_waitcnt lgkmcnt(0)')
for h in range(2):
    for f in range(4):
        d = 128 + 4 * f
        a('v_mfma_f32_16x16x32_bf16 %s, %s, %s, %s' % (Q(d), Q(64 + 4 * h), Q(TRN['d%d' % h] + 4 * f), '0' if h == 0 else Q(d)))
a('v_cndmask_b32 v72, v128, v136, s[42:43]')
a('v_cndmask_b32 v73, v132, v140, s[42:43]')
a('s_mov_b32 exec_hi, 0')
a('global_store_dwordx4 v165, v[72:75], s[40:41] sc1')
a('s_mov_b64 exec, -1')
stamp(8)
a('s_sleep %d' % opt('sleepB', 21))
a('s_branch L_moe_final')
a.label('L_moe_idle')
a('s_sleep %d' % opt('sleepI', 70))
a.label('L_moe_final')
a('v_mov_b32 v128, 0')
a('v_mov_b32 v129, 0')
a('s_mov_b32 s53, 0')
a('s_mov_b64 exec, 0xfffffff')
a.label('L_hopb_loop')
a('global_load_dwordx4 v[128:131], v166, s[40:41] sc1')
a('s_add_u32 s53, s53, 1')
a('s_waitcnt vmcnt(0)')
a('v_cmp_ne_u32 vcc, s5, v131')
a('s_and_b64 exec, exec, vcc')
a('s_cbranch_execz L_hopb_done')
a('s_sleep 2')
a('s_cmp_lt_u32 s53, %d' % POLL_MAX)
a('s_cbranch_scc1 L_hopb_loop')
a.label('L_hopb_done')
if DEBUG:
    a('s_mov_b32 s98, s53')
a('s_mov_b64 exec, -1')
stamp(9)
reduce64('v_add_f32', ['v128', 'v129'])
a('v_readlane_b32 s42, v128, 63')
a('v_readlane_b32 s43, v129, 63')
a('v_mov_b32 v3, s43')
a('v_cvt_pk_bf16_f32 v2, s42, v3')
a('v_and_b32 v3, s52, v2')
a('v_lshlrev_b32 v2, 16, v2')
a('v_pk_mul_f32 v[2:3], v[2:3], v[12:13] op_sel_hi:[1,0]')
a('v_cvt_pk_bf16_f32 v2, v2, v3')
a('v_and_b32 v3, s52, v2')
a('v_lshlrev_b32 v2, 16, v2')
a('s_lshl_b32 s42, s55, 10')
a('s_lshl_b32 s43, s3, 2')
a('s_add_u32 s42, s42, s43')
a('v_mov_b32 v9, s42')
wait_status('%d' % (1 << B_T1), 'v160', 'v10')
a('ds_read_b64 v[4:5], v160 offset:%d' % (T1X - STATUS))
a('s_waitcnt lgkmcnt(0)')
a('v_pk_add_f32 v[2:3], v[2:3], v[4:5]')
a('v_cvt_pk_bf16_f32 v2, v2, v3')
a('s_mov_b64 exec, 1')
a('global_store_dword v9, v2, s[36:37]')
a('s_cmp_eq_u32 s2, 0')
a('s_cbranch_scc0 L_no_epoch')
a('s_add_u32 s7, s6, 1')
a('v_mov_b32 v10, 0')
a('v_mov_b32 v11, s7')
a('global_store_dword v10, v11, s[40:41] sc1')
a.label('L_no_epoch')
a('s_mov_b64 exec, -1')
finish()
a.label('L_exit')
a('s_endpgm')
a.label('L_end')

body = a.finalize()
hdr = open('parallel_sum__ssm_conv_s4__moe_arch_mod__prompt.s.ref').read().split('; Override launch')[0]
src = hdr
src += '; Generated by work/gen.py (hand-written instruction streams, scripted unrolling and wait-state padding).\n'
src += '; @launch grid=(256,1,1) block=(640,1,1) lds=%d\n' % LDS_BYTES
src += '.amdgcn_target "amdgcn-amd-amdhsa--gfx950"\n.text\n.globl %s\n.p2align 8\n.type %s,@function\n' % (NAME, NAME)
src += body
src += '''.section .rodata,"a"
.p2align 6
.amdhsa_kernel %s
  .amdhsa_next_free_vgpr 168
  .amdhsa_next_free_sgpr 100
  .amdhsa_accum_offset 168
  .amdhsa_group_segment_fixed_size 0
  .amdhsa_kernarg_size 136
  .amdhsa_user_sgpr_count 2
  .amdhsa_user_sgpr_kernarg_segment_ptr 1
  .amdhsa_system_sgpr_workgroup_id_x 1
.end_amdhsa_kernel
''' % NAME
open(OUT, 'w').write(src)
print('wrote', OUT, 'lds', LDS_BYTES)
```

```python
import sys, struct, math
from asmlib import Asm

NAME = 'parallel_sum__ssm_conv_s4__moe_arch_mod__prompt_kernel'
DEBUG = '--debug' in sys.argv
SPAN = '--span' in sys.argv
OUT = [a for a in sys.argv[1:] if not a.startswith('--')]
OUT = OUT[0] if OUT else 'parallel_sum__ssm_conv_s4__moe_arch_mod__prompt.s'


def opt(name, default):
    for a in sys.argv:
        if a.startswith('--' + name + '='):
            return int(a.split('=')[1], 0)
    return default


def f32(x):
    return '0x%08x' % struct.unpack('<I', struct.pack('<f', x))[0]


WS_STATS = 4096
WS_KEYS = 16384
WS_HOPA = 32768
WS_HOPB = 262144
WS_XT = 0x80000
WS_OT = 4 << 20
WS_DBG = 8 << 20
KTS = 528
KT = [0, 64 * KTS]
KCS = 4160
KC = [2 * 64 * KTS, 2 * 64 * KTS + 4 * KCS]
UB = [KC[1] + 4 * KCS, KC[1] + 4 * KCS + 4608]
YB = [UB[1] + 4608, UB[1] + 4608 + 4096]
MISC = YB[1] + 4096
STG = MISC
STATUS = MISC + 64
IDXW = MISC + 68
T1X = MISC + 72
HS = MISC + 128
XS = MISC + 256
LDS_BYTES = MISC + 384
B_U, B_KC, B_Y, B_IDX, B_T1, B_KT = 0, 4, 8, 16, 17, 18
LNW = MISC + 80
BEST = MISC + 88

POLL_MAX = 1 << 16
FOFF = 64 * 19
LOG2E = 1.4426950408889634
LOG2E_HI = struct.unpack('<f', struct.pack('<f', LOG2E))[0]
LOG2E_LO = LOG2E - LOG2E_HI

a = Asm()
uid = [0]
NTW = ' nt' if opt('ntw', 1) else ''
NTX = ' nt' if opt('ntx', 1) else ''
NTT = ' nt' if opt('ntt', 1) else ''
NTP = ' nt' if opt('ntp', 1) else ''


def L(p):
    uid[0] += 1
    return 'L_%s_%d' % (p, uid[0])


ECHO = opt('echow', -1) >= 0


def stamp(n):
    if ECHO and (n == 0 or n == opt('echos', 1)):
        a('s_memrealtime s[%d:%d]' % ((64, 65) if n == 0 else (66, 67)))
    if DEBUG:
        a('%s s[%d:%d]' % ('s_memtime' if '--cyc' in sys.argv else 's_memrealtime', 64 + 2 * n, 65 + 2 * n))


NSTAMP = 12


def finish():
    if DEBUG:
        stamp(NSTAMP - 1)
        a('s_waitcnt lgkmcnt(0)')
        a('s_mov_b64 exec, 1')
        a('s_mul_i32 s7, s2, 10')
        a('s_add_u32 s7, s7, s4')
        a('s_lshl_b32 s7, s7, 6')
        a('s_add_u32 s7, s7, %d' % WS_DBG)
        a('v_mov_b32 v2, s7')
        for n in range(NSTAMP):
            a('v_mov_b32 v3, s%d' % (64 + 2 * n))
            a('global_store_dword v2, v3, s[40:41] offset:%d' % (4 * n))
        for n, r in enumerate((96, 97, 98)):
            a('v_mov_b32 v3, s%d' % r)
            a('global_store_dword v2, v3, s[40:41] offset:%d' % (48 + 4 * n))
    if ECHO:
        l = L('echo')
        if opt('echos', 1) == NSTAMP - 1:
            a('s_waitcnt vmcnt(0)')
            stamp(NSTAMP - 1)
        a('s_cmp_eq_u32 s2, %d' % opt('echob', 0))
        a('s_cbranch_scc0 %s' % l)
        a('s_cmp_eq_u32 s4, %d' % opt('echow', 0))
        a('s_cbranch_scc0 %s' % l)
        a('s_waitcnt lgkmcnt(0)')
        a('s_sub_u32 s66, s66, s64')
        a('s_mul_i32 s66, s66, %d' % opt('echok', 8))
        a('s_add_u32 s66, s66, 1500')
        a('s_min_u32 s66, s66, 20000')
        l2 = L('spin')
        a.label(l2)
        a('s_memrealtime s[68:69]')
        a('s_waitcnt lgkmcnt(0)')
        a('s_sub_u32 s68, s68, s64')
        a('s_cmp_lt_u32 s68, s66')
        a('s_cbranch_scc1 %s' % l2)
        a.label(l)
    if SPAN:
        l = L('spanlbl')
        a('s_waitcnt vmcnt(0)')
        a('s_memrealtime s[66:67]')
        a('s_cmp_ge_u32 s2, 8')
        a('s_cbranch_scc1 %s' % l)
        a('s_sub_u32 s7, s4, 7')
        a('s_cmp_ge_u32 s7, 2')
        a('s_cbranch_scc1 %s' % l)
        a('s_waitcnt lgkmcnt(0)')
        a('s_mov_b64 exec, 1')
        a('s_lshl_b32 s7, s7, 3')
        a('s_add_u32 s7, s7, s2')
        a('s_lshl_b32 s7, s7, 2')
        a('v_mov_b32 v2, s7')
        a('s_sub_u32 s64, s66, s64')
        a('v_mov_b32 v3, s64')
        a('global_store_dword v2, v3, s[38:39]')
        K = opt('echo', 0)
        if K:
            a('s_cmp_eq_u32 s2, 0')
            a('s_cbranch_scc0 %s' % l)
            a('s_cmp_eq_u32 s4, 8')
            a('s_cbranch_scc0 %s' % l)
            a('s_mul_i32 s64, s64, %d' % K)
            l2 = L('spin')
            a.label(l2)
            a('s_memrealtime s[68:69]')
            a('s_waitcnt lgkmcnt(0)')
            a('s_sub_u32 s68, s68, s66')
            a('s_cmp_lt_u32 s68, s64')
            a('s_cbranch_scc1 %s' % l2)
        a.label(l)
    a('s_endpgm')


def wait_status(need, vaddr, vtmp, sleep=0):
    l = L('ws')
    a.label(l)
    if sleep:
        a('s_sleep %d' % sleep)
    a('ds_read_b32 %s, %s' % (vtmp, vaddr))
    a('s_sub_u32 s88, s88, 1')
    a('s_cbranch_scc1 L_exit')
    a('s_waitcnt lgkmcnt(0)')
    a('v_readfirstlane_b32 s7, %s' % vtmp)
    a('s_and_b32 s7, s7, %s' % need)
    a('s_cmp_eq_u32 s7, %s' % need)
    a('s_cbranch_scc0 %s' % l)


def set_status(bits, vaddr, vtmp):
    a('s_mov_b64 exec, 1')
    a('v_mov_b32 %s, %s' % (vtmp, bits))
    a('ds_or_b32 %s, %s' % (vaddr, vtmp))
    a('s_mov_b64 exec, -1')


def reduce64(op, regs):
    for step in ('row_shr:1 row_mask:0xf', 'row_shr:2 row_mask:0xf', 'row_shr:4 row_mask:0xf', 'row_shr:8 row_mask:0xf',
                 'row_bcast:15 row_mask:0xa', 'row_bcast:31 row_mask:0xc'):
        for r in regs:
            a('%s_dpp %s, %s, %s %s bank_mask:0xf' % (op, r, r, r, step))


def P(n):
    return 'v[%d:%d]' % (n, n + 1)


def Q(n):
    return 'v[%d:%d]' % (n, n + 3)


def cmul(d, z, w, t):
    a('v_pk_mul_f32 %s, %s, %s op_sel:[0,0] op_sel_hi:[0,1]' % (P(t), P(z), P(w)))
    a('v_pk_fma_f32 %s, %s, %s, %s op_sel:[1,1,0] op_sel_hi:[1,0,1] neg_lo:[1,0,0]' % (P(d), P(z), P(w), P(t)))


def cmul_multi(jobs):
    for d, z, w, t in jobs:
        a('v_pk_mul_f32 %s, %s, %s op_sel:[0,0] op_sel_hi:[0,1]' % (P(t), P(z), P(w)))
    for d, z, w, t in jobs:
        a('v_pk_fma_f32 %s, %s, %s, %s op_sel:[1,1,0] op_sel_hi:[1,0,1] neg_lo:[1,0,0]' % (P(d), P(z), P(w), P(t)))


def cexp_multi(jobs, al, be):
    for d, l, t in jobs:
        a('v_mul_f32 v%d, %s, v%d' % (t, f32(l), al))
        a('v_mul_f32 v%d, %s, v%d' % (t + 1, f32(l), be))
    for d, l, t in jobs:
        a('v_exp_f32 v%d, v%d' % (t, t))
        a('v_fract_f32 v%d, v%d' % (t + 1, t + 1))
    for d, l, t in jobs:
        a('v_cos_f32 v%d, v%d' % (d, t + 1))
        a('v_sin_f32 v%d, v%d' % (d + 1, t + 1))
    for d, l, t in jobs:
        a('v_pk_mul_f32 %s, %s, %s op_sel:[0,0] op_sel_hi:[1,0]' % (P(d), P(d), P(t)))


a.label(NAME)
a('s_cmp_ge_u32 s2, 256')
a('s_cbranch_scc1 L_exit')
a('s_load_dwordx16 s[8:23], s[0:1], 0')
a('s_load_dwordx16 s[24:39], s[0:1], 64')
a('s_load_dwordx2 s[40:41], s[0:1], 128')
stamp(0)
if SPAN:
    a('s_memrealtime s[64:65]')
a('v_lshrrev_b32 v2, 6, v0')
a('v_and_b32 v1, 63, v0')
a('s_mov_b32 s88, 0x400000')
a('v_readfirstlane_b32 s4, v2')
a('s_and_b32 s3, s2, 7')
a('s_lshl_b32 s3, s3, 5')
a('s_lshr_b32 s7, s2, 3')
a('s_add_u32 s3, s3, s7')
a('s_cmp_ge_u32 s4, 8')
a('s_cbranch_scc1 L_special')

a('s_lshl_b32 s42, s3, 3')
a('s_add_u32 s42, s42, s4')
a('s_lshl_b32 s7, s42, 10')
a('v_lshlrev_b32 v17, 4, v1')
a('v_add_u32 v18, s7, v17')
a('s_and_b32 s43, s4, 1')
a('s_lshl_b32 s7, s3, 1')
a('s_add_u32 s7, s7, s43')
a('s_lshl_b32 s7, s7, 8')
a('s_bfe_u32 s50, s4, 0x10001')
a('s_lshl_b32 s51, s50, 7')
a('s_add_u32 s7, s7, s51')
a('v_lshl_add_u32 v19, v1, 1, s7')
for r in range(10, 16):
    a('v_mov_b32 v%d, 0' % r)
a('s_lshl_b32 s7, s3, 2')
if opt('st8', 0) == 1:
    stamp(8)
a('s_waitcnt lgkmcnt(0)')
if opt('st8', 0) == 2:
    stamp(8)
a('global_load_dwordx4 v[2:5], v18, s[8:9]' + NTX)
a('s_load_dword s6, s[40:41], 0')
a('s_load_dword s48, s[22:23], s7')
a('s_load_dword s49, s[24:25], s7')
if opt('wfirst', 1):
    a('global_load_dwordx4 v[6:9], v17, s[28:29]')
if not opt('pfirst', 0):
    a('s_barrier')
if not opt('wfirst', 1):
    a('global_load_dwordx4 v[6:9], v17, s[28:29]')
a('global_load_short_d16_hi v10, v19, s[10:11]' + NTP)
a('global_load_short_d16_hi v11, v19, s[12:13]' + NTP)
a('s_cmp_ge_u32 s4, 4')
a('s_cbranch_scc1 L_skip_bc')
a('global_load_short_d16_hi v12, v19, s[14:15]' + NTP)
a('global_load_short_d16_hi v13, v19, s[16:17]' + NTP)
a('global_load_short_d16_hi v14, v19, s[18:19]' + NTP)
a('global_load_short_d16_hi v15, v19, s[20:21]' + NTP)
a.label('L_skip_bc')
if opt('pfirst', 0):
    a('s_barrier')
a('s_mov_b32 s52, 0xffff0000')
a('v_mov_b32 v160, %d' % STATUS)
a('s_mul_i32 s7, s43, %d' % KT[1])
a('s_lshl_b32 s51, s50, 8')
a('s_add_u32 s7, s7, s51')
a('v_lshl_add_u32 v62, v1, 2, s7')
a('s_waitcnt lgkmcnt(0)')
a('s_mul_i32 s5, s6, 0x9E3779B1')
a('s_add_u32 s5, s5, 0x7F4A7C15')
a('s_lshl_b32 s7, s48, 16')
a('s_and_b32 s51, s48, s52')
a('s_cmp_eq_u32 s43, 0')
a('s_cselect_b32 s7, s7, s51')
a('v_mov_b32 v20, s7')
a('v_mul_f32 v21, %s, v20' % f32(LOG2E_HI))
a('v_mov_b32 v22, %s' % f32(LOG2E_HI))
a('v_fma_f32 v22, v20, v22, -v21')
a('v_fmac_f32 v22, %s, v20' % f32(LOG2E_LO))
a('v_exp_f32 v21, v21')
a('v_mul_f32 v22, %s, v22' % f32(math.log(2.0)))
a('v_fmac_f32 v21, v21, v22')
a('v_cvt_pk_bf16_f32 v21, v21, v21')
a('v_and_b32 v16, s52, v21')
a('v_mov_b32 v44, 0')
a('v_mov_b32 v45, 0')
a('v_mov_b32 v46, 0x3f803f80')
a('v_mov_b32 v47, %s' % f32(1.0 / 512))
a('s_sub_u32 s47, 2047, s42')
a('v_mov_b32 v43, s47')
a('s_lshl_b32 s7, s4, 2')
a('s_add_u32 s7, s7, %d' % STG)
a('v_mov_b32 v48, s7')
a('v_mov_b32 v49, 1')
a('v_and_b32 v136, 255, v0')
a('v_mul_u32_u24 v137, 48, v136')
a('v_add_u32 v137, %d, v137' % WS_STATS)
a('s_mul_i32 s7, s3, 12288')
a('s_add_u32 s7, s7, %d' % WS_XT)
a('v_lshrrev_b32 v138, 3, v136')
a('v_mul_u32_u24 v138, 384, v138')
a('v_and_b32 v139, 7, v136')
a('v_lshl_add_u32 v138, v139, 4, v138')
a('v_add_u32 v138, s7, v138')
a('v_lshlrev_b32 v139, 4, v136')
a('v_add_u32 v139, %d, v139' % (UB[0] + 512))
a('s_setprio 2')
a('s_cmp_ge_u32 s4, 4')
a('s_cbranch_scc1 L_wait_io')
a('s_waitcnt vmcnt(6)')
a.label('L_wait_io')
a('s_waitcnt vmcnt(%d)' % 6 if False else '')
a('s_cbranch_scc0 L_wait_done')
a('s_waitcnt vmcnt(2)')
a.label('L_wait_done')
stamp(1)
a('v_lshlrev_b32 v20, 16, v2')
a('v_and_b32 v21, s52, v2')
a('v_readfirstlane_b32 s44, v20')
for k in range(1, 4):
    a('v_lshlrev_b32 v%d, 16, v%d' % (20 + 2 * k, 2 + k))
    a('v_and_b32 v%d, s52, v%d' % (21 + 2 * k, 2 + k))
for k in range(4):
    a('v_pk_add_f32 %s, %s, s[44:45] op_sel_hi:[1,0] neg_lo:[0,1] neg_hi:[0,1]' % (P(28 + 2 * k), P(20 + 2 * k)))
    a('v_dot2_f32_bf16 v44, v%d, v%d, v44' % (2 + k, 6 + k))
    a('v_dot2_f32_bf16 v45, v46, v%d, v45' % (6 + k))
a('v_pk_add_f32 v[36:37], v[28:29], v[30:31]')
a('v_pk_mul_f32 v[40:41], v[28:29], v[28:29]')
a('v_pk_add_f32 v[38:39], v[32:33], v[34:35]')
a('v_pk_fma_f32 v[40:41], v[30:31], v[30:31], v[40:41]')
a('v_pk_add_f32 v[36:37], v[36:37], v[38:39]')
a('v_pk_fma_f32 v[40:41], v[32:33], v[32:33], v[40:41]')
a('v_add_f32 v36, v36, v37')
a('v_pk_fma_f32 v[40:41], v[34:35], v[34:35], v[40:41]')
a('v_add_f32 v40, v40, v41')
reduce64('v_add_f32', ['v44', 'v45', 'v36', 'v40'])
a('v_mul_f32 v36, v36, v47')
a('v_mul_f32 v40, v40, v47')
a('v_fma_f32 v40, -v36, v36, v40')
a('v_add_f32 v36, s44, v36')
a('v_max_f32 v40, 0, v40')
a('v_cvt_pk_bf16_f32 v41, v36, v40')
a('v_and_b32 v40, s52, v41')
a('v_lshlrev_b32 v36, 16, v41')
a('v_add_f32 v40, %s, v40' % f32(1e-5))
a('v_fma_f32 v44, -v36, v45, v44')
a('v_cvt_pk_bf16_f32 v40, v40, v40')
a('v_and_b32 v40, s52, v40')
a('v_sqrt_f32 v40, v40')
a('v_cvt_pk_bf16_f32 v40, v40, v40')
a('v_and_b32 v40, s52, v40')
a('v_rcp_f32 v38, v40')
a('v_bfi_b32 v42, s52, v40, v41')
a('v_mul_f32 v36, v44, v38')
a('v_cvt_pk_bf16_f32 v36, v36, v36')
a('v_ashrrev_i32 v37, 31, v36')
a('v_or_b32 v37, 0x80000000, v37')
a('v_xor_b32 v36, v36, v37')
a('v_bfi_b32 v43, s52, v36, v43')
a('s_mov_b32 exec_lo, 0')
a('s_mov_b32 exec_hi, 0x80000000')
a('ds_write_b32 v48, v42')
a('ds_max_u64 v160, v[42:43] offset:%d' % (BEST - STATUS))
a('ds_add_u32 v160, v49 offset:%d' % (LNW - STATUS))
a('s_mov_b64 exec, -1')
a('s_setprio 0')
stamp(2)
a('s_waitcnt vmcnt(0)')
stamp(9)
a('v_mul_f32 v10, v16, v10')
a('v_mul_f32 v11, v16, v11')
a('v_mul_f32 v10, %s, v10' % f32(LOG2E))
a('v_mul_f32 v11, %s, v11' % f32(1.0 / (2 * math.pi)))
a('s_cmp_ge_u32 s4, 4')
a('s_cbranch_scc1 L_io')


def kt_write(row, pair, tmp, neg):
    a('v_cvt_pk_bf16_f32 v%d, v%d, %sv%d' % (tmp, pair, '-' if neg else '', pair + 1))
    a('ds_write_b32 v62, v%d offset:%d' % (tmp, row * KTS))


W1, W2, W4, W8, G, C0 = 20, 22, 24, 26, 28, 30
cexp_multi([(W1, 1.0, 40), (G, 256.0, 42), (W8, 8.0, 44)], 10, 11)
a('v_pk_mul_f32 v[12:13], v[12:13], v[16:17] op_sel_hi:[1,0]')
cmul_multi([(C0, 14, 12, 40), (W2, W1, W1, 42)])
E0, O0, H = 32, 34, 36
T = [40, 42, 44, 46, 48]
cmul_multi([(O0, C0, W1, T[0]), (H, C0, G, T[1]), (W4, W2, W2, T[2])])
kt_write(0, C0, 50, True)
kt_write(1, O0, 51, True)
kt_write(13, H, 52, True)
Z1 = 38
Hs = {1: H}
Hn = [54, 56, 58, 60, 52 + 12, 66]
cur_e, cur_o, cur_b = C0, O0, H
step_regs = [(E0, O0, Z1)]
hprev = H
for n in range(5):
    jobs = [(E0, cur_e, W2, T[0]), (Z1, cur_b, W2, T[2]), (Hn[n], hprev, G, T[3])]
    if n < 4:
        jobs.insert(1, (O0, cur_o, W2, T[1]))
    cmul_multi(jobs)
    cur_e, cur_b, hprev = E0, Z1, Hn[n]
    kt_write(2 * n + 2, E0, 50, True)
    if n < 4:
        kt_write(2 * n + 3, O0, 51, True)
    kt_write(14 + n, Z1, 52, True)
    kt_write({0: 21, 1: 26, 2: 11, 3: 19, 4: 24}[n], Hn[n], 53, True)
H2, H3, H4, H5, H6, H7 = Hn
cmul_multi([(H7, H6, G, T[0]), (E0, H2, W4, T[1]), (O0, H3, W4, T[2]), (H2, H2, W8, T[3]), (H3, H3, W8, T[4])])
kt_write(29, H7, 50, True)
kt_write(22, E0, 51, True)
kt_write(27, O0, 52, True)
kt_write(23, H2, 53, True)
kt_write(28, H3, 50, True)
cmul_multi([(H4, H4, W8, T[0]), (H5, H5, W8, T[1]), (H6, H6, W8, T[2]), (H7, H7, W8, T[3])])
kt_write(12, H4, 50, True)
kt_write(20, H5, 51, True)
kt_write(25, H6, 52, True)
kt_write(30, H7, 53, True)
a('s_lshl_b32 s51, %d, s4' % (1 << B_KT))
set_status('s51', 'v160', 'v50')
stamp(3)
tabA0 = [min(r, 12) for r in range(16)]
tabA1 = [0, 0, 1, 2, 2, 2, 3, 4, 4, 4, 5, 6, 7, 7, 7, 7]
tabB = [min(r, 4) for r in range(16)]


def nib64(t):
    v = sum(x << (4 * i) for i, x in enumerate(t))
    return v & 0xffffffff, v >> 32


a('s_cmp_eq_u32 s50, 0')
for (sreg, ta, tb) in ((54, tabA0, tabB), (56, tabA1, tabB)):
    la, ha = nib64(ta)
    lb, hb = nib64(tb)
    a('s_mov_b32 s%d, 0x%x' % (sreg, lb))
    a('s_mov_b32 s%d, 0x%x' % (sreg + 1, hb))
    a('s_cmov_b32 s%d, 0x%x' % (sreg, la))
    a('s_cmov_b32 s%d, 0x%x' % (sreg + 1, ha))
a('s_cselect_b32 s58, 0, 21')
a('s_cselect_b32 s59, 13, 26')
a('v_and_b32 v20, 31, v1')
a('v_and_b32 v21, 4, v20')
a('v_cmp_ne_u32 vcc, 0, v21')
a('v_and_b32 v21, 3, v20')
a('v_lshrrev_b32 v22, 3, v20')
a('v_lshl_add_u32 v21, v22, 2, v21')
a('v_lshlrev_b32 v21, 2, v21')
a('v_mov_b32 v22, s54')
a('v_mov_b32 v23, s55')
a('v_mov_b32 v24, s56')
a('v_mov_b32 v25, s57')
a('v_mov_b32 v26, s58')
a('v_mov_b32 v27, s59')
a('v_cndmask_b32 v22, v22, v24, vcc')
a('v_cndmask_b32 v23, v23, v25, vcc')
a('v_cndmask_b32 v26, v26, v27, vcc')
a('v_lshrrev_b64 v[22:23], v21, v[22:23]')
a('v_and_b32 v22, 15, v22')
a('v_add_u32 v22, v22, v26')
a('s_mul_i32 s7, s43, %d' % KT[1])
a('v_lshrrev_b32 v23, 5, v1')
a('v_lshl_add_u32 v23, v23, 4, s7')
a('s_movk_i32 s51, %d' % KTS)
a('v_mad_u32_u24 v30, v22, s51, v23')
a('v_mad_u32_u24 v31, v20, s51, v23')
a('v_and_b32 v20, 15, v1')
a('v_lshrrev_b32 v21, 4, v1')
a('v_add_u32 v22, 1, v20')
a('v_and_b32 v23, 3, v22')
a('v_lshrrev_b32 v22, 2, v22')
a('s_mul_i32 s7, s43, %d' % (KC[1] - KC[0]))
a('s_add_u32 s7, s7, %d' % KC[0])
a('s_movk_i32 s51, %d' % KCS)
a('v_mov_b32 v35, s7')
a('v_mad_u32_u24 v35, v23, s51, v35')
a('v_lshl_add_u32 v35, v22, 3, v35')
a('v_lshl_add_u32 v35, v21, 4, v35')
a('s_mul_i32 s51, s43, %d' % (UB[1] - UB[0]))
a('s_add_u32 s51, s51, %d' % (UB[0] + 16 * 33 - 448))
a('v_lshlrev_b32 v22, 1, v20')
a('v_sub_u32 v22, v22, v21')
a('v_lshl_add_u32 v36, v22, 4, s51')
a('s_mul_i32 s51, s43, %d' % (YB[1] - YB[0]))
a('s_add_u32 s51, s51, %d' % YB[0])
a('v_lshl_add_u32 v37, v20, 5, s51')
a('v_lshl_add_u32 v37, v21, 3, v37')
a('s_lshl_b32 s51, s50, 10')
a('s_add_u32 s7, s7, s51')
a('s_add_u32 s7, s7, 32')
a('v_lshl_add_u32 v38, v1, 4, s7')
wait_status('%d' % (0xff << B_KT), 'v160', 'v20')
stamp(4)
KA = [80, 84, 88, 92]
KB = [96, 100, 104, 108]
for s in range(4):
    a('ds_read_b128 %s, v30 offset:%d' % (Q(KA[s]), 32 * s))
    a('ds_read_b128 %s, v31 offset:%d' % (Q(KB[s]), 32 * KTS + 32 * s))
for s in range(16):
    a('s_waitcnt lgkmcnt(%d)' % min(6, 2 * (15 - s)))
    a('v_mfma_f32_32x32x16_bf16 v[64:79], %s, %s, %s' % (Q(KA[s % 4]), Q(KB[s % 4]), '0' if s == 0 else 'v[64:79]'))
    if s + 4 < 16:
        a('ds_read_b128 %s, v30 offset:%d' % (Q(KA[s % 4]), 32 * (s + 4)))
        a('ds_read_b128 %s, v31 offset:%d' % (Q(KB[s % 4]), 32 * KTS + 32 * (s + 4)))
a('s_mov_b32 s54, 0x80000000')
a('s_mov_b32 s55, 0x80000000')
a('s_mov_b32 s56, 0')
a('s_mov_b32 s57, 0x80000000')
a('s_mov_b32 s58, 0xaaaaaaaa')
a('s_mov_b32 s59, 0xaaaaaaaa')
a('s_cmp_eq_u32 s50, 0')
a('s_cbranch_scc0 L_kwin_b')


def write_window(seq, off):
    for s in range(4):
        base = 80 + 4 * s
        for k in range(4):
            a('v_cvt_pk_bf16_f32 v%d, v%d, v%d' % (base + k, seq[s + 2 * k], seq[s + 2 * k + 1]))
        a('ds_write_b128 v38, %s offset:%d' % (Q(base), off + s * KCS))


def seg3_window(y0, y1, z, off):
    a('v_cndmask_b32 v%d, v%d, v%d, s[58:59]' % (z, y0, y1))
    write_window([y0, y0, y0, y0, z] + [y1] * 6, off)


a('v_cndmask_b32 v73, v73, v72, s[54:55]')
a('v_cndmask_b32 v74, v74, v72, s[56:57]')
write_window(list(range(64, 75)), 0)
seg3_window(75, 76, 77, 4 * 512)
a('v_cvt_pk_bf16_f32 v96, 0, v64')
a('v_cvt_pk_bf16_f32 v97, v65, v66')
a('v_cvt_pk_bf16_f32 v98, v64, v65')
a('v_subrev_u32 v99, 16, v38')
a('s_mov_b64 exec, 1')
a('ds_write_b32 v99, v96 offset:%d' % (1 * KCS + 12))
a('ds_write_b32 v99, v98 offset:%d' % (2 * KCS + 12))
a('ds_write_b64 v99, v[96:97] offset:%d' % (3 * KCS + 8))
a('s_mov_b64 exec, -1')
a('s_branch L_kwin_done')
a.label('L_kwin_b')
write_window([64, 64, 64, 65, 65, 65, 66, 66, 66, 66, 66], 0)
seg3_window(67, 68, 77, 4 * 512)
a.label('L_kwin_done')
a('s_lshl_b32 s51, %d, s4' % (1 << B_KC))
set_status('s51', 'v160', 'v20')
stamp(5)
import math as _m
FBASE = 448


def conv_role(tiles):
    acc = {t: 40 + 4 * n for n, t in enumerate(tiles)}
    top = max(tiles)
    loads = []
    mf = []
    for e0 in range(8):
        for g in range(top, -1, -1):
            loads.append(('A', e0, g))
            loads.append(('B', e0, top - g))
            for t in sorted(tiles, reverse=True):
                if 0 <= t - g:
                    mf.append((t, ('A', e0, g), ('B', e0, t - g)))
    last = {}
    for n, (t, ka, kb) in enumerate(mf):
        last[ka] = n
        last[kb] = n
    free = [64 + 4 * n for n in range(16)]
    slot = {}
    issued = []
    done_upto = [0]
    nxt = [0]
    ninstr = lambda k: 2 if k[0] == 'A' else 1
    total = sum(ninstr(k) for k in loads)
    R = total / float(len(mf))
    LEAD = opt('lead', 15)

    def issue_one():
        k = loads[nxt[0]]
        if not free:
            return False
        r = free.pop(0)
        slot[k] = r
        if k[0] == 'A':
            off = 64 * k[1] + 512 * k[2]
            a('ds_read_b64 %s, v35 offset:%d' % (P(r), off))
            a('ds_read_b64 %s, v35 offset:%d' % (P(r + 2), off + 8))
            issued.extend([k, k])
        else:
            a('ds_read_b128 %s, v36 offset:%d' % (Q(r), FBASE + 512 * k[2] - 64 * k[1]))
            issued.append(k)
        nxt[0] += 1
        return True

    def issue_until(target):
        while nxt[0] < len(loads) and len(issued) + ninstr(loads[nxt[0]]) <= target and \
                len(issued) + ninstr(loads[nxt[0]]) - done_upto[0] <= 15:
            if not issue_one():
                break

    issue_until(LEAD)
    seen = set()
    for n, (t, ka, kb) in enumerate(mf):
        need = 0
        for k in (ka, kb):
            while k not in slot:
                assert issue_one()
            need = max(need, max(i for i, x in enumerate(issued) if x == k) + 1)
        if need > done_upto[0]:
            a('s_waitcnt lgkmcnt(%d)' % (len(issued) - need))
            done_upto[0] = need
        a('v_mfma_f32_16x16x32_bf16 %s, %s, %s, %s' % (Q(acc[t]), Q(slot[ka]), Q(slot[kb]), Q(acc[t]) if t in seen else '0'))
        seen.add(t)
        for k in (ka, kb):
            if last[k] == n:
                free.append(slot[k])
        issue_until(int(_m.ceil((n + 1) * R)) + LEAD)
    for n, t in enumerate(sorted(tiles)):
        a('v_cvt_pk_bf16_f32 v%d, v%d, v%d' % (20 + 2 * n, acc[t], acc[t] + 1))
        a('v_cvt_pk_bf16_f32 v%d, v%d, v%d' % (21 + 2 * n, acc[t] + 2, acc[t] + 3))
        a('ds_write_b64 v37, %s offset:%d' % (P(20 + 2 * n), 512 * t))
    bits = sum(1 << (2 * q) for q in set(t // 2 for t in tiles)) << B_Y
    a('s_lshl_b32 s51, %d, s43' % bits)
    set_status('s51', 'v160', 'v28')
    stamp(7)
    finish()


a('s_setprio 1')
a('s_lshl_b32 s51, %d, s43' % (0x5 << B_KC))
a('s_or_b32 s51, s51, %d' % (15 << B_U))
wait_status('s51', 'v160', 'v20')
stamp(6)
a('s_cmp_eq_u32 s50, 0')
a('s_cbranch_scc0 L_conv_y')
conv_role([7, 6, 1, 0])
a.label('L_conv_y')
conv_role([5, 4, 3, 2])

a.label('L_io')
W8 = 20
CH = [22, 24, 26, 28]
T = [40, 42, 44, 46]
cexp_multi([(W8, 8.0, 40), (CH[1], 64.0, 42), (CH[2], 128.0, 44), (CH[3], 192.0, 46)], 10, 11)
a('v_mov_b32 v50, 0x00003f80')
a('ds_write_b32 v62, v50 offset:%d' % (32 * KTS))
kt_write(33, W8, 51, False)
for q in range(1, 4):
    kt_write(32 + 8 * q, CH[q], 51 + q, False)
POLLAT = opt('pollat', 8)


def io_poll_loads():
    a('global_load_dwordx4 v[112:115], v138, s[40:41] sc1')
    a('global_load_dwordx4 v[116:119], v138, s[40:41] offset:128 sc1')
    a('global_load_dwordx4 v[120:123], v138, s[40:41] offset:256 sc1')
    a('global_load_dwordx4 v[124:127], v137, s[40:41] sc1')
    a('global_load_dwordx4 v[128:131], v137, s[40:41] offset:16 sc1')
    a('global_load_dwordx4 v[132:135], v137, s[40:41] offset:32 sc1')


def io_first_poll():
    stamp(4)
    io_poll_loads()
    a('s_mov_b64 exec, 1')
    a('v_mov_b32 v56, 256')
    a('ds_add_u32 v160, v56 offset:%d' % (LNW - STATUS))
    a('s_mov_b64 exec, -1')


for n in range(1, 8):
    jobs = []
    if n >= 2:
        jobs.append((CH[0], W8 if n == 2 else CH[0], W8, T[0]))
    for q in range(1, 4):
        jobs.append((CH[q], CH[q], W8, T[q]))
    cmul_multi(jobs)
    for q in range(4):
        if q == 0 and n < 2:
            continue
        kt_write(32 + 8 * q + n, CH[q], 50 + q, False)
    if n == POLLAT:
        io_first_poll()
a('s_lshl_b32 s51, %d, s4' % (1 << B_KT))
set_status('s51', 'v160', 'v50')
stamp(3)
a('s_sub_u32 s53, s4, 4')
a('s_lshl_b32 s54, s49, 16')
a('s_and_b32 s55, s49, s52')
a('s_lshl_b32 s58, %d, s53' % (1 << B_U))
a('v_mov_b32 v7, s58')
a('s_setprio 2')
if POLLAT > 7:
    if opt('sleepS', 0):
        a('s_sleep %d' % opt('sleepS', 0))
    io_first_poll()
a('s_mov_b32 s59, 0')
a.label('L_io_poll_loop')
a('s_add_u32 s59, s59, 1')
a('s_waitcnt vmcnt(3)')
a('v_cmp_ne_u32 vcc, s5, v115')
a('v_cmp_ne_u32 s[60:61], s5, v119')
a('v_cmp_ne_u32 s[62:63], s5, v123')
XR = [112, 113, 114, 116, 117, 118, 120, 121]
for i in range(8):
    a('v_lshlrev_b32 v%d, 16, v%d' % (40 + 2 * i, XR[i]))
    a('v_and_b32 v%d, s52, v%d' % (41 + 2 * i, XR[i]))
a('s_or_b64 vcc, vcc, s[60:61]')
a('s_or_b64 vcc, vcc, s[62:63]')
a('s_waitcnt vmcnt(0)')
a('v_cmp_ne_u32 s[60:61], s5, v127')
a('v_cmp_ne_u32 s[62:63], s5, v131')
a('s_or_b64 vcc, vcc, s[60:61]')
a('v_cmp_ne_u32 s[60:61], s5, v135')
a('s_or_b64 vcc, vcc, s[62:63]')
a('s_or_b64 vcc, vcc, s[60:61]')
if DEBUG:
    l = L('fs')
    a('s_cmp_eq_u32 s59, 1')
    a('s_cbranch_scc0 %s' % l)
    stamp(10)
    a.label(l)
a('s_and_b64 exec, exec, vcc')
a('s_cbranch_execz L_io_poll_done')
a('s_sleep 2')
io_poll_loads()
a('s_cmp_lt_u32 s59, %d' % POLL_MAX)
a('s_cbranch_scc1 L_io_poll_loop')
a('s_waitcnt vmcnt(0)')
a.label('L_io_poll_done')
if DEBUG:
    a('s_mov_b32 s96, s59')
a('s_mov_b64 exec, -1')
stamp(5)
MS = [124, 125, 126, 128, 129, 130, 132, 133]
for i in range(8):
    a('v_and_b32 v%d, s52, v%d' % (144 + 2 * i, MS[i]))
    a('v_lshlrev_b32 v%d, 16, v%d' % (80 + 2 * i, MS[i]))
for i in range(8):
    a('v_rcp_f32 v%d, v%d' % (144 + 2 * i, 144 + 2 * i))
    a('v_pk_add_f32 %s, %s, %s op_sel_hi:[1,0] neg_lo:[0,1] neg_hi:[0,1]' % (P(96 + 2 * i), P(40 + 2 * i), P(80 + 2 * i)))
if opt('round1', 0):
    for i in range(8):
        a('v_cvt_pk_bf16_f32 v%d, v%d, v%d' % (56 + i, 96 + 2 * i, 97 + 2 * i))
    for i in range(8):
        a('v_lshlrev_b32 v%d, 16, v%d' % (96 + 2 * i, 56 + i))
        a('v_and_b32 v%d, s52, v%d' % (97 + 2 * i, 56 + i))
for i in range(8):
    a('v_pk_mul_f32 %s, %s, %s op_sel_hi:[1,0]' % (P(96 + 2 * i), P(96 + 2 * i), P(144 + 2 * i)))
for c in range(2):
    for u in range(4):
        a('v_cvt_pk_bf16_f32 v%d, v%d, v%d' % (64 + 4 * c + u, 96 + 2 * (7 - 2 * u) + c, 96 + 2 * (6 - 2 * u) + c))
    a('ds_write_b128 v139, %s offset:%d' % (Q(64 + 4 * c), c * (UB[1] - UB[0])))
a('s_mov_b64 exec, 1')
a('ds_or_b32 v160, v7')
a('s_mov_b64 exec, -1')
stamp(6)
for i in range(8):
    for c in range(2):
        src = 64 + 4 * c + (7 - i) // 2
        if i % 2 == 1:
            a('v_lshlrev_b32 v%d, 16, v%d' % (80 + 2 * i + c, src))
        else:
            a('v_and_b32 v%d, s52, v%d' % (80 + 2 * i + c, src))
for i in range(8):
    a('v_pk_mul_f32 %s, %s, s[54:55]' % (P(96 + 2 * i), P(80 + 2 * i)))
    a('v_pk_add_f32 %s, %s, %s' % (P(40 + 2 * i), P(40 + 2 * i), P(80 + 2 * i)))
for i in range(8):
    a('v_cvt_pk_bf16_f32 v%d, v%d, v%d' % (20 + i, 96 + 2 * i, 97 + 2 * i))
for i in range(8):
    a('v_lshlrev_b32 v%d, 16, v%d' % (96 + 2 * i, 20 + i))
    a('v_and_b32 v%d, s52, v%d' % (97 + 2 * i, 20 + i))
for i in range(8):
    a('v_pk_add_f32 %s, %s, %s' % (P(40 + 2 * i), P(40 + 2 * i), P(96 + 2 * i)))
a('s_not_b32 s7, s5')
for j in range(3):
    a('v_mov_b32 v%d, s7' % (23 + 4 * j))
a('s_lshl_b32 s7, s53, 1')
a('s_lshl_b32 s51, %d, s7' % (3 << B_Y))
a('s_setprio 0')
wait_status('s51', 'v160', 'v7', sleep=opt('sleepY', 0))
a('s_setprio 2')
stamp(7)
a('ds_read_b128 v[64:67], v139 offset:%d' % (YB[0] - UB[0] - 512))
a('ds_read_b128 v[68:71], v139 offset:%d' % (YB[1] - UB[0] - 512))
a('s_waitcnt lgkmcnt(0)')
for j in range(3):
    toks = [i for i in range(3 * j, min(3 * j + 3, 8))]
    for i in toks:
        for c in range(2):
            src = 64 + 4 * c + i // 2
            if i % 2 == 0:
                a('v_lshlrev_b32 v%d, 16, v%d' % (80 + 2 * i + c, src))
            else:
                a('v_and_b32 v%d, s52, v%d' % (80 + 2 * i + c, src))
    for i in toks:
        a('v_pk_add_f32 %s, %s, %s' % (P(80 + 2 * i), P(80 + 2 * i), P(40 + 2 * i)))
    for i in toks:
        a('v_cvt_pk_bf16_f32 v%d, v%d, v%d' % (20 + i + i // 3, 80 + 2 * i, 81 + 2 * i))
    a('global_store_dwordx4 v138, %s, s[40:41] offset:%d sc1' % (Q(20 + 4 * j), 128 * j))
stamp(8)
a('s_setprio 0')
wait_status('%d' % (1 << B_IDX), 'v160', 'v7')
a('ds_read_b32 v7, v160 offset:%d' % (IDXW - STATUS))
a('s_waitcnt lgkmcnt(0)')
a('v_readfirstlane_b32 s60, v7')
a('s_lshr_b32 s7, s60, 9')
a('s_cmp_eq_u32 s7, s53')
a('s_cbranch_scc0 L_io_end')
a('s_lshr_b32 s61, s60, 3')
a('s_and_b32 s60, s60, 7')
a('s_lshl_b64 exec, 1, s61')
a('v_mov_b32 v7, %d' % (1 << B_T1))
for i in range(8):
    l = L('t1')
    a('s_cmp_eq_u32 s60, %d' % i)
    a('s_cbranch_scc0 %s' % l)
    a('ds_write_b64 v160, %s offset:%d' % (P(80 + 2 * i), T1X - STATUS))
    a.label(l)
a('ds_or_b32 v160, v7')
a('s_mov_b64 exec, -1')
a.label('L_io_end')
finish()

a.label('L_special')
a('s_getpc_b64 s[42:43]')
a.label('L_pc')
a('s_sub_u32 s42, s42, L_pc-%s' % NAME)
a('s_subb_u32 s43, s43, 0')
a('s_bfe_u32 s7, s2, 0x30003')
a('s_lshl_b32 s7, s7, 12')
a('v_and_b32 v2, 15, v1')
a('s_sub_u32 s53, s4, 8')
a('s_lshl_b32 s53, s53, 11')
a('s_add_u32 s7, s7, s53')
a('v_lshl_add_u32 v2, v2, 7, s7')
if opt('fullpf', 0):
    a('v_subrev_u32 v2, 512, v0')
    a('v_lshlrev_b32 v2, 7, v2')
a('v_min_u32 v2, L_end-%s-4, v2' % NAME)
a('global_load_dword v3, v2, s[42:43]')
a('v_mov_b32 v160, %d' % STATUS)
a('s_mov_b32 s52, 0xffff0000')
a('s_cmp_eq_u32 s4, 8')
a('s_cbranch_scc1 L_moe')


def have_epoch():
    a('s_waitcnt lgkmcnt(0)')
    a('s_mul_i32 s5, s6, 0x9E3779B1')
    a('s_add_u32 s5, s5, 0x7F4A7C15')
    a('s_mov_b64 exec, 1')
    a('v_mov_b32 v13, 16')
    a('ds_add_u32 v160, v13 offset:%d' % (LNW - STATUS))
    a('s_mov_b64 exec, -1')


a('s_and_b32 s50, s3, 31')
a('s_lshr_b32 s51, s3, 5')
a('s_lshl_b32 s7, s50, 16')
a('s_lshl_b32 s53, s51, 7')
a('s_add_u32 s7, s7, s53')
a('v_and_b32 v6, 7, v1')
a('v_lshrrev_b32 v7, 3, v1')
a('v_lshl_add_u32 v4, v7, 4, s7')
a('v_lshl_add_u32 v4, v6, 13, v4')
a('v_add_u32 v5, 4096, v4')
a('s_waitcnt lgkmcnt(0)')
if opt('tlast', 0):
    a('s_barrier')
RW = lambda i: 64 + 4 * i
GR = lambda rho, i: 16 + 12 * rho + i + i // 3
for i in range(8):
    a('global_load_dwordx4 %s, %s, s[8:9] offset:%d%s' % (Q(RW(i)), 'v4' if i < 4 else 'v5', 1024 * (i % 4), NTT))
a('s_load_dword s6, s[40:41], 0')
if not opt('tlast', 0):
    a('s_barrier')
a('s_mul_i32 s7, s51, %d' % (32 * 12288))
a('s_mul_i32 s53, s50, 384')
a('s_add_u32 s7, s7, s53')
a('s_add_u32 s7, s7, %d' % WS_XT)
a('s_mov_b32 s53, %d' % (4 * 12288))
a('v_lshl_add_u32 v8, v6, 4, s7')
a('v_mad_u32_u24 v8, v7, s53, v8')
for rho in range(1, 4):
    a('v_add_u32 v%d, %d, v8' % (8 + rho, rho * 12288))
have_epoch()
for rho in range(4):
    for j in range(3):
        a('v_mov_b32 v%d, s5' % (16 + 12 * rho + 4 * j + 3))
stamp(1)
a('s_setprio 3')
for j in range(3):
    toks = [i for i in range(3 * j, min(3 * j + 3, 8))]
    if j == 0:
        a('s_waitcnt vmcnt(0)')
        stamp(2)
        if opt('wtrig', 0):
            a('s_mov_b64 exec, 1')
            a('v_mov_b32 v13, 0x10000')
            a('ds_add_u32 v160, v13 offset:%d' % (LNW - STATUS))
            a('s_mov_b64 exec, -1')
    for rho in range(4):
        for i in toks:
            a('v_mov_b32 v%d, v%d' % (GR(rho, i), RW(i) + rho))
        a('global_store_dwordx4 v%d, %s, s[40:41] offset:%d sc1' % (8 + rho, Q(16 + 12 * rho + 4 * j), 128 * j))
stamp(3)
if opt('pull', 0):
    for rho in range(4):
        for j in range(3):
            a('global_load_dword v%d, v%d, s[40:41] offset:%d sc1' % (96 + 3 * rho + j, 8 + rho, 128 * j))
if True:
    a('s_mov_b64 exec, 1')
    a('v_mov_b32 v13, 64')
    a('ds_add_u32 v160, v13 offset:%d' % (LNW - STATUS))
    a('s_mov_b64 exec, -1')
a('s_setprio 0')
a('s_not_b32 s5, s5')
a('s_lshr_b32 s7, s50, 3')
a('s_lshl_b32 s7, s7, 1')
a('s_lshl_b32 s53, %d, s7' % (3 << B_Y))
a('s_or_b32 s53, s53, %d' % (1 << B_IDX))
wait_status('s53', 'v160', 'v13', sleep=2)
a('ds_read_b32 v13, v160 offset:%d' % (IDXW - STATUS))
a('s_waitcnt lgkmcnt(0)')
a('v_readfirstlane_b32 s60, v13')
a('s_lshr_b32 s7, s60, 6')
a('s_bfe_u32 s61, s60, 0x30003')
a('s_and_b32 s60, s60, 7')
a('s_cmp_eq_u32 s7, s50')
a('s_cselect_b32 s60, s60, 8')
a('s_mov_b32 s62, 0x01010101')
a('s_mov_b32 s63, 0x01010101')
a('s_lshl_b64 s[62:63], s[62:63], s61')
a('s_not_b64 s[62:63], s[62:63]')
a('s_setprio 3')
stamp(4)
a('s_sleep %d' % opt('sleepO', 26))
a('s_mov_b32 s59, 0')
a.label('L_ot_loop')
for rho in range(4):
    for j in range(3):
        a('global_load_dwordx4 %s, v%d, s[40:41] offset:%d sc1' % (Q(16 + 12 * rho + 4 * j), 8 + rho, 128 * j))
a('s_add_u32 s59, s59, 1')
a('s_waitcnt vmcnt(0)')
a('v_cmp_ne_u32 vcc, s5, v19')
for n in range(1, 12):
    a('v_cmp_ne_u32 s[56:57], s5, v%d' % (19 + 4 * n))
    a('s_or_b64 vcc, vcc, s[56:57]')
a('s_and_b64 exec, exec, vcc')
a('s_cbranch_execz L_ot_done')
a('s_sleep 2')
a('s_cmp_lt_u32 s59, %d' % POLL_MAX)
a('s_cbranch_scc1 L_ot_loop')
a.label('L_ot_done')
if DEBUG:
    a('s_mov_b32 s96, s59')
a('s_mov_b64 exec, -1')
stamp(5)
for i in range(8):
    for rho in range(4):
        a('v_mov_b32 v%d, v%d' % (RW(i) + rho, GR(rho, i)))
    a('s_cmp_eq_u32 s60, %d' % i)
    a('s_cselect_b64 exec, s[62:63], -1')
    a('global_store_dwordx4 %s, %s, s[36:37] offset:%d%s' % ('v4' if i < 4 else 'v5', Q(RW(i)), 1024 * (i % 4), ['', ' sc1', ' nt', ' sc0 sc1'][opt('ostore', 0)]))
    a('s_mov_b64 exec, -1')
finish()

a.label('L_moe')
a('s_setprio 3')
for k in range(8, 12):
    a('v_mov_b32 v%d, 0' % k)
a('v_and_b32 v6, 31, v1')
a('v_lshlrev_b32 v6, 4, v6')
a('v_lshrrev_b32 v7, 5, v1')
a('s_movk_i32 s51, %d' % (UB[1] - UB[0]))
a('v_mad_u32_u24 v6, v7, s51, v6')
a('ds_write_b128 v6, v[8:11] offset:%d' % UB[0] if UB[0] < 65536 else '')
if UB[0] >= 65536:
    a('v_add_u32 v6, %d, v6' % UB[0])
    a('ds_write_b128 v6, v[8:11]')
a('v_lshrrev_b32 v6, 1, v1')
a('v_and_b32 v7, 1, v1')
a('s_movk_i32 s51, %d' % KCS)
a('v_mul_u32_u24 v6, s51, v6')
a('v_lshl_add_u32 v6, v7, 4, v6')
a('v_add_u32 v6, %d, v6' % KC[0])
a('v_mov_b32 v7, %d' % STATUS)
a('v_cmp_gt_u32 vcc, 16, v1')
a('v_cndmask_b32 v6, v7, v6, vcc')
a('ds_write_b128 v6, v[8:11]')
a('ds_write_b128 v7, v[8:11] offset:16')
a('s_lshr_b32 s50, s3, 3')
a('s_and_b32 s51, s3, 7')
a('v_and_b32 v4, 15, v1')
a('v_lshrrev_b32 v5, 4, v1')
a('s_mul_i32 s7, s51, %d' % (64 * 3584))
a('s_lshl_b32 s53, s50, 7')
a('s_add_u32 s7, s7, s53')
a('v_lshl_add_u32 v6, v4, 3, s7')
a('s_movk_i32 s53, %d' % (8 * 3584))
a('v_mad_u32_u24 v6, v5, s53, v6')
a('s_lshl_b32 s7, s50, 16')
a('s_lshl_b32 s53, s51, 7')
a('s_add_u32 s7, s7, s53')
a('v_lshl_add_u32 v7, v4, 3, s7')
a('v_lshl_add_u32 v7, v5, 13, v7')
a('s_waitcnt lgkmcnt(0)')
if opt('stouch', 0):
    for n, p in enumerate((10, 12, 14, 16, 18, 20, 30, 32, 34, 36)):
        a('s_load_dword s%d, s[%d:%d], 0' % (89 + n % 5, p, p + 1))
    a('s_load_dword s89, s[40:41], 0x3f0000' if False else '')
a('s_load_dword s6, s[40:41], 0')
for base, ptr, size in ((44, 30, 512 * 3584), (56, 32, 512 * 3584), (60, 34, 1792 * 1024)):
    a('s_mov_b32 s%d, s%d' % (base, ptr))
    a('s_mov_b32 s%d, s%d' % (base + 1, ptr + 1))
    a('s_mov_b32 s%d, %d' % (base + 2, size))
    a('s_mov_b32 s%d, 0x00020000' % (base + 3))
a('v_lshlrev_b32 v8, 4, v1')
a('v_add_u32 v8, %d, v8' % WS_KEYS)
a('s_barrier')
RAW = {'g0': 16, 'u0': 32, 'g1': 48, 'u1': 64, 'd0': 80, 'd1': 96}
TRN = {'g0': 112, 'u0': 16, 'g1': 32, 'u1': 48, 'd0': 16, 'd1': 32}


def gate_up_loads(h):
    for m in range(8):
        a('s_mov_b32 s53, %d' % ((32 * h + m) * 3584))
        a('buffer_load_dwordx2 %s, v6, s[44:47], s53 offen%s' % (P(RAW['g%d' % h] + 2 * m), NTW))
        a('buffer_load_dwordx2 %s, v6, s[56:59], s53 offen%s' % (P(RAW['u%d' % h] + 2 * m), NTW))


def down_loads():
    for h in range(2):
        for m in range(8):
            if m % 4 == 0:
                a('s_mov_b32 s53, %d' % ((32 * h + m) * 1024))
            a('buffer_load_dwordx2 %s, v7, s[60:63], s53 offen offset:%d%s' % (P(RAW['d%d' % h] + 2 * m), 1024 * (m % 4), NTW))


def transpose_block(b):
    for u in range(4):
        for dw in range(2):
            hi, lo = RAW[b] + 2 * (2 * u + 1) + dw, RAW[b] + 2 * (2 * u) + dw
            a('v_perm_b32 v%d, v%d, v%d, s92' % (TRN[b] + 4 * (2 * dw) + u, hi, lo))
            a('v_perm_b32 v%d, v%d, v%d, s93' % (TRN[b] + 4 * (2 * dw + 1) + u, hi, lo))


def wait_lnw(val, mask=None):
    l = L('lnw')
    a.label(l)
    a('s_sleep 1')
    a('ds_read_b32 v13, v160 offset:%d' % (LNW - STATUS))
    a('s_sub_u32 s88, s88, 1')
    a('s_cbranch_scc1 L_exit')
    a('s_waitcnt lgkmcnt(0)')
    a('v_readfirstlane_b32 s7, v13')
    a('s_and_b32 s7, s7, %d' % (mask if mask else 255 if val < 256 else 0xffff))
    a('s_cmp_ge_u32 s7, %d' % val)
    a('s_cbranch_scc0 %s' % l)


def key_loads():
    for k in range(4):
        a('global_load_dwordx4 %s, v8, s[40:41] offset:%d sc1' % (Q(128 + 4 * k), 1024 * k))


if opt('sleepW', 4):
    a('s_sleep %d' % opt('sleepW', 4))
if opt('touch', 1):
    a('s_lshl_b32 s7, s3, 13')
    a('v_mov_b32 v9, s7')
    a('global_load_dword v2, v9, s[36:37]')
a('s_lshr_b32 s7, s2, 3')
a('s_lshl_b32 s7, s7, 9')
a('s_add_u32 s7, s7, %d' % WS_STATS)
a('v_and_b32 v9, 3, v1')
a('v_lshl_add_u32 v9, v9, 7, s7')
if opt('touchS', 0):
    a('global_load_dword v2, v9, s[40:41] sc1')
if opt('touch', 1):
    a('v_mov_b32 v9, 0x3f0000')
    a('global_load_dword v2, v9, s[40:41]')
if opt('touchH', 1):
    a('s_lshl_b32 s7, s3, 10')
    a('s_add_u32 s7, s7, %d' % WS_HOPA)
    a('v_and_b32 v9, 7, v1')
    a('v_lshl_add_u32 v9, v9, 7, s7')
    a('s_lshl_b32 s7, s3, 9')
    a('s_add_u32 s7, s7, %d' % WS_HOPB)
    a('v_and_b32 v10, 3, v1')
    a('v_lshl_add_u32 v10, v10, 7, s7')
    a('v_cmp_gt_u32 vcc, 8, v1')
    a('v_cndmask_b32 v9, v10, v9, vcc')
    a('global_load_dword v2, v9, s[40:41] sc1')
have_epoch()
a('s_mov_b32 s92, 0x05040100')
a('s_mov_b32 s93, 0x07060302')
a('s_lshl_b32 s7, s3, 10')
a('s_add_u32 s7, s7, %d' % WS_HOPA)
a('v_lshl_add_u32 v161, v1, 4, s7')
a('s_lshl_b32 s7, s50, 13')
a('s_add_u32 s7, s7, %d' % WS_HOPA)
a('v_lshl_add_u32 v14, v1, 4, s7')
a('v_add_u32 v15, 4096, v14')
a('v_lshlrev_b32 v162, 1, v1')
a('v_add_u32 v162, %d, v162' % XS)
a('v_lshl_add_u32 v163, v4, 2, v5')
a('v_lshlrev_b32 v163, 1, v163')
a('v_add_u32 v163, %d, v163' % HS)
a('v_lshlrev_b32 v164, 4, v5')
a('v_add_u32 v164, %d, v164' % HS)
a('s_lshl_b32 s7, s3, 9')
a('s_add_u32 s7, s7, %d' % WS_HOPB)
a('v_lshl_add_u32 v165, v4, 1, v5')
a('v_lshl_add_u32 v165, v165, 4, s7')
a('s_lshr_b32 s7, s3, 5')
a('s_lshl_b32 s7, s7, 9')
a('s_and_b32 s53, s3, 31')
a('s_lshl_b32 s53, s53, 4')
a('s_add_u32 s7, s7, s53')
a('s_add_u32 s7, s7, %d' % WS_HOPB)
a('v_lshl_add_u32 v166, v1, 12, s7')
a('s_lshl_b32 s7, s51, 7')
a('v_lshl_add_u32 v167, v1, 1, s7')
a('s_mul_i32 s7, s3, 48')
a('s_add_u32 s7, s7, %d' % WS_STATS)
a('v_lshl_add_u32 v144, v1, 4, s7')
a('s_lshl_b32 s7, s3, 4')
a('s_add_u32 s7, s7, %d' % WS_KEYS)
a('v_mov_b32 v145, s7')
a('s_mov_b64 s[42:43], 8')
a('v_cndmask_b32 v144, v144, v145, s[42:43]')
a('v_mul_u32_u24 v145, 12, v1')
a('v_min_u32 v145, 24, v145')
a('v_add_u32 v145, %d, v145' % STG)
a('v_mov_b32 v146, %d' % BEST)
a('v_cndmask_b32 v145, v145, v146, s[42:43]')
a('v_mov_b32 v151, s5')
a.label('L_pub_wait')
a('ds_read_b32 v13, v160 offset:%d' % (LNW - STATUS))
a('s_sub_u32 s88, s88, 1')
a('s_cbranch_scc1 L_exit')
a('s_waitcnt lgkmcnt(0)')
a('v_readfirstlane_b32 s7, v13')
a('s_and_b32 s7, s7, 63')
a('s_cmp_eq_u32 s7, 40')
a('s_cbranch_scc0 L_pub_wait')
a('ds_read2_b32 v[148:149], v145 offset0:0 offset1:1')
a('ds_read_b32 v150, v145 offset:8')
a('s_waitcnt lgkmcnt(0)')
a('s_mov_b64 exec, 15')
a('global_store_dwordx4 v144, v[148:151], s[40:41] sc1')
a('s_mov_b64 exec, -1')
if opt('st8', 0) == 3:
    stamp(10)
a('s_cmp_ge_u32 s3, 224')
a('s_cbranch_scc0 L_moe_has_w')
wait_lnw(104 + 1024)
key_loads()
a('s_waitcnt vmcnt(0)')
a('s_branch L_key_check')
a.label('L_moe_has_w')
TWO = opt('twobatch', 0)
DE = opt('downearly', 0)
if DE:
    a('s_sleep %d' % DE)
    down_loads()
AFTER = opt('wafter', 0)
if AFTER:
    wait_lnw(104 + 1024)
    key_loads()
    gate_up_loads(0)
    gate_up_loads(1)
    stamp(1)
    a('s_waitcnt vmcnt(32)')
else:
    WT = opt('wtrig', 0)
    if WT == 0:
        wait_lnw(104)
        gate_up_loads(0)
    elif WT == 1:
        wait_lnw(0x10000, 0x10000)
        gate_up_loads(0)
    else:
        wait_lnw(1, 15)
        gate_up_loads(0)
        wait_lnw(0x10000, 0x10000)
    if not TWO:
        gate_up_loads(1)
    stamp(1)
    wait_lnw(104 + 1024)
    key_loads()
    if TWO:
        gate_up_loads(1)
    a('s_waitcnt vmcnt(%d)' % (20 if TWO else 4 + 16))
    stamp(2)
    transpose_block('g0')
    transpose_block('u0')
    if not TWO:
        a('s_waitcnt vmcnt(4)')
        transpose_block('g1')
        transpose_block('u1')
    a('s_waitcnt vmcnt(%d)' % (16 if TWO else 0))
a.label('L_key_check')
wait_status('%d' % (0xff << B_KT), 'v160', 'v13')
stamp(3)
a('s_mov_b32 s53, 0')
a.label('L_key_loop')
a('v_cmp_ne_u32 vcc, s5, v131')
a('v_cmp_ne_u32 s[42:43], s5, v135')
a('s_or_b64 vcc, vcc, s[42:43]')
a('v_cmp_ne_u32 s[42:43], s5, v139')
a('s_or_b64 vcc, vcc, s[42:43]')
a('v_cmp_ne_u32 s[42:43], s5, v143')
a('s_or_b64 vcc, vcc, s[42:43]')
a('s_and_b64 exec, exec, vcc')
a('s_cbranch_execz L_key_done')
a('s_sleep 1')
key_loads()
a('s_add_u32 s53, s53, 1')
a('s_cmp_lt_u32 s53, %d' % POLL_MAX)
a('s_waitcnt vmcnt(0)')
a('s_cbranch_scc1 L_key_loop')
a.label('L_key_done')
if DEBUG:
    a('s_mov_b32 s96, s53')
a('s_mov_b64 exec, -1')
a('v_max3_u32 v2, v129, v133, v137')
a('v_max_u32 v2, v2, v141')
reduce64('v_max_u32', ['v2'])
a('v_mov_b32 v9, 0')
a('v_readlane_b32 s54, v2, 63')
a('s_and_b32 s55, s54, 0xffff')
a('s_sub_u32 s55, 2047, s55')
a('s_and_b32 s55, s55, 2047')
a('s_lshl_b32 s7, s55, 10')
a('v_add_u32 v3, s7, v167')
a('global_load_short_d16_hi v9, v3, s[8:9]')
stamp(4)
a('v_mov_b32 v10, s55')
a('v_mov_b32 v11, %d' % (1 << B_IDX))
a('s_mov_b64 exec, 1')
a('ds_write_b32 v160, v10 offset:%d' % (IDXW - STATUS))
a('ds_or_b32 v160, v11')
a('s_mov_b64 exec, -1')
if not DE:
    a('s_cmp_ge_u32 s3, 224')
    a('s_cbranch_scc1 L_no_down')
    down_loads()
    a.label('L_no_down')
a('v_cmp_eq_u32 vcc, s54, v133')
a('v_cmp_eq_u32 s[42:43], s54, v137')
a('v_cmp_eq_u32 s[44:45], s54, v141')
a('v_cmp_eq_u32 s[46:47], s54, v129')
a('v_cndmask_b32 v128, v128, v132, vcc')
a('v_cndmask_b32 v128, v128, v136, s[42:43]')
a('v_cndmask_b32 v128, v128, v140, s[44:45]')
a('s_or_b64 vcc, vcc, s[42:43]')
a('s_or_b64 s[44:45], s[44:45], s[46:47]')
a('s_or_b64 vcc, vcc, s[44:45]')
a('s_ff1_i32_b64 s7, vcc')
a('s_and_b32 s7, s7, 63')
a('v_readlane_b32 s89, v128, s7')
a('s_and_b32 s7, s54, s52')
a('s_not_b32 s42, s7')
a('s_and_b32 s42, s42, s52')
a('s_xor_b32 s43, s7, 0x80000000')
a('s_bitcmp1_b32 s7, 31')
a('s_cselect_b32 s7, s43, s42')
a('v_mov_b32 v12, s7')
a('v_mul_f32 v12, %s, v12' % f32(-LOG2E))
a('v_exp_f32 v12, v12')
a('v_add_f32 v12, 1.0, v12')
a('v_rcp_f32 v12, v12')
a('v_cvt_pk_bf16_f32 v12, v12, v12')
a('v_and_b32 v12, s52, v12')
a('s_and_b32 s90, s89, s52')
a('s_lshl_b32 s89, s89, 16')
a('v_rcp_f32 v13, s90')
a('s_mov_b32 s42, 0xffff0000')
a('s_mov_b32 s43, 0xffff0000')
a('s_mov_b32 s44, 0')
a('s_mov_b32 s45, -1')
a('s_cmp_ge_u32 s3, 224')
a('s_cbranch_scc1 L_moe_idle')
if AFTER:
    a('s_waitcnt vmcnt(%d)' % (16 + (1 if DE else 17)))
    stamp(2)
    transpose_block('g0')
    transpose_block('u0')
if TWO or AFTER:
    a('s_waitcnt vmcnt(%d)' % (1 if DE else 17))
    transpose_block('g1')
    transpose_block('u1')
a('v_mov_b32 v74, 0')
a('v_mov_b32 v75, s5')
a('s_waitcnt vmcnt(%d)' % (0 if DE else 16))
stamp(5)
a('v_subrev_f32 v9, s89, v9')
if opt('round1', 0):
    a('v_cvt_pk_bf16_f32 v9, v9, v9')
    a('v_and_b32 v9, s52, v9')
a('v_mul_f32 v9, v9, v13')
a('v_cvt_pk_bf16_f32 v9, v9, v9')
a('ds_write_b16 v162, v9')
a('ds_read_b128 v[64:67], v164 offset:%d' % (XS - HS))
a('ds_read_b128 v[68:71], v164 offset:%d' % (XS - HS + 64))
a('s_waitcnt lgkmcnt(0)')
for mat in ('g', 'u'):
    for h in range(2):
        for f in range(4):
            d = 128 + (16 if mat == 'u' else 0) + 4 * f
            a('v_mfma_f32_16x16x32_bf16 %s, %s, %s, %s' % (Q(d), Q(64 + 4 * h), Q(TRN[mat + str(h)] + 4 * f), '0' if h == 0 else Q(d)))
for base, dst in ((128, 72), (144, 73)):
    a('v_cndmask_b32 v%d, v%d, v%d, s[42:43]' % (base, base, base + 4))
    a('v_cndmask_b32 v%d, v%d, v%d, s[42:43]' % (base + 8, base + 8, base + 12))
    a('v_cndmask_b32 v%d, v%d, v%d, s[44:45]' % (dst, base, base + 8))
a('global_store_dwordx4 v161, v[72:75], s[40:41] sc1')
stamp(6)
a('s_waitcnt vmcnt(0)')
if opt('st8', 0) != 3:
    stamp(10)
transpose_block('d0')
transpose_block('d1')
if opt('sleepA', 2):
    a('s_sleep %d' % opt('sleepA', 2))
a('s_mov_b32 s53, 0')
a.label('L_hopa_loop')
for k in range(8):
    a('global_load_dwordx4 %s, %s, s[40:41] offset:%d sc1' % (Q(128 + 4 * k), 'v14' if k < 4 else 'v15', 1024 * (k % 4)))
a('s_add_u32 s53, s53, 1')
a('s_waitcnt vmcnt(0)')
a('v_cmp_ne_u32 vcc, s5, v131')
for k in range(1, 8):
    a('v_cmp_ne_u32 s[56:57], s5, v%d' % (131 + 4 * k))
    a('s_or_b64 vcc, vcc, s[56:57]')
a('s_and_b64 exec, exec, vcc')
a('s_cbranch_execz L_hopa_done')
a('s_sleep 2')
a('s_cmp_lt_u32 s53, %d' % POLL_MAX)
a('s_cbranch_scc1 L_hopa_loop')
a.label('L_hopa_done')
if DEBUG:
    a('s_mov_b32 s97, s53')
a('s_mov_b64 exec, -1')
stamp(7)
for k in range(4):
    a('v_pk_add_f32 %s, %s, %s' % (P(128 + 8 * k), P(128 + 8 * k), P(132 + 8 * k)))
a('v_pk_add_f32 v[128:129], v[128:129], v[136:137]')
a('v_pk_add_f32 v[144:145], v[144:145], v[152:153]')
a('v_pk_add_f32 v[128:129], v[128:129], v[144:145]')
a('v_cvt_pk_bf16_f32 v2, v128, v129')
a('v_lshlrev_b32 v3, 16, v2')
a('v_and_b32 v2, s52, v2')
a('v_mul_f32 v10, %s, v3' % f32(-LOG2E))
a('v_exp_f32 v10, v10')
a('v_add_f32 v10, 1.0, v10')
a('v_rcp_f32 v10, v10')
a('v_mul_f32 v10, v3, v10')
a('v_cvt_pk_bf16_f32 v10, v10, v10')
a('v_and_b32 v10, s52, v10')
a('v_mul_f32 v10, v10, v2')
a('v_cvt_pk_bf16_f32 v10, v10, v10')
a('ds_write_b16 v163, v10')
a('ds_read_b128 v[64:67], v164')
a('ds_read_b128 v[68:71], v164 offset:64')
a('s_waitcnt lgkmcnt(0)')
for h in range(2):
    for f in range(4):
        d = 128 + 4 * f
        a('v_mfma_f32_16x16x32_bf16 %s, %s, %s, %s' % (Q(d), Q(64 + 4 * h), Q(TRN['d%d' % h] + 4 * f), '0' if h == 0 else Q(d)))
a('v_cndmask_b32 v72, v128, v136, s[42:43]')
a('v_cndmask_b32 v73, v132, v140, s[42:43]')
a('s_mov_b32 exec_hi, 0')
a('global_store_dwordx4 v165, v[72:75], s[40:41] sc1')
a('s_mov_b64 exec, -1')
stamp(8)
a('s_sleep %d' % opt('sleepB', 26))
a('s_branch L_moe_final')
a.label('L_moe_idle')
a('s_sleep %d' % opt('sleepI', 70))
a.label('L_moe_final')
a('v_mov_b32 v128, 0')
a('v_mov_b32 v129, 0')
a('s_mov_b32 s53, 0')
a('s_mov_b64 exec, 0xfffffff')
a.label('L_hopb_loop')
a('global_load_dwordx4 v[128:131], v166, s[40:41] sc1')
a('s_add_u32 s53, s53, 1')
a('s_waitcnt vmcnt(0)')
a('v_cmp_ne_u32 vcc, s5, v131')
a('s_and_b64 exec, exec, vcc')
a('s_cbranch_execz L_hopb_done')
a('s_sleep 2')
a('s_cmp_lt_u32 s53, %d' % POLL_MAX)
a('s_cbranch_scc1 L_hopb_loop')
a.label('L_hopb_done')
if DEBUG:
    a('s_mov_b32 s98, s53')
a('s_mov_b64 exec, -1')
stamp(9)
reduce64('v_add_f32', ['v128', 'v129'])
a('v_readlane_b32 s42, v128, 63')
a('v_readlane_b32 s43, v129, 63')
a('v_mov_b32 v3, s43')
a('v_cvt_pk_bf16_f32 v2, s42, v3')
a('v_and_b32 v3, s52, v2')
a('v_lshlrev_b32 v2, 16, v2')
a('v_pk_mul_f32 v[2:3], v[2:3], v[12:13] op_sel_hi:[1,0]')
a('v_cvt_pk_bf16_f32 v2, v2, v3')
a('v_and_b32 v3, s52, v2')
a('v_lshlrev_b32 v2, 16, v2')
a('s_lshl_b32 s42, s55, 10')
a('s_lshl_b32 s43, s3, 2')
a('s_add_u32 s42, s42, s43')
a('v_mov_b32 v9, s42')
wait_status('%d' % (1 << B_T1), 'v160', 'v10')
a('ds_read_b64 v[4:5], v160 offset:%d' % (T1X - STATUS))
a('s_waitcnt lgkmcnt(0)')
a('v_pk_add_f32 v[2:3], v[2:3], v[4:5]')
a('v_cvt_pk_bf16_f32 v2, v2, v3')
a('s_mov_b64 exec, 1')
a('global_store_dword v9, v2, s[36:37]')
a('s_cmp_eq_u32 s2, 0')
a('s_cbranch_scc0 L_no_epoch')
a('s_add_u32 s7, s6, 1')
a('v_mov_b32 v10, 0')
a('v_mov_b32 v11, s7')
a('global_store_dword v10, v11, s[40:41] sc1')
a.label('L_no_epoch')
a('s_mov_b64 exec, -1')
finish()
a.label('L_exit')
a('s_endpgm')
a.label('L_end')

body = a.finalize()
hdr = open('parallel_sum__ssm_conv_s4__moe_arch_mod__prompt.s.ref').read().split('; Override launch')[0]
src = hdr
src += '; Generated by work/gen.py (hand-written instruction streams, scripted unrolling and wait-state padding).\n'
src += '; @launch grid=(256,1,1) block=(640,1,1) lds=%d\n' % LDS_BYTES
src += '.amdgcn_target "amdgcn-amd-amdhsa--gfx950"\n.text\n.globl %s\n.p2align 8\n.type %s,@function\n' % (NAME, NAME)
src += body
src += '''.section .rodata,"a"
.p2align 6
.amdhsa_kernel %s
  .amdhsa_next_free_vgpr 168
  .amdhsa_next_free_sgpr 100
  .amdhsa_accum_offset 168
  .amdhsa_group_segment_fixed_size 0
  .amdhsa_kernarg_size 136
  .amdhsa_user_sgpr_count 2
  .amdhsa_user_sgpr_kernarg_segment_ptr 1
  .amdhsa_system_sgpr_workgroup_id_x 1
.end_amdhsa_kernel
''' % NAME
open(OUT, 'w').write(src)
print('wrote', OUT, 'lds', LDS_BYTES)
```
